```python
import torch

def _softmax(x, axis=-1):
    return torch.softmax(x, dim=axis)
def _gelu(x):
    return torch.nn.functional.gelu(x, approximate="tanh")
def _silu(x):
    return torch.nn.functional.silu(x)
def _sigmoid(x):
    return torch.sigmoid(x)
def _layernorm(x, axis=-1, eps=1e-5):
    m = x.mean(dim=axis, keepdim=True)
    v = x.var(dim=axis, keepdim=True, unbiased=False)
    return (x - m) / torch.sqrt(v + eps)
def _scatter_add(tgt, idx, src, axis=0):
    return tgt.clone().index_add_(axis, idx, src)
def _segment_sum(src, seg, n):
    out = torch.zeros((n,) + src.shape[1:], dtype=src.dtype)
    return out.index_add_(0, seg, src)
def _pad(x, pw):
    flat = tuple(v for pair in reversed(pw) for v in pair)
    return torch.nn.functional.pad(x, flat)

kernel_name = 'standalone__gqa_block_cached__sampling'

def setup_inputs():

    _w = (lambda a: (lambda t: t.to(torch.bfloat16) if t.is_floating_point() else t)(torch.as_tensor(a)))
    B, Sq, D = 32, 8, 512
    Hq, Hkv, Sk, Dh = 32, 8, 2048, 128
    assert Hq % Hkv == 0, (Hq, Hkv)
    return {
        "x": _w((lambda *s: torch.randn(*s, dtype=torch.bfloat16) * 0.8)(B, Sq, D)),
        "k_cache": _w((lambda *s: torch.randn(*s, dtype=torch.bfloat16) * 0.8)(B, Hkv, Sk, Dh)),
        "v_cache": _w((lambda *s: torch.randn(*s, dtype=torch.bfloat16) * 0.05)(B, Hkv, Sk, Dh)),
        "wq": _w((lambda *s: torch.randn(*s, dtype=torch.bfloat16) * 0.8)(D, Hq * Dh) * (D ** -0.5)),
        "wo": _w((lambda *s: torch.randn(*s, dtype=torch.bfloat16) * 0.05)(Hq * Dh, D) * ((Hq * Dh) ** -0.5)),
    }

def reference(x, k_cache, v_cache, wq, wo):
    B, Sq, D = x.shape
    Hq, Dh = 32, 128
    Hkv = k_cache.shape[1]
    rep = Hq // Hkv
    q = (lambda x, *d: x.permute(*d))((x @ wq).reshape(B, Sq, Hq, Dh), 0, 2, 1, 3)
    k = (lambda x, n, axis: torch.repeat_interleave(x, n, dim=axis))(k_cache, rep, axis=1)
    v = (lambda x, n, axis: torch.repeat_interleave(x, n, dim=axis))(v_cache, rep, axis=1)
    scores = torch.einsum("bhqd,bhkd->bhqk", q, k) * (Dh ** -0.5)
    p = _softmax(scores, axis=-1)
    o = torch.einsum("bhqk,bhkd->bhqd", p, v)
    return (lambda x, *d: x.permute(*d))(o, 0, 2, 1, 3).reshape(B, Sq, Hq * Dh) @ wo
```

```python
import sys, json, struct
K = 'standalone__gqa_block_cached__sampling_kernel'

RING = lambda w: w * 32768
QBUF = 131072
ACT = 139264
ACT_STRIDE = 1056
ML = 147712
CNT = 148736
LDS_BYTES = 148800
WS_QX = 0
WS_MB = 0x400000
TAGK = 0x9E3779B9
WS_STAMP = 0xD00000
WS_QDUMP = 0x1000000
WS_ODUMP = 0x2000000
SPIN_MAX = 200000

C_SCALE = 0.08838834764831845 * 1.4426950408889634
def f2u(f): return struct.unpack('<I', struct.pack('<f', f))[0]

class Asm:
    def __init__(self): self.L = []
    def __call__(self, s):
        for line in s.split('\n'):
            line = line.strip()
            if line: self.L.append(('  ' + line) if not line.endswith(':') else line)
    def ext(self, lst):
        for s in lst: self(s)
    def raw(self, s): self.L.append(s)
    def text(self): return '\n'.join(self.L) + '\n'

def interleave(code, blocks, start=0, end=None):
    if end is None: end = len(code)
    n = len(blocks)
    out = list(code[:start])
    span = end - start
    pos = [start + (span * (i + 1)) // (n + 1) for i in range(n)] if n else []
    bi = 0
    for i in range(start, end):
        while bi < n and pos[bi] == i:
            out.extend(blocks[bi]); bi += 1
        out.append(code[i])
    while bi < n:
        out.extend(blocks[bi]); bi += 1
    out.extend(code[end:])
    return out

sX, sKp, sVp, sWq, sWo, sOut, sDbg, sWs = 4, 6, 8, 10, 12, 14, 16, 18
sWave, sH, sB = 20, 21, 22
sT, sT2, sC = 34, 38, 36
SEL_LO, SEL_HI = 40, 41

def gen(W=5, layout='p1', flags='nt', debug=False, wqflags='', woflags='', stamps=False, pprio=True, NHOLD=6, x_nowo=False, x_nomb=False, x_pidle=False, PTH=2, warm='early', WARM_TILE=5, x_lat=False, QSLEEP=4, RSLEEP=2, W0=None, W0N=32, AGATE=None, x_nogate=False, x_qrot=3, x_xonly=False, x_wonly=False):
    a = Asm()
    uid = [0]
    def lab(n):
        uid[0] += 1
        return f'L_{n}_{uid[0]}'
    def lds_spin(off, target, vaddr, vtmp):
        l = lab('spin');
        a(f'{l}:')
        a(f'ds_read_b32 v{vtmp}, v{vaddr} offset:{off}\ns_waitcnt lgkmcnt(0)\nv_readfirstlane_b32 s{sT}, v{vtmp}\ns_cmp_ge_u32 s{sT}, {target}\ns_cbranch_scc0 {l}')
    def glob_poll(voff, shift_expr, target, vtmp, scnt, sleep=1):
        l = lab('poll'); d = lab('pdone')
        a(f's_mov_b32 s{scnt}, {SPIN_MAX}')
        a(f'{l}:')
        a(f'global_load_dword v{vtmp}, v{voff}, s[{sDbg}:{sDbg+1}] sc1\ns_waitcnt vmcnt(0)\nv_readfirstlane_b32 s{sT}, v{vtmp}')
        a(shift_expr)
        a(f's_cmp_ge_u32 s{sT}, {target}\ns_cbranch_scc1 {d}')
        a(f's_sub_u32 s{scnt}, s{scnt}, 1\ns_cmp_eq_u32 s{scnt}, 0\ns_cbranch_scc1 {d}\ns_sleep {sleep}\ns_branch {l}')
        a(f'{d}:')
    def get_nonce():
        l = lab('nonce')
        a(f'v_mov_b32 v6, {CNT}')
        a(f'{l}:')
        a(f'ds_read_b32 v5, v6 offset:12\ns_waitcnt lgkmcnt(0)\nv_readfirstlane_b32 s61, v5\ns_cmp_eq_u32 s61, 0\ns_cbranch_scc1 {l}')
        a(f's_xor_b32 s60, s61, {hex(TAGK)}')
    def check_granule(g, bad, tmp, first):
        o = [f'v_xor_b32 v{tmp}, v{g}, v{g+1}', f'v_xor_b32 v{tmp}, v{tmp}, v{g+2}', f'v_xor_b32 v{tmp}, s61, v{tmp}', f'v_xor_b32 v{tmp+1}, s60, v{g+3}']
        o.append(f'v_or_b32 v{bad}, v{tmp}, v{tmp+1}' if first else f'v_or3_b32 v{bad}, v{bad}, v{tmp}, v{tmp+1}')
        return o
    def stamp(i):
        if stamps: a(f's_memrealtime s[{64+2*i}:{65+2*i}]')

    vK = list(range(8, 16)); vV = list(range(16, 20)); vDK = list(range(20, 24)); vDV = 24
    vM, vL, vNM, vAl = 25, 26, 27, 28
    T = list(range(29, 36))
    P0, S0, Q0, KF0, VF0, O0 = 36, 44, 60, 92, 124, 156
    SRD_K, SRD_V, SRD_WO = 24, 28, 44
    sRing, sG, sCnt = 32, 33, 35
    if layout == 'p1':   Bu = lambda u: 4096 * u;  Cw = 1024
    elif layout == 'p2': Bu = lambda u: 8192 * (u >> 1) + 1024 * (u & 1); Cw = 2048
    elif layout == 'p4': Bu = lambda u: 16384 * (u >> 2) + 1024 * (u & 3); Cw = 4096
    elif layout == 'p8': Bu = lambda u: 1024 * u; Cw = 8192

    a.raw(f'; @launch grid=(256,1,1) block=(512,1,1) lds={LDS_BYTES}')
    a.raw('.amdgcn_target "amdgcn-amd-amdhsa--gfx950"')
    a.raw('.text')
    a.raw(f'.globl {K}\n.p2align 8\n.type {K},@function\n{K}:')
    a('s_cmp_ge_u32 s2, 256\ns_cbranch_scc1 L_end')
    a('s_load_dwordx16 s[4:19], s[0:1], 0')
    a('s_memrealtime s[62:63]')
    stamp(0)
    a(f'v_mov_b32 v2, {CNT}\nv_mov_b32 v3, 0\nds_write_b32 v2, v3\nds_write_b32 v2, v3 offset:4\nds_write_b32 v2, v3 offset:8\nds_write_b32 v2, v3 offset:12\nds_write_b32 v2, v3 offset:16\nds_write_b32 v2, v3 offset:20\nds_write_b32 v2, v3 offset:24')
    a('v_lshrrev_b32 v1, 6, v0\nv_and_b32 v0, 63, v0')
    a(f'v_readfirstlane_b32 s{sWave}, v1')
    a(f's_and_b32 s{sH}, s2, 7\ns_lshr_b32 s{sB}, s2, 3')
    a(f's_mov_b32 s{SEL_LO}, 0x05040100\ns_mov_b32 s{SEL_HI}, 0x07060302')
    a('v_lshrrev_b32 v2, 4, v0\nv_and_b32 v3, 15, v0\nv_lshlrev_b32 v2, 13, v2\nv_lshlrev_b32 v4, 4, v3\nv_add_u32 v252, v2, v4')
    a('s_waitcnt lgkmcnt(0)')
    a('s_barrier')
    a(f's_cmp_ge_u32 s{sWave}, 4\ns_cbranch_scc1 L_pwave')

    def perms(land, e, tb):
        m = e >> 1; sel = SEL_LO + (e & 1); t = tb[e % 3]
        return [f'v_perm_b32 v{t+p}, v{land+4*(2*p+1)+m}, v{land+4*(2*p)+m}, s{sel}' for p in range(4)]
    def mm_block(land, tb, afs, accs, first=False):
        o = perms(land, 0, tb) + perms(land, 1, tb)
        for e in range(8):
            t = tb[e % 3]
            if e == 7 and len(afs) == 1: o.append('s_nop 0')
            for af, acc in zip(afs, accs):
                c = '0' if first else f'v[{acc+4*e}:{acc+4*e+3}]'
                o.append(f'v_mfma_f32_16x16x32_bf16 v[{acc+4*e}:{acc+4*e+3}], v[{af}:{af+3}], v[{t}:{t+3}], {c}')
            if e + 2 < 8: o += perms(land, e + 2, tb)
        return o
    def wo_srd(sw):
        a(f's_lshl_b32 s{sT}, s{sH}, 19\ns_lshl_b32 s{sT2}, s{sw}, 8\ns_add_u32 s{sT}, s{sT}, s{sT2}')
        a(f's_add_u32 s{SRD_WO}, s{sWo}, s{sT}\ns_addc_u32 s{SRD_WO+1}, s{sWo+1}, 0\ns_and_b32 s{SRD_WO+1}, s{SRD_WO+1}, 0xffff')
        a(f's_sub_u32 s{SRD_WO+2}, 524288, s{sT2}\ns_mov_b32 s{SRD_WO+3}, 0x20000')
    def wo_load(land, s, vW):
        o = []
        for j in range(8):
            if j % 4 == 0: o.append(f's_mov_b32 s{sT}, {s*32768 + j*1024}')
            r = land + 4*j
            o.append(f'buffer_load_dwordx4 v[{r}:{r+3}], v{vW}, s[{SRD_WO}:{SRD_WO+3}], s{sT} offen offset:{(j%4)*1024} {woflags}')
        return o
    def wo_voff(vW):
        a(f'v_lshrrev_b32 v2, 4, v0\nv_and_b32 v3, 15, v0\nv_lshlrev_b32 v2, 13, v2\nv_lshlrev_b32 v4, 4, v3\nv_add_u32 v{vW}, v2, v4')
    def act_addr(vA):
        a(f'v_and_b32 v2, 7, v0\nv_mul_u32_u24 v2, {ACT_STRIDE}, v2\nv_lshrrev_b32 v3, 4, v0\nv_lshlrev_b32 v3, 4, v3\nv_add_u32 v2, v2, v3\nv_add_u32 v{vA}, {ACT}, v2')

    a('s_mov_b32 s3, 0')
    a(f's_lshl_b32 s{sT}, s2, 19')
    for srd, p in ((SRD_K, sKp), (SRD_V, sVp)):
        a(f's_add_u32 s{srd}, s{p}, s{sT}\ns_addc_u32 s{srd+1}, s{p+1}, 0\ns_and_b32 s{srd+1}, s{srd+1}, 0xffff')
        a(f's_mov_b32 s{srd+2}, 524288\ns_mov_b32 s{srd+3}, 0x20000')
    a(f's_lshl_b32 s{sRing}, s{sWave}, 15')
    a(f's_mul_i32 s{sG}, s{sWave}, {Cw}')
    a(f's_mov_b32 s{sC}, {hex(f2u(C_SCALE))}')
    a('v_lshrrev_b32 v1, 4, v0\nv_and_b32 v2, 15, v0')
    a('v_lshlrev_b32 v3, 8, v1')
    a('v_xor_b32 v4, v2, v1')
    for u in range(4):
        a(f'v_xor_b32 v5, {4*u}, v4\nv_lshlrev_b32 v5, 4, v5\nv_add_u32 v{vDK[u]}, v3, v5')
    a(f'v_lshlrev_b32 v5, 2, v1\nv_xor_b32 v5, v5, v2\nv_lshlrev_b32 v5, 4, v5\nv_add_u32 v{vDV}, v3, v5')

    def issue(kv, hb, u, goff, wait=True, win=None):
        o = []
        if wait: o.append(f's_waitcnt vmcnt({(win or W)-1})')
        o.append(f's_add_u32 m0, s{sRing}, {hb*16384 + (8192 if kv=="V" else 0) + 1024*u}')
        o.append(f's_add_u32 s{sT}, s{sG}, {goff + Bu(u)}')
        vd = vDK[u & 3] if kv == 'K' else vDV
        srd = SRD_K if kv == 'K' else SRD_V
        o.append(f'buffer_load_dwordx4 v{vd}, s[{srd}:{srd+3}], s{sT} offen {flags} lds')
        return o
    n = 0
    for t in range(2):
        for kv in 'KV':
            if t == 1 and kv == 'V':
                if not x_nogate:
                    a(f'v_mov_b32 v6, {CNT}')
                    lds_spin(4, 2, 6, 7)
            for u in range(8):
                win = (W0 or W) if n < W0N else W
                if AGATE is not None and n == AGATE:
                    a(f'v_mov_b32 v6, {CNT}')
                    lds_spin(24, 4, 6, 7)
                blk = issue(kv, t, u, t * 32768, wait=(n >= win), win=win)
                a.ext(blk); n += 1
            if t == 0 and kv == 'K':
                a('v_and_b32 v1, 31, v0\nv_lshrrev_b32 v2, 5, v0')
                a('v_and_b32 v3, 15, v1\nv_xor_b32 v3, v3, v2')
                a(f'v_lshlrev_b32 v4, 8, v1\nv_add_u32 v4, s{sRing}, v4')
                for s in range(8):
                    a(f'v_xor_b32 v5, {2*s}, v3\nv_lshlrev_b32 v5, 4, v5\nv_add_u32 v{vK[s]}, v4, v5')
                a('v_lshrrev_b32 v1, 4, v0')
                a('v_lshrrev_b32 v2, 2, v0\nv_and_b32 v2, 3, v2')
                a('v_and_b32 v3, 3, v0')
                a('v_lshrrev_b32 v4, 1, v1\nv_lshlrev_b32 v4, 2, v4\nv_add_u32 v4, v4, v2\nv_lshlrev_b32 v4, 8, v4')
                a('v_and_b32 v5, 1, v1\nv_lshlrev_b32 v5, 5, v5\nv_add_u32 v4, v4, v5')
                a('v_lshlrev_b32 v5, 3, v3\nv_add_u32 v4, v4, v5')
                a(f'v_add_u32 v4, s{sRing}, v4\nv_add_u32 v4, 8192, v4')
                for blk in range(4):
                    a(f'v_xor_b32 v5, {blk}, v2\nv_lshlrev_b32 v5, 6, v5\nv_add_u32 v{vV[blk]}, v4, v5')
                a(f'v_mov_b32 v{vM}, 0xff800000\nv_mov_b32 v{vL}, 0')
                for r in range(64): a(f'v_mov_b32 v{O0+r}, 0')
                wo_srd(sWave)
                pass
    a(f's_add_u32 s{sG}, s{sG}, 65536')
    stamp(1)
    a('s_barrier')
    stamp(2)
    a(f's_sub_u32 s{sT}, {QBUF}, s{sRing}')
    for s in range(8):
        a(f'v_add_u32 v1, s{sT}, v{vK[s]}\nds_read_b128 v[{Q0+4*s}:{Q0+4*s+3}], v1')

    AL = [220, Q0, KF0, VF0]
    def tile(hb, do_issue, final=False):
        c = []
        off = hb * 16384
        for s in range(8):
            c.append(f'ds_read_b128 v[{KF0+4*s}:{KF0+4*s+3}], v{vK[s]} offset:{off}')
        c.append('s_waitcnt lgkmcnt(4)')
        for s in range(8):
            if s == 4: c.append('s_waitcnt lgkmcnt(0)')
            srcc = '0' if s == 0 else f'v[{S0}:{S0+15}]'
            c.append(f'v_mfma_f32_32x32x16_bf16 v[{S0}:{S0+15}], v[{KF0+4*s}:{KF0+4*s+3}], v[{Q0+4*s}:{Q0+4*s+3}], {srcc}')
        vreads = []
        for s2 in range(2):
            for blk in range(4):
                for half in range(2):
                    r = VF0 + (s2*4 + blk)*4 + 2*half
                    vreads.append(f'ds_read_b64_tr_b16 v[{r}:{r+1}], v{vV[blk]} offset:{off + s2*4096 + half*2048}')
        if not final:
            c.extend(vreads)
        else:
            for i in range(3): c.extend(wo_load(AL[i], NHOLD + i, 252))
        sm = []
        S = lambda k: S0 + k
        sm.append(f'v_max3_f32 v{T[0]}, v{S(0)}, v{S(1)}, v{S(2)}')
        sm.append(f'v_max3_f32 v{T[1]}, v{S(3)}, v{S(4)}, v{S(5)}')
        sm.append(f'v_max3_f32 v{T[2]}, v{S(6)}, v{S(7)}, v{S(8)}')
        sm.append(f'v_max3_f32 v{T[3]}, v{S(9)}, v{S(10)}, v{S(11)}')
        sm.append(f'v_max3_f32 v{T[4]}, v{S(12)}, v{S(13)}, v{S(14)}')
        sm.append(f'v_max3_f32 v{T[0]}, v{T[0]}, v{T[1]}, v{S(15)}')
        sm.append(f'v_max3_f32 v{T[2]}, v{T[2]}, v{T[3]}, v{T[4]}')
        sm.append(f'v_max_f32 v{T[0]}, v{T[0]}, v{T[2]}')
        sm.append(f'v_mov_b32 v{T[1]}, v{T[0]}')
        sm.append('s_nop 1')
        sm.append(f'v_permlane32_swap_b32 v{T[0]}, v{T[1]}')
        sm.append(f's_nop 1')
        sm.append(f'v_max3_f32 v{T[0]}, v{T[0]}, v{T[1]}, v{vM}')
        sm.append(f'v_mul_f32 v{vNM}, s{sC}, v{T[0]}')
        sm.append(f'v_fma_f32 v{vAl}, v{vM}, s{sC}, -v{vNM}')
        sm.append(f'v_mov_b32 v{vM}, v{T[0]}')
        sm.append(f'v_exp_f32 v{vAl}, v{vAl}')
        for k in range(16): sm.append(f'v_fma_f32 v{S(k)}, v{S(k)}, s{sC}, -v{vNM}')
        for k in range(16): sm.append(f'v_exp_f32 v{S(k)}, v{S(k)}')
        sm.append(f'v_mul_f32 v{vL}, v{vL}, v{vAl}')
        for k in range(4): sm.append(f'v_add_f32 v{T[k]}, v{S(k)}, v{S(k+4)}')
        for k in range(4): sm.append(f'v_add_f32 v{T[k]}, v{T[k]}, v{S(k+8)}')
        for k in range(4): sm.append(f'v_add_f32 v{T[k]}, v{T[k]}, v{S(k+12)}')
        sm.append(f'v_add_f32 v{T[0]}, v{T[0]}, v{T[1]}')
        sm.append(f'v_add_f32 v{T[2]}, v{T[2]}, v{T[3]}')
        for k in range(8): sm.append(f'v_cvt_pk_bf16_f32 v{P0+k}, v{S(2*k)}, v{S(2*k+1)}')
        sm.append(f'v_add_f32 v{vL}, v{vL}, v{T[0]}')
        sm.append(f'v_add_f32 v{vL}, v{vL}, v{T[2]}')
        for r in range(64): sm.append(f'v_mul_f32 v{O0+r}, v{O0+r}, v{vAl}')
        if do_issue:
            sm = interleave(sm, [issue('K', hb, u, 0) for u in range(8)])
        c.extend(sm)
        if final:
            c.append('s_waitcnt vmcnt(24)')
            c.extend(vreads)
        c.append('s_waitcnt lgkmcnt(0)')
        pv = []
        for s2 in range(2):
            for blk in range(4):
                r = VF0 + (s2*4 + blk)*4
                pv.append(f'v_mfma_f32_32x32x16_bf16 v[{O0+16*blk}:{O0+16*blk+15}], v[{r}:{r+3}], v[{P0+4*s2}:{P0+4*s2+3}], v[{O0+16*blk}:{O0+16*blk+15}]')
        if do_issue:
            o = []
            for i in range(8):
                o.append(pv[i]); o.extend(issue('V', hb, i, 0))
            o.append(f's_add_u32 s{sG}, s{sG}, 32768')
            pv = o
        c.extend(pv)
        return c

    a(f's_mov_b32 s{sCnt}, 7')
    a('s_waitcnt lgkmcnt(0)')
    a('L_loop:')
    a.ext(tile(0, True)); a.ext(tile(1, True))
    if warm == 'late':
        l = lab('noflag')
        a(f's_cmp_eq_u32 s{sCnt}, {7 - WARM_TILE}\ns_cbranch_scc0 {l}')
        a(f'v_mov_b32 v1, {CNT}\nv_mov_b32 v2, 1\nds_write_b32 v1, v2 offset:20')
        a(f'{l}:')
    a(f's_sub_u32 s{sCnt}, s{sCnt}, 1\ns_cmp_lg_u32 s{sCnt}, 0\ns_cbranch_scc1 L_loop')
    a.ext(tile(0, False))
    a('s_waitcnt vmcnt(8)')
    a.ext(tile(1, False, final=True))
    stamp(3)
    a.ext(wo_load(AL[3], NHOLD + 3, 252))
    a(f'v_mov_b32 v1, v{vL}\ns_nop 1\nv_permlane32_swap_b32 v1, v{vL}\ns_nop 1\nv_add_f32 v{vL}, v{vL}, v1')
    a('v_and_b32 v2, 31, v0\nv_lshrrev_b32 v3, 5, v0')
    a(f'v_lshlrev_b32 v4, 5, v2\ns_lshl_b32 s{sT}, s{sWave}, 2\nv_add_u32 v4, s{sT}, v4\nv_add_u32 v4, {ML}, v4')
    a(f'ds_write_b32 v4, v{vM}\nds_write_b32 v4, v{vL} offset:16')
    a(f'v_lshlrev_b32 v4, 9, v2\nv_add_u32 v4, s{sRing}, v4\nv_add_u32 v4, 16384, v4')
    a('v_and_b32 v5, 7, v2\nv_xor_b32 v5, v5, v3')
    for j in range(4):
        a(f'v_xor_b32 v6, {2*j}, v5\nv_lshlrev_b32 v6, 4, v6\nv_add_u32 v{T[j]}, v4, v6')
    for blk in range(4):
        for j in range(4):
            r = O0 + 16*blk + 4*j
            a(f'ds_write_b128 v{T[j]}, v[{r}:{r+3}] offset:{128*blk}')
    a(f's_mov_b32 s23, s{sWave}')
    a('s_waitcnt lgkmcnt(0)')
    a('s_branch L_merge')

    a('L_pwave:')
    a('s_mov_b32 s3, 1')
    if pprio: a('s_setprio 3')
    sPW, sGQ, sHQ, sRot = 37, 42, 43, 39
    a(f's_sub_u32 s{sPW}, s{sWave}, 4')
    a(f's_lshr_b32 s{sGQ}, s{sB}, 2\ns_and_b32 s{sHQ}, s{sB}, 3\ns_and_b32 s{sRot}, s{sGQ}, {x_qrot}')
    SRD_W, SRD_X = 24, 28
    XF, TB, ACC, LAND = 12, [44, 48, 52], 56, 120
    vW, vX = 8, 9
    a(f's_mov_b32 s{SRD_X}, s{sX}\ns_and_b32 s{SRD_X+1}, s{sX+1}, 0xffff\ns_mov_b32 s{SRD_X+2}, 262144\ns_mov_b32 s{SRD_X+3}, 0x20000')
    a(f'v_and_b32 v2, 15, v0\nv_lshrrev_b32 v3, 4, v0\nv_lshlrev_b32 v4, 10, v2\nv_lshlrev_b32 v5, 4, v3\nv_add_u32 v{vX}, v4, v5')
    a(f'v_lshlrev_b32 v4, 16, v3\nv_lshlrev_b32 v5, 4, v2\nv_add_u32 v{vW}, v4, v5')
    a(f's_lshl_b32 s{sT}, s{sH}, 2\ns_add_u32 s{sT}, s{sT}, s{sHQ}\ns_lshl_b32 s{sT}, s{sT}, 8')
    a(f's_add_u32 s{SRD_W}, s{sWq}, s{sT}\ns_addc_u32 s{SRD_W+1}, s{sWq+1}, 0\ns_and_b32 s{SRD_W+1}, s{SRD_W+1}, 0xffff')
    a(f's_sub_u32 s{SRD_W+2}, 4194304, s{sT}\ns_mov_b32 s{SRD_W+3}, 0x20000')
    for sg in range(4): a(f's_add_u32 s{48+sg}, s{sRot}, {sg}\ns_and_b32 s{48+sg}, s{48+sg}, 3')
    a(f's_and_b32 s{sT}, s{sPW}, 1')
    a(f's_lshl_b32 s52, s{sGQ}, 15\ns_lshl_b32 s{sT2}, s{sT}, 14\ns_add_u32 s52, s52, s{sT2}\ns_lshl_b32 s{sT2}, s{sPW}, 8\ns_add_u32 s52, s52, s{sT2}')
    a(f's_xor_b32 s53, s52, 16384')
    for sg in range(4):
        for rho in range(2):
            r = XF + (rho*4 + sg)*4
            a(f's_lshl_b32 s{sT}, s{48+sg}, 6\ns_add_u32 s{sT}, s{sT}, s{52+rho}')
            a(f'buffer_load_dwordx4 v[{r}:{r+3}], v{vX}, s[{SRD_X}:{SRD_X+3}], s{sT} offen')
    for sg in range(4):
        a(f's_lshl_b32 s{sT2}, s{sPW}, 2\ns_add_u32 s{sT2}, s{sT2}, s{48+sg}\ns_lshl_b32 s{sT2}, s{sT2}, 18')
        for j in range(8):
            r = LAND + sg*32 + 4*j
            a(f's_add_u32 s{sT}, s{sT2}, {j*8192}')
            a(f'buffer_load_dwordx4 v[{r}:{r+3}], v{vW}, s[{SRD_W}:{SRD_W+3}], s{sT} offen {wqflags}')
    l = lab('nocas')
    a(f's_cmp_eq_u32 s{sPW}, 2\ns_cbranch_scc0 {l}')
    a(f's_or_b32 s62, s62, 1\ns_and_b32 s{sT}, s{sGQ}, 1\ns_lshl_b32 s{sT}, s{sT}, 7\ns_lshr_b32 s{sT2}, s{sGQ}, 1\ns_lshl_b32 s{sT2}, s{sT2}, 2\ns_add_u32 s{sT}, s{sT}, s{sT2}')
    a(f'v_mov_b32 v248, s62\nv_mov_b32 v249, 0\nv_mov_b32 v250, s{sT}')
    a(f's_mov_b32 exec_lo, 1\ns_mov_b32 exec_hi, 0\nglobal_atomic_cmpswap v251, v250, v[248:249], s[{sDbg}:{sDbg+1}] sc0 sc1\ns_mov_b64 exec, -1')
    a(f'{l}:')
    if AGATE is not None:
        a(f'v_mov_b32 v6, {CNT}\nv_mov_b32 v7, 1')
        a('s_mov_b32 exec_lo, 1\ns_mov_b32 exec_hi, 0\nds_add_u32 v6, v7 offset:24\ns_mov_b64 exec, -1')
    if stamps: a('s_memrealtime s[80:81]')
    for sg in range(4):
        l1 = lab('w2'); l2 = lab('wd')
        a(f's_cmp_eq_u32 s{sPW}, 2\ns_cbranch_scc1 {l1}\ns_waitcnt vmcnt({24 - 8*sg})\ns_branch {l2}\n{l1}:\ns_waitcnt vmcnt({25 - 8*sg})\n{l2}:')
        a.ext(mm_block(LAND + sg*32, TB, [XF + sg*4, XF + (4+sg)*4], [ACC, ACC + 32], first=(sg == 0)))
    if stamps: a('s_memrealtime s[82:83]')
    def region(dst, sTile, sK):
        a(f's_mul_i32 s{dst}, s{sTile}, 3\ns_add_u32 s{dst}, s{dst}, s{sK}')
        a(f's_lshl_b32 s{sT}, s{dst}, 15\ns_add_u32 s{sT}, s{sT}, 24576')
        a(f's_sub_u32 s{sT2}, s{dst}, 4\ns_lshl_b32 s{sT2}, s{sT2}, 13\ns_add_u32 s{sT2}, s{sT2}, 131072')
        a(f's_cmp_lt_u32 s{dst}, 4\ns_cselect_b32 s{dst}, s{sT}, s{sT2}')
    a(f's_sub_u32 s54, s{sPW}, 1\ns_cmp_lt_u32 s{sPW}, 2\ns_cselect_b32 s54, 0, s54')
    a(f's_and_b32 s55, s{sPW}, 1')
    a(f's_xor_b32 s56, s55, 1')
    region(57, 56, 54)
    a('v_lshlrev_b32 v1, 4, v0')
    a('s_nop 4')
    a('v_add_u32 v2, s57, v1')
    for e in range(8):
        r = ACC + 32 + 4*e
        a(f'ds_write_b128 v2, v[{r}:{r+3}] offset:{e*1024}')
    lown = lab('owner')
    a(f's_cmp_lt_u32 s{sPW}, 2\ns_cbranch_scc1 {lown}')
    region(57, 55, 54)
    a('v_add_u32 v2, s57, v1')
    for e in range(8):
        r = ACC + 4*e
        a(f'ds_write_b128 v2, v[{r}:{r+3}] offset:{e*1024}')
    a(f'{lown}:')
    a(f's_waitcnt lgkmcnt(0)')
    a(f'v_mov_b32 v6, {CNT}\nv_mov_b32 v7, 1')
    a('s_mov_b32 exec_lo, 1\ns_mov_b32 exec_hi, 0\nds_add_u32 v6, v7\ns_mov_b64 exec, -1')
    lqwait = lab('qwait')
    l = lab('nopub')
    a(f's_cmp_eq_u32 s{sPW}, 2\ns_cbranch_scc0 {l}')
    a(f's_waitcnt vmcnt(0)\nv_readfirstlane_b32 s{sT}, v251\ns_cmp_eq_u32 s{sT}, 0\ns_cselect_b32 s{sT}, s62, s{sT}')
    a(f'v_mov_b32 v5, s{sT}\nds_write_b32 v6, v5 offset:12')
    a(f'{l}:')
    a(f's_cmp_ge_u32 s{sPW}, 2\ns_cbranch_scc1 {lqwait}')
    lds_spin(0, 4, 6, 5)
    RD = LAND
    for k in range(3):
        a(f's_mov_b32 s58, {k}')
        region(57, 55, 58)
        a(f'v_add_u32 v{2+k}, s57, v1')
    for k in range(3):
        for e in range(8):
            r = RD + k*32 + 4*e
            a(f'ds_read_b128 v[{r}:{r+3}], v{2+k} offset:{e*1024}')
    a('s_waitcnt lgkmcnt(0)')
    a('s_mov_b32 exec_lo, 1\ns_mov_b32 exec_hi, 0\nds_add_u32 v6, v7 offset:4\ns_mov_b64 exec, -1')
    for k in range(3):
        for i in range(32):
            a(f'v_add_f32 v{ACC+i}, v{ACC+i}, v{RD+k*32+i}')
    get_nonce()
    a('v_and_b32 v2, 15, v0\nv_lshrrev_b32 v3, 4, v0')
    a('v_lshrrev_b32 v4, 1, v3\nv_lshlrev_b32 v4, 17, v4\nv_and_b32 v5, 1, v3\nv_lshlrev_b32 v5, 11, v5\nv_add_u32 v4, v4, v5\nv_lshlrev_b32 v5, 4, v2\nv_add_u32 v4, v4, v5')
    a(f's_lshl_b32 s{sT}, s{sGQ}, 2\ns_lshl_b32 s{sT2}, s55, 1\ns_add_u32 s{sT}, s{sT}, s{sT2}\ns_lshl_b32 s{sT}, s{sT}, 3\ns_add_u32 s{sT}, s{sT}, s{sH}\ns_lshl_b32 s{sT}, s{sT}, 14')
    a(f's_lshl_b32 s{sT2}, s{sHQ}, 12\ns_add_u32 s{sT}, s{sT}, s{sT2}')
    a(f's_add_u32 s58, s{sWs}, s{sT}\ns_addc_u32 s59, s{sWs+1}, 0')
    if WS_QX: a(f's_add_u32 s58, s58, {WS_QX}\ns_addc_u32 s59, s59, 0')
    for r in range(4):
        for hf in range(2):
            d = RD + 4*(2*r + hf)
            a(f'v_cvt_pk_bf16_f32 v{d}, v{ACC+4*(4*hf)+r}, v{ACC+4*(4*hf+1)+r}')
            a(f'v_cvt_pk_bf16_f32 v{d+1}, v{ACC+4*(4*hf+2)+r}, v{ACC+4*(4*hf+3)+r}')
            a(f'v_mov_b32 v{d+3}, s60')
            a(f'v_xor_b32 v{d+2}, v{d}, v{d+1}\nv_xor_b32 v{d+2}, s61, v{d+2}')
            a(f'global_store_dwordx4 v4, v[{d}:{d+3}], s[58:59] offset:{512*r + 256*hf} sc1')
    if stamps: a('s_memrealtime s[86:87]')
    a('s_waitcnt vmcnt(0)')
    a(f'v_mov_b32 v6, {CNT}\nv_mov_b32 v7, 1')
    a('s_mov_b32 exec_lo, 1\ns_mov_b32 exec_hi, 0\nds_add_u32 v6, v7 offset:8\ns_mov_b64 exec, -1')
    a(f'{lqwait}:')
    if stamps: a('s_memrealtime s[84:85]')
    a(f'v_mov_b32 v6, {CNT}')
    lds_spin(8, 2, 6, 5)
    get_nonce()
    a(f's_lshl_b32 s{sT}, s2, 14\ns_lshl_b32 s{sT2}, s{sPW}, 12\ns_add_u32 s{sT}, s{sT}, s{sT2}')
    a(f's_add_u32 s58, s{sWs}, s{sT}\ns_addc_u32 s59, s{sWs+1}, 0')
    if WS_QX: a(f's_add_u32 s58, s58, {WS_QX}\ns_addc_u32 s59, s59, 0')
    a('v_lshlrev_b32 v1, 4, v0')
    a(f'v_lshrrev_b32 v2, 5, v0\nv_and_b32 v3, 15, v0\nv_lshrrev_b32 v4, 4, v0\nv_and_b32 v4, 1, v4\nv_lshlrev_b32 v4, 3, v4\ns_lshl_b32 s{sT}, s{sPW}, 3\nv_add_u32 v2, s{sT}, v2')
    for t in range(4):
        a(f'v_add_u32 v5, {2*t}, v2\nv_and_b32 v6, 15, v5\nv_xor_b32 v6, v6, v3\nv_lshlrev_b32 v6, 4, v6\nv_lshlrev_b32 v5, 8, v5\nv_add_u32 v5, v5, v6\nv_add_u32 v5, v5, v4\nv_add_u32 v{32+t}, {QBUF}, v5')
    a(f's_mov_b32 s57, {SPIN_MAX}')
    lq = lab('qpoll'); lqd = lab('qdone')
    a(f'{lq}:')
    for t in range(4): a(f'global_load_dwordx4 v[{12+4*t}:{15+4*t}], v1, s[58:59] offset:{1024*t} sc1')
    a('s_waitcnt vmcnt(0)')
    for t in range(4): a.ext(check_granule(12+4*t, 28, 29, t == 0))
    a(f'v_cmp_ne_u32 vcc, 0, v28\ns_cbranch_vccz {lqd}')
    a(f's_sub_u32 s57, s57, 1\ns_cmp_eq_u32 s57, 0\ns_cbranch_scc1 {lqd}\ns_sleep {QSLEEP}\ns_branch {lq}')
    a(f'{lqd}:')
    for t in range(4): a(f'ds_write_b64 v{32+t}, v[{12+4*t}:{13+4*t}]')
    if debug:
        a(f's_lshl_b32 s{sT}, s2, 13\ns_add_u32 s{sT}, s{sT}, {WS_QDUMP}')
        for t in range(4):
            a(f'v_add_u32 v5, {2*t}, v2\nv_lshlrev_b32 v5, 8, v5\nv_lshlrev_b32 v6, 4, v3\nv_add_u32 v5, v5, v6\nv_add_u32 v5, v5, v4\nv_add_u32 v5, s{sT}, v5')
            a(f'global_store_dwordx2 v5, v[{12+4*t}:{13+4*t}], s[{sWs}:{sWs+1}]')
    a('s_waitcnt lgkmcnt(0)')
    if pprio: a('s_setprio 0')
    stamp(1)
    a('s_barrier')
    stamp(2)
    if x_lat:
        l = lab('nolat')
        a(f's_cmp_eq_u32 s{sPW}, 0\ns_cbranch_scc0 {l}')
        a(f's_lshl_b32 s{sT}, s2, 14\ns_add_u32 s{sT}, s{sT}, 0x3000000')
        a(f's_add_u32 s58, s{sWs}, s{sT}\ns_addc_u32 s59, s{sWs+1}, 0')
        a('v_lshlrev_b32 v1, 4, v0\nv_mov_b32 v12, 1\nv_mov_b32 v13, 1\nv_mov_b32 v14, 1\nv_mov_b32 v15, 1')
        a('s_sleep 64\ns_sleep 64\ns_sleep 64')
        ops = ['global_store_dwordx4 v1, v[12:15], s[58:59] sc1',
               'global_store_dwordx4 v1, v[12:15], s[58:59] offset:1024',
               'global_store_dwordx4 v1, v[12:15], s[58:59] offset:2048 nt',
               'global_store_dwordx4 v1, v[12:15], s[58:59] offset:3072 sc0 sc1',
               'ATOM', 'global_load_dwordx4 v[16:19], v1, s[58:59] sc1', 'LD2', 'ST1']
        for i, op in enumerate(ops):
            a('s_memtime s[48:49]\ns_waitcnt lgkmcnt(0)')
            if op == 'ATOM':
                a('v_add_u32 v2, 4096, v1\ns_mov_b32 exec_lo, 1\ns_mov_b32 exec_hi, 0\nglobal_atomic_add v16, v2, v12, s[58:59] sc0 sc1\ns_mov_b64 exec, -1')
            elif op == 'LD2':
                a('v_add_u32 v2, 8192, v1\nglobal_load_dwordx4 v[16:19], v2, s[58:59]')
            elif op == 'ST1':
                a('v_add_u32 v2, 12288, v1\ns_mov_b32 exec_lo, 1\ns_mov_b32 exec_hi, 0\nglobal_store_dword v2, v12, s[58:59] sc1\ns_mov_b64 exec, -1')
            else: a(op)
            a('s_waitcnt vmcnt(0)\ns_memtime s[50:51]\ns_waitcnt lgkmcnt(0)\ns_sub_u32 s50, s50, s48')
            a(f'v_mov_b32 v{20+i}, s50')
            a('s_sleep 32')
        a(f's_lshl_b32 s{sT}, s2, 6\ns_add_u32 s{sT}, s{sT}, 0x900000\nv_mov_b32 v3, s{sT}')
        a('s_mov_b32 exec_lo, 1\ns_mov_b32 exec_hi, 0')
        a(f'global_store_dwordx4 v3, v[20:23], s[{sWs}:{sWs+1}]\nglobal_store_dwordx4 v3, v[24:27], s[{sWs}:{sWs+1}] offset:16')
        a('s_mov_b64 exec, -1\ns_waitcnt vmcnt(0)')
        a(f'{l}:')
    if x_pidle: a('s_branch L_pskip')
    HOLD = 56; PL = 12
    wo_srd(sPW)
    def warmup():
        a(f's_lshl_b32 s{sT}, s{sH}, 19')
        a(f's_add_u32 s48, s{sWo}, s{sT}\ns_addc_u32 s49, s{sWo+1}, 0\ns_and_b32 s49, s49, 0xffff\ns_mov_b32 s50, 524288\ns_mov_b32 s51, 0x20000')
        a(f's_lshl_b32 s{sT2}, s{sB}, 4\ns_lshl_b32 s52, s{sPW}, 2\ns_add_u32 s{sT2}, s{sT2}, s52\ns_lshl_b32 s{sT2}, s{sT2}, 10')
        a('v_lshlrev_b32 v1, 4, v0')
        for i in range(4):
            a(f'buffer_load_dwordx4 v[{PL+4*i}:{PL+4*i+3}], v1, s[48:51], s{sT2} offen offset:{i*1024} {woflags}')
        a('s_waitcnt vmcnt(0)')
    if warm == 'early': warmup()
    for s in range(NHOLD if not x_nowo else 0):
        ld = wo_load(PL, s, 252)
        cnt = 0
        for ins in ld:
            a(ins)
            if ins.startswith('buffer_load'):
                cnt += 1
                if cnt % PTH == 0: a('s_waitcnt vmcnt(0)')
        a('s_waitcnt vmcnt(0)')
        for e in range(8):
            m = e >> 1; sel = SEL_LO + (e & 1)
            for p in range(4):
                a(f'v_perm_b32 v{HOLD+s*32+4*e+p}, v{PL+4*(2*p+1)+m}, v{PL+4*(2*p)+m}, s{sel}')
    if warm == 'late':
        a(f'v_mov_b32 v6, {CNT}')
        lw = lab('wwait')
        a(f'{lw}:\ns_sleep 16\nds_read_b32 v5, v6 offset:20\ns_waitcnt lgkmcnt(0)\nv_readfirstlane_b32 s{sT}, v5\ns_cmp_ge_u32 s{sT}, 1\ns_cbranch_scc0 {lw}')
        warmup()
    if x_pidle:
        a('L_pskip:')
        wo_srd(sPW)
    a(f's_mov_b32 s23, s{sPW}')
    stamp(3)

    a('L_merge:')
    a('s_barrier')
    a(f's_lshl_b32 s{sT}, s{sWave}, 6\nv_add_u32 v1, s{sT}, v0')
    a('v_lshrrev_b32 v2, 4, v1\nv_and_b32 v3, 15, v1')
    a(f'v_lshlrev_b32 v4, 5, v2\nv_add_u32 v4, {ML}, v4')
    a('ds_read_b128 v[8:11], v4\nds_read_b128 v[12:15], v4 offset:16')
    a('v_and_b32 v5, 7, v2\nv_xor_b32 v5, v5, v3\nv_lshlrev_b32 v5, 4, v5\nv_lshlrev_b32 v6, 9, v2\nv_add_u32 v5, v5, v6\nv_add_u32 v5, 16384, v5')
    a('v_add_u32 v6, 65536, v5')
    for w in range(4):
        for half in range(2):
            r = 16 + (w*2 + half)*4
            base = 'v5' if w < 2 else 'v6'
            a(f'ds_read_b128 v[{r}:{r+3}], {base} offset:{(w&1)*32768 + 256*half}')
    a(f's_mov_b32 s{sC}, {hex(f2u(C_SCALE))}')
    a('s_waitcnt lgkmcnt(8)')
    a('v_max3_f32 v48, v8, v9, v10\nv_max_f32 v48, v48, v11')
    for w in range(4): a(f'v_sub_f32 v{8+w}, v{8+w}, v48\nv_mul_f32 v{8+w}, s{sC}, v{8+w}')
    for w in range(4): a(f'v_exp_f32 v{8+w}, v{8+w}')
    a('s_nop 0')
    a('v_mul_f32 v48, v8, v12\nv_fmac_f32 v48, v9, v13\nv_fmac_f32 v48, v10, v14\nv_fmac_f32 v48, v11, v15')
    a('v_rcp_f32 v48, v48\ns_nop 0')
    for w in range(4): a(f'v_mul_f32 v{8+w}, v{8+w}, v48')
    a(f'v_and_b32 v4, 7, v2\nv_mul_u32_u24 v4, {ACT_STRIDE}, v4\nv_lshrrev_b32 v5, 3, v2\nv_lshlrev_b32 v5, 8, v5\nv_add_u32 v4, v4, v5\nv_lshlrev_b32 v5, 3, v3\nv_add_u32 v4, v4, v5\nv_add_u32 v4, {ACT}, v4')
    a('s_waitcnt lgkmcnt(0)')
    for half in range(2):
        for i in range(4):
            d = 16 + half*4 + i
            a(f'v_mul_f32 v{d}, v8, v{d}')
            for w in range(1, 4):
                a(f'v_fmac_f32 v{d}, v{8+w}, v{16+(w*2+half)*4+i}')
    a('v_cvt_pk_bf16_f32 v48, v16, v17\nv_cvt_pk_bf16_f32 v49, v18, v19\nv_cvt_pk_bf16_f32 v50, v20, v21\nv_cvt_pk_bf16_f32 v51, v22, v23')
    a('ds_write_b64 v4, v[48:49]\nds_write_b64 v4, v[50:51] offset:128')
    if debug:
        a(f'v_and_b32 v4, 7, v2\nv_lshlrev_b32 v4, 13, v4\nv_lshrrev_b32 v5, 3, v2\nv_lshlrev_b32 v5, 8, v5\nv_add_u32 v4, v4, v5\nv_lshlrev_b32 v5, 3, v3\nv_add_u32 v4, v4, v5')
        a(f's_lshl_b32 s{sT}, s{sB}, 16\ns_lshl_b32 s{sT2}, s{sH}, 10\ns_add_u32 s{sT}, s{sT}, s{sT2}\ns_add_u32 s{sT}, s{sT}, {WS_ODUMP}\nv_add_u32 v4, s{sT}, v4')
        a(f'global_store_dwordx2 v4, v[48:49], s[{sWs}:{sWs+1}]\nglobal_store_dwordx2 v4, v[50:51], s[{sWs}:{sWs+1}] offset:128')
    act_addr(9)
    a('s_waitcnt lgkmcnt(0)')
    a('s_barrier')
    stamp(4)
    a('s_cmp_eq_u32 s3, 1\ns_cbranch_scc1 L_pproj')

    aACC, aTB, aAF = O0, [O0+32, O0+36, O0+40], [O0+44, O0+48]
    nb = 16 - NHOLD
    dbg_extra = 0
    a(f'ds_read_b128 v[{aAF[0]}:{aAF[0]+3}], v9 offset:{64*NHOLD}')
    issued = 4
    for i in range(nb):
        s = NHOLD + i
        younger = (min(issued, nb) - (i + 1)) * 8
        a(f's_waitcnt vmcnt({younger})' if not debug else 's_waitcnt vmcnt(0)')
        a('s_waitcnt lgkmcnt(0)')
        if i + 1 < nb: a(f'ds_read_b128 v[{aAF[(i+1)&1]}:{aAF[(i+1)&1]+3}], v9 offset:{64*(s+1)}')
        a.ext(mm_block(AL[i % 4], aTB, [aAF[i & 1]], [aACC], first=(i == 0)))
        if issued < nb:
            a.ext(wo_load(AL[i % 4], NHOLD + issued, 252)); issued += 1
    a('s_nop 7')
    a(f'v_lshlrev_b32 v1, 4, v0\nv_add_u32 v1, s{sRing}, v1')
    for e in range(8):
        a(f'ds_write_b128 v1, v[{aACC+4*e}:{aACC+4*e+3}] offset:{e*1024}')
    a('s_waitcnt lgkmcnt(0)')
    a('s_barrier')
    if stamps:
        a('s_branch L_stamps')
    else:
        a('s_endpgm')

    a('L_pproj:')
    pACC = 12; pAF = [44, 48]
    a(f'ds_read_b128 v[{pAF[0]}:{pAF[0]+3}], v9')
    for s in range(NHOLD):
        a('s_waitcnt lgkmcnt(0)')
        if s + 1 < NHOLD: a(f'ds_read_b128 v[{pAF[(s+1)&1]}:{pAF[(s+1)&1]+3}], v9 offset:{64*(s+1)}')
        for e in range(8):
            c = '0' if s == 0 else f'v[{pACC+4*e}:{pACC+4*e+3}]'
            a(f'v_mfma_f32_16x16x32_bf16 v[{pACC+4*e}:{pACC+4*e+3}], v[{pAF[s&1]}:{pAF[s&1]+3}], v[{HOLD+s*32+4*e}:{HOLD+s*32+4*e+3}], {c}')
    a('v_and_b32 v2, 15, v0\nv_lshrrev_b32 v3, 4, v0\nv_and_b32 v3, 1, v3\nv_lshrrev_b32 v5, 5, v0')
    a('v_lshrrev_b32 v4, 3, v2\nv_lshlrev_b32 v4, 15, v4\nv_lshlrev_b32 v6, 9, v3\nv_add_u32 v4, v4, v6\nv_lshlrev_b32 v6, 8, v5\nv_add_u32 v4, v4, v6\nv_and_b32 v6, 7, v2\nv_lshlrev_b32 v6, 4, v6\nv_add_u32 v4, v4, v6')
    a(f's_lshl_b32 s{sT}, s{sB}, 3\ns_lshl_b32 s{sT2}, s23, 1\ns_add_u32 s{sT}, s{sT}, s{sT2}\ns_lshl_b32 s{sT}, s{sT}, 15\ns_lshl_b32 s{sT2}, s{sH}, 12\ns_add_u32 s{sT}, s{sT}, s{sT2}\ns_add_u32 s{sT}, s{sT}, {WS_MB}')
    a(f's_add_u32 s58, s{sWs}, s{sT}\ns_addc_u32 s59, s{sWs+1}, 0')
    a(f's_lshl_b32 s{sT}, s23, 15\nv_lshlrev_b32 v1, 4, v0\nv_add_u32 v1, s{sT}, v1')
    a('s_barrier')
    stamp(5)
    RA = 56; SUM = 96; GR = 128
    for e in range(8): a(f'ds_read_b128 v[{RA+4*e}:{RA+4*e+3}], v1 offset:{e*1024}')
    a('s_waitcnt lgkmcnt(0)')
    for r in range(4):
        for e in range(8):
            a(f'v_add_f32 v{SUM+8*r+e}, v{pACC+4*e+r}, v{RA+4*e+r}')
    a('s_nop 1')
    for rs in range(2):
        for e in range(8):
            a(f'v_permlane32_swap_b32 v{SUM+8*rs+e}, v{SUM+8*(rs+2)+e}')
    a('s_nop 1')
    for rs in range(2):
        for p in range(4):
            g = GR + 4*(rs*4 + p)
            a(f'v_mov_b32 v{g}, v{SUM+8*rs+2*p}\nv_mov_b32 v{g+1}, v{SUM+8*rs+2*p+1}\nv_mov_b32 v{g+3}, s60')
            a(f'v_xor_b32 v{g+2}, v{g}, v{g+1}\nv_xor_b32 v{g+2}, s61, v{g+2}')
            a(f'global_store_dwordx4 v4, v[{g}:{g+3}], s[58:59] offset:{p*1024 + rs*128} sc1')
    a('v_lshrrev_b32 v2, 4, v0\nv_lshrrev_b32 v3, 3, v0\nv_and_b32 v3, 1, v3\nv_and_b32 v5, 7, v0')
    a('v_lshlrev_b32 v4, 10, v2\nv_lshlrev_b32 v6, 7, v3\nv_add_u32 v4, v4, v6\nv_lshlrev_b32 v6, 4, v5\nv_add_u32 v4, v4, v6')
    a(f's_lshl_b32 s{sT}, s2, 15\ns_lshl_b32 s{sT2}, s23, 8\ns_add_u32 s{sT}, s{sT}, s{sT2}\ns_add_u32 s{sT}, s{sT}, {WS_MB}')
    a(f's_add_u32 s58, s{sWs}, s{sT}\ns_addc_u32 s59, s{sWs+1}, 0')
    for s_ in range(1, 8): a(f'v_add_u32 v{47+s_}, {4096*s_}, v4')
    a(f's_mov_b32 s57, {SPIN_MAX}')
    lp = lab('rpoll'); ld = lab('rdone')
    a(f'{lp}:')
    for s_ in range(8):
        va = 4 if s_ == 0 else 47 + s_
        a(f'global_load_dwordx4 v[{12+4*s_}:{15+4*s_}], v{va}, s[58:59] sc1')
    a('s_waitcnt vmcnt(0)')
    for s_ in range(8): a.ext(check_granule(12+4*s_, 44, 45, s_ == 0))
    a(f'v_cmp_ne_u32 vcc, 0, v44\ns_cbranch_vccz {ld}')
    a(f's_sub_u32 s57, s57, 1\ns_cmp_eq_u32 s57, 0\ns_cbranch_scc1 {ld}\ns_sleep {RSLEEP}\ns_branch {lp}')
    a(f'{ld}:')
    for i in range(2):
        a(f'v_add_f32 v{12+i}, v{12+i}, v{16+i}\nv_add_f32 v{20+i}, v{20+i}, v{24+i}\nv_add_f32 v{28+i}, v{28+i}, v{32+i}\nv_add_f32 v{36+i}, v{36+i}, v{40+i}')
    for i in range(2):
        a(f'v_add_f32 v{12+i}, v{12+i}, v{20+i}\nv_add_f32 v{28+i}, v{28+i}, v{36+i}')
    a('v_add_f32 v12, v12, v28\nv_add_f32 v13, v13, v29')
    a('v_cvt_pk_bf16_f32 v12, v12, v13')
    a(f's_lshl_b32 s{sT}, s{sB}, 3\ns_lshl_b32 s{sT2}, s23, 1\ns_add_u32 s{sT}, s{sT}, s{sT2}\ns_lshl_b32 s{sT}, s{sT}, 10\ns_lshl_b32 s{sT2}, s{sH}, 7\ns_add_u32 s{sT}, s{sT}, s{sT2}')
    a(f'v_lshlrev_b32 v4, 10, v3\nv_lshlrev_b32 v6, 4, v5\nv_add_u32 v4, v4, v6\nv_lshlrev_b32 v6, 2, v2\nv_add_u32 v4, v4, v6\nv_add_u32 v4, s{sT}, v4')
    a(f'global_store_dword v4, v12, s[{sOut}:{sOut+1}]')
    if stamps:
        stamp(6)
        a('L_stamps:')
        a('s_waitcnt lgkmcnt(0)')
        a(f's_lshl_b32 s{sT}, s2, 3\ns_add_u32 s{sT}, s{sT}, s{sWave}\ns_lshl_b32 s{sT}, s{sT}, 6\ns_add_u32 s{sT}, s{sT}, {WS_STAMP}\nv_mov_b32 v3, s{sT}')
        a('s_mov_b32 exec_lo, 1\ns_mov_b32 exec_hi, 0')
        for q in range(3):
            regs = [64+2*(4*q+i) for i in range(4)]
            a('\n'.join(f'v_mov_b32 v{4+i}, s{regs[i]}' for i in range(4)))
            a(f'global_store_dwordx4 v3, v[4:7], s[{sWs}:{sWs+1}] offset:{16*q}\ns_nop 1')
    a('L_end:\ns_endpgm')
    a.raw('.section .rodata,"a"\n.p2align 6')
    a.raw(f'.amdhsa_kernel {K}')
    a.raw('  .amdhsa_next_free_vgpr 256\n  .amdhsa_next_free_sgpr 96\n  .amdhsa_accum_offset 256')
    a.raw('  .amdhsa_group_segment_fixed_size 0\n  .amdhsa_kernarg_size 64\n  .amdhsa_user_sgpr_count 2\n  .amdhsa_user_sgpr_kernarg_segment_ptr 1\n  .amdhsa_system_sgpr_workgroup_id_x 1')
    a.raw('.end_amdhsa_kernel')
    return a.text()

if __name__ == '__main__':
    kw = json.loads(sys.argv[2]) if len(sys.argv) > 2 else {}
    open(sys.argv[1], 'w').write(gen(**kw))
```

```python
import sys, json, struct
K = 'standalone__gqa_block_cached__sampling_kernel'

QBUF = 131072
ACT = 139264
ACT_STRIDE = 1056
ML = 147712
CNT = 148736
LDS_BYTES = 148800
WS_QX = 0
WS_MB = 0x400000
TAGK = 0x9E3779B9
WS_STAMP = 0xD00000
WS_QDUMP = 0x1000000
WS_ODUMP = 0x2000000
SPIN_MAX = 200000

C_SCALE = 0.08838834764831845 * 1.4426950408889634
def f2u(f): return struct.unpack('<I', struct.pack('<f', f))[0]

class Asm:
    def __init__(self): self.L = []
    def __call__(self, s):
        for line in s.split('\n'):
            line = line.strip()
            if line: self.L.append(('  ' + line) if not line.endswith(':') else line)
    def ext(self, lst):
        for s in lst: self(s)
    def raw(self, s): self.L.append(s)
    def text(self): return '\n'.join(self.L) + '\n'

def interleave(code, blocks, start=0, end=None):
    if end is None: end = len(code)
    n = len(blocks)
    out = list(code[:start])
    span = end - start
    pos = [start + (span * (i + 1)) // (n + 1) for i in range(n)] if n else []
    bi = 0
    for i in range(start, end):
        while bi < n and pos[bi] == i:
            out.extend(blocks[bi]()); bi += 1
        out.append(code[i])
    while bi < n:
        out.extend(blocks[bi]()); bi += 1
    out.extend(code[end:])
    return out

class VM:
    def __init__(self): self.ops = []; self.done = 0
    def add(self, tag, piece=False): self.ops.append((tag, piece))
    def _wait(self, idx):
        if idx < self.done: return []
        n = len(self.ops) - 1 - idx
        self.done = idx + 1
        assert n <= 63, n
        return [f's_waitcnt vmcnt({n})']
    def window(self, W):
        pcs = [i for i, (t, p) in enumerate(self.ops) if p]
        if len(pcs) < W: return []
        return self._wait(pcs[-W])
    def need(self, tag):
        idx = [i for i, (t, p) in enumerate(self.ops) if t == tag]
        assert idx, tag
        return self._wait(idx[-1])

sX, sKp, sVp, sWq, sWo, sOut, sDbg, sWs = 4, 6, 8, 10, 12, 14, 16, 18
sWave, sH, sB, sNW = 20, 21, 22, 23
sT, sT2, sC = 34, 38, 36
SEL_LO, SEL_HI = 40, 41

def gen(W=5, W0=None, layout='p1', flags='nt', debug=False, wqflags='', woflags='', stamps=False, pprio=True,
        PTH=2, QSLEEP=4, RSLEEP=2, AGATE=None, stage=True, QPF=False, QPFSLEEP=0, x_noq=False, x_nopoll=False, x_nost=False, x_noload=False, PWIN=None, xflags='', aprio=False, PDELAY=0, qst='sc1', qld='sc1', tailst=False, LATE12=0, opst=False, P14AT=(3, 5), A13AT=1, x_xcontig=False, x_halfw=False, AFIRST=0, WHI=None, THR0=1350, DTH=455, warmflags=None, wosplit=False, plflags=None, latewarm=None, lateflags='nt', probe=False, PSLEEP=2, QGATE=None, XDMA=True, outfl=''):
    NHOLD = 6
    W0 = W0 or W
    a = Asm()
    uid = [0]
    def lab(n):
        uid[0] += 1
        return f'L_{n}_{uid[0]}'
    def lds_spin(off, target, vaddr, vtmp):
        l = lab('spin')
        a(f'{l}:')
        a(f'ds_read_b32 v{vtmp}, v{vaddr} offset:{off}\ns_waitcnt lgkmcnt(0)\nv_readfirstlane_b32 s{sT}, v{vtmp}\ns_cmp_ge_u32 s{sT}, {target}\ns_cbranch_scc0 {l}')
    def lds_inc(off, vaddr, vone):
        a(f's_mov_b32 exec_lo, 1\ns_mov_b32 exec_hi, 0\nds_add_u32 v{vaddr}, v{vone} offset:{off}\ns_mov_b64 exec, -1')
    def get_nonce():
        pass
    def make_granule(g):
        return [f'v_xor_b32 v{g+2}, v{g}, v{g+1}', f'v_xor_b32 v{g+2}, s61, v{g+2}']
    def check_granule(g, bad, tmp, first):
        o = [f'v_xor_b32 v{tmp}, v{g}, v{g+1}', f'v_xor_b32 v{tmp}, v{tmp}, v{g+2}', f'v_xor_b32 v{tmp}, v{tmp}, v{g+3}', f'v_xor_b32 v{tmp}, {hex(TAGK)}, v{tmp}',
             f'v_subrev_u32 v{tmp+1}, s60, v{g+3}', f'v_lshrrev_b32 v{tmp+1}, 12, v{tmp+1}']
        o.append(f'v_or_b32 v{bad}, v{tmp}, v{tmp+1}' if first else f'v_or3_b32 v{bad}, v{bad}, v{tmp}, v{tmp+1}')
        return o
    def stamp(i):
        if stamps: a(f's_memrealtime s[{64+2*i}:{65+2*i}]')

    vK = list(range(8, 16)); vV = list(range(16, 20)); vDK = list(range(20, 24)); vDV = 24
    vM, vL, vNM, vAl = 25, 26, 27, 28
    T = list(range(29, 36))
    P0, S0, Q0, KV0, O0, R0 = 36, 44, 60, 92, 124, 188
    vWO = 252; vACT = 253
    SRD_K, SRD_V, SRD_WO = 24, 28, 44
    sRing, sG, sCnt = 32, 33, 35
    if layout == 'p1':   Bu = lambda u: 4096 * u;  Cw = 1024
    elif layout == 'p2': Bu = lambda u: 8192 * (u >> 1) + 1024 * (u & 1); Cw = 2048
    elif layout == 'p4': Bu = lambda u: 16384 * (u >> 2) + 1024 * (u & 3); Cw = 4096
    elif layout == 'p8': Bu = lambda u: 1024 * u; Cw = 8192

    a.raw(f'; @launch grid=(256,1,1) block=(512,1,1) lds={LDS_BYTES}')
    a.raw('.amdgcn_target "amdgcn-amd-amdhsa--gfx950"')
    a.raw('.text')
    a.raw(f'.globl {K}\n.p2align 8\n.type {K},@function\n{K}:')
    a('s_cmp_ge_u32 s2, 256\ns_cbranch_scc1 L_end')
    a('s_load_dwordx16 s[4:19], s[0:1], 0')
    a('s_memrealtime s[62:63]')
    stamp(0)
    a(f'v_mov_b32 v2, {CNT}\nv_mov_b32 v3, 0')
    for o in range(0, 32, 4): a(f'ds_write_b32 v2, v3 offset:{o}')
    a('v_lshrrev_b32 v1, 6, v0\nv_and_b32 v0, 63, v0')
    a(f'v_readfirstlane_b32 s{sWave}, v1')
    a(f's_and_b32 s{sH}, s2, 7\ns_lshr_b32 s{sB}, s2, 3')
    a(f's_mov_b32 s{SEL_LO}, 0x05040100\ns_mov_b32 s{SEL_HI}, 0x07060302')
    a(f'v_lshrrev_b32 v2, 4, v0\nv_and_b32 v3, 15, v0\nv_lshlrev_b32 v2, 13, v2\nv_lshlrev_b32 v4, 4, v3\nv_add_u32 v{vWO}, v2, v4')
    a(f'v_and_b32 v2, 7, v0\nv_mul_u32_u24 v2, {ACT_STRIDE}, v2\nv_lshrrev_b32 v3, 4, v0\nv_lshlrev_b32 v3, 4, v3\nv_add_u32 v2, v2, v3\nv_add_u32 v{vACT}, {ACT}, v2')
    a(f's_and_b32 s{sNW}, s{sWave}, 3')
    a('s_waitcnt lgkmcnt(0)')
    a(f's_sub_u32 s60, s62, 2048\ns_xor_b32 s61, s62, {hex(TAGK)}')
    a(f's_lshl_b32 s{sT}, s{sH}, 19\ns_lshl_b32 s{sT2}, s{sNW}, 8\ns_add_u32 s{sT}, s{sT}, s{sT2}')
    a(f's_add_u32 s{SRD_WO}, s{sWo}, s{sT}\ns_addc_u32 s{SRD_WO+1}, s{sWo+1}, 0\ns_and_b32 s{SRD_WO+1}, s{SRD_WO+1}, 0xffff')
    a(f's_sub_u32 s{SRD_WO+2}, 524288, s{sT2}\ns_mov_b32 s{SRD_WO+3}, 0x20000')
    if not AFIRST: a('s_barrier')
    a(f's_cmp_ge_u32 s{sWave}, 4\ns_cbranch_scc1 L_pwave')

    def perms(land, e, tb):
        m = e >> 1; sel = SEL_LO + (e & 1); t = tb[e % 2]
        return [f'v_perm_b32 v{t+p}, v{land+4*(2*p+1)+m}, v{land+4*(2*p)+m}, s{sel}' for p in range(4)]
    def mm_block(land, tb, afs, accs, first=False):
        o = perms(land, 0, tb) + perms(land, 1, tb)
        for e in range(8):
            t = tb[e % 2]
            if e == 7 and len(afs) == 1: o.append('s_nop 0')
            for af, acc in zip(afs, accs):
                c = '0' if first else f'v[{acc+4*e}:{acc+4*e+3}]'
                o.append(f'v_mfma_f32_16x16x32_bf16 v[{acc+4*e}:{acc+4*e+3}], v[{af}:{af+3}], v[{t}:{t+3}], {c}')
            if e + 2 < 8: o += perms(land, e + 2, tb)
        return o
    def transpose_inplace(b, t0, t1):
        o = []
        P_ = lambda d, hi_, lo_, x: f'v_perm_b32 v{d}, v{hi_}, v{lo_}, s{SEL_LO + x}'
        for p in range(4):
            o += [P_(t0, b+8*p+4+p, b+8*p+p, 0), P_(b+8*p+4+p, b+8*p+4+p, b+8*p+p, 1), f'v_mov_b32 v{b+8*p+p}, v{t0}']
        for p in range(4):
            for m in range(p + 1, 4):
                o += [P_(t0, b+8*p+4+m, b+8*p+m, 0), P_(t1, b+8*p+4+m, b+8*p+m, 1),
                      P_(b+8*p+m, b+8*m+4+p, b+8*m+p, 0), P_(b+8*p+4+m, b+8*m+4+p, b+8*m+p, 1),
                      f'v_mov_b32 v{b+8*m+p}, v{t0}', f'v_mov_b32 v{b+8*m+4+p}, v{t1}']
        return o
    vMa, vMb, vMc, vMd = 52, 53, 54, 55
    def merge_addr(offA):
        o = [f's_lshl_b32 s{sT}, s{sWave}, 6', f'v_add_u32 v1, s{sT}, v0', 'v_lshrrev_b32 v2, 4, v1', 'v_and_b32 v3, 15, v1',
             f'v_lshlrev_b32 v{vMa}, 5, v2', f'v_add_u32 v{vMa}, {ML}, v{vMa}',
             'v_and_b32 v5, 7, v2', 'v_xor_b32 v5, v5, v3', 'v_lshlrev_b32 v5, 4, v5', 'v_lshlrev_b32 v6, 9, v2', 'v_add_u32 v5, v5, v6', f'v_add_u32 v{vMb}, {offA}, v5',
             f'v_add_u32 v{vMc}, 65536, v{vMb}',
             'v_and_b32 v4, 7, v2', f'v_mul_u32_u24 v4, {ACT_STRIDE}, v4', 'v_lshrrev_b32 v5, 3, v2', 'v_lshlrev_b32 v5, 8, v5', 'v_add_u32 v4, v4, v5', 'v_lshlrev_b32 v5, 3, v3', 'v_add_u32 v4, v4, v5', f'v_add_u32 v{vMd}, {ACT}, v4']
        return o
    def merge_body():
        a(f'ds_read_b128 v[8:11], v{vMa}\nds_read_b128 v[12:15], v{vMa} offset:16')
        for w in range(4):
            for half in range(2):
                r = 16 + (w*2 + half)*4
                a(f'ds_read_b128 v[{r}:{r+3}], v{vMb if w < 2 else vMc} offset:{(w&1)*32768 + 256*half}')
        a('s_waitcnt lgkmcnt(8)')
        a('v_max3_f32 v48, v8, v9, v10\nv_max_f32 v48, v48, v11')
        for w in range(4): a(f'v_sub_f32 v{8+w}, v{8+w}, v48')
        for w in range(4): a(f'v_mul_f32 v{8+w}, s{sC}, v{8+w}')
        for w in range(4): a(f'v_exp_f32 v{8+w}, v{8+w}')
        a('s_nop 0')
        a('v_mul_f32 v48, v8, v12\nv_fmac_f32 v48, v9, v13\nv_fmac_f32 v48, v10, v14\nv_fmac_f32 v48, v11, v15')
        a('v_rcp_f32 v48, v48\ns_nop 0')
        for w in range(4): a(f'v_mul_f32 v{8+w}, v{8+w}, v48')
        a('s_waitcnt lgkmcnt(0)')
        for half in range(2):
            for i in range(4): a(f'v_mul_f32 v{16+half*4+i}, v8, v{16+half*4+i}')
        for w in range(1, 4):
            for half in range(2):
                for i in range(4): a(f'v_fmac_f32 v{16+half*4+i}, v{8+w}, v{16+(w*2+half)*4+i}')
        a('v_cvt_pk_bf16_f32 v48, v16, v17\nv_cvt_pk_bf16_f32 v49, v18, v19\nv_cvt_pk_bf16_f32 v50, v20, v21\nv_cvt_pk_bf16_f32 v51, v22, v23')
        a(f'ds_write_b64 v{vMd}, v[48:49]\nds_write_b64 v{vMd}, v[50:51] offset:128')
        if debug:
            a(f's_lshl_b32 s{sT}, s{sWave}, 6\nv_add_u32 v1, s{sT}, v0\nv_lshrrev_b32 v2, 4, v1\nv_and_b32 v3, 15, v1')
            a(f'v_and_b32 v4, 7, v2\nv_lshlrev_b32 v4, 13, v4\nv_lshrrev_b32 v5, 3, v2\nv_lshlrev_b32 v5, 8, v5\nv_add_u32 v4, v4, v5\nv_lshlrev_b32 v5, 3, v3\nv_add_u32 v4, v4, v5')
            a(f's_lshl_b32 s{sT}, s{sB}, 16\ns_lshl_b32 s{sT2}, s{sH}, 10\ns_add_u32 s{sT}, s{sT}, s{sT2}\ns_add_u32 s{sT}, s{sT}, {WS_ODUMP}\nv_add_u32 v4, s{sT}, v4')
            a(f'global_store_dwordx2 v4, v[48:49], s[{sWs}:{sWs+1}]\nglobal_store_dwordx2 v4, v[50:51], s[{sWs}:{sWs+1}] offset:128')
            a('s_waitcnt vmcnt(0)')
    def wo_load_list(land, s):
        o = []
        for j in range(8):
            r = land + 4*j
            o.append([f's_mov_b32 s{sT}, {s*32768 + (j//4)*4096}',
                      f'buffer_load_dwordx4 v[{r}:{r+3}], v{vWO}, s[{SRD_WO}:{SRD_WO+3}], s{sT} offen offset:{(j%4)*1024} {woflags}'])
        return o
    def wo_dma_list(ldsoff, s):
        o = []
        for j in range(8):
            o.append([f's_add_u32 m0, s{sRing}, {ldsoff + j*1024}', f's_mov_b32 s{sT}, {s*32768 + j*1024}',
                      f'buffer_load_dwordx4 v{vWO}, s[{SRD_WO}:{SRD_WO+3}], s{sT} offen {woflags} lds'])
        return o

    a('s_mov_b32 s3, 0')
    if aprio: a('s_setprio 3')
    a(f's_lshl_b32 s{sT}, s2, 19')
    for srd, p in ((SRD_K, sKp), (SRD_V, sVp)):
        a(f's_add_u32 s{srd}, s{p}, s{sT}\ns_addc_u32 s{srd+1}, s{p+1}, 0\ns_and_b32 s{srd+1}, s{srd+1}, 0xffff')
        a(f's_mov_b32 s{srd+2}, 524288\ns_mov_b32 s{srd+3}, 0x20000')
    a(f's_lshl_b32 s{sRing}, s{sWave}, 15')
    a(f's_mul_i32 s{sG}, s{sWave}, {Cw}')
    a(f's_mov_b32 s{sC}, {hex(f2u(C_SCALE))}')
    a('v_lshrrev_b32 v1, 4, v0\nv_and_b32 v2, 15, v0')
    a('v_lshlrev_b32 v3, 8, v1')
    a('v_xor_b32 v4, v2, v1')
    for u in range(4):
        a(f'v_xor_b32 v5, {4*u}, v4\nv_lshlrev_b32 v5, 4, v5\nv_add_u32 v{vDK[u]}, v3, v5')
    a(f'v_lshlrev_b32 v5, 2, v1\nv_xor_b32 v5, v5, v2\nv_lshlrev_b32 v5, 4, v5\nv_add_u32 v{vDV}, v3, v5')

    vm = VM()
    force = [False]
    gbase = [0]
    def issue(kv, hb, u, tile, win, toreg=None):
        o = vm.window(win) if win else []
        if force[0] and not o: o = [f's_waitcnt vmcnt({win-1})']
        if force[0]: assert o == [f's_waitcnt vmcnt({win-1})'], o
        goff = (tile - gbase[0]) * 32768 + Bu(u)
        vd = vDK[u & 3] if kv == 'K' else vDV
        srd = SRD_K if kv == 'K' else SRD_V
        if toreg is None:
            o.append(f's_add_u32 m0, s{sRing}, {hb*16384 + (8192 if kv=="V" else 0) + 1024*u}')
            o.append(f's_add_u32 s{sT}, s{sG}, {goff}')
            o.append(f'buffer_load_dwordx4 v{vd}, s[{srd}:{srd+3}], s{sT} offen {flags} lds')
        else:
            o.append(f's_add_u32 s{sT}, s{sG}, {goff}')
            o.append(f'buffer_load_dwordx4 v[{toreg}:{toreg+3}], v{vd}, s[{srd}:{srd+3}], s{sT} offen {flags}')
        vm.add((kv, tile), True)
        return o
    def other(lst, tag):
        def f():
            vm.add(tag, False)
            return list(lst)
        return f

    npro = [0]
    def pro(kv, hb, tile, toreg=None, us=range(8)):
        for u in us:
            if AGATE is not None and npro[0] == AGATE:
                a(f'v_mov_b32 v6, {CNT}'); lds_spin(24, 4, 6, 7)
            a.ext(issue(kv, hb, u, tile, W0, None if toreg is None else toreg + 4*u)); npro[0] += 1
            if QGATE is not None and npro[0] == QGATE:
                a(f'v_mov_b32 v6, {CNT}\nv_mov_b32 v7, 1'); lds_inc(24, 6, 7)
    if AFIRST:
        for u in range(AFIRST):
            pro('K', 0, 0, us=[u]); pro('V', 0, 0, us=[u])
        a('s_barrier')
        pro('K', 0, 0, us=range(AFIRST, 8))
    else:
        pro('K', 0, 0)
    a('v_and_b32 v1, 31, v0\nv_lshrrev_b32 v2, 5, v0')
    a('v_and_b32 v3, 15, v1\nv_xor_b32 v3, v3, v2')
    a(f'v_lshlrev_b32 v4, 8, v1\nv_add_u32 v4, s{sRing}, v4')
    for s in range(8):
        a(f'v_xor_b32 v5, {2*s}, v3\nv_lshlrev_b32 v5, 4, v5\nv_add_u32 v{vK[s]}, v4, v5')
    a('v_lshrrev_b32 v1, 4, v0')
    a('v_lshrrev_b32 v2, 2, v0\nv_and_b32 v2, 3, v2')
    a('v_and_b32 v3, 3, v0')
    a('v_lshrrev_b32 v4, 1, v1\nv_lshlrev_b32 v4, 2, v4\nv_add_u32 v4, v4, v2\nv_lshlrev_b32 v4, 8, v4')
    a('v_and_b32 v5, 1, v1\nv_lshlrev_b32 v5, 5, v5\nv_add_u32 v4, v4, v5')
    a('v_lshlrev_b32 v5, 3, v3\nv_add_u32 v4, v4, v5')
    a(f'v_add_u32 v4, s{sRing}, v4\nv_add_u32 v4, 8192, v4')
    for blk in range(4):
        a(f'v_xor_b32 v5, {blk}, v2\nv_lshlrev_b32 v5, 6, v5\nv_add_u32 v{vV[blk]}, v4, v5')
    a(f'v_mov_b32 v{vM}, 0xff800000\nv_mov_b32 v{vL}, 0')
    for r in range(64): a(f'v_mov_b32 v{O0+r}, 0')
    vLIN = 254
    a(f'v_lshlrev_b32 v{vLIN}, 4, v0\nv_add_u32 v{vLIN}, s{sRing}, v{vLIN}')
    pro('V', 0, 0, us=range(AFIRST, 8))
    stamp(8)
    pro('K', 1, 1)
    stamp(9)
    if stage:
        pro('K', 0, 2, toreg=R0)
        stamp(10)
        pro('V', 0, 2, toreg=R0 + 32)
        stamp(11)
    a(f'v_mov_b32 v6, {CNT}')
    if not x_noq: lds_spin(4, 2, 6, 7)
    pro('V', 1, 1)
    stamp(1)
    if aprio: a('s_setprio 0')
    a('s_barrier')
    stamp(2)
    a(f's_sub_u32 s{sT}, {QBUF}, s{sRing}')
    for s in range(8):
        a(f'v_add_u32 v1, s{sT}, v{vK[s]}\nds_read_b128 v[{Q0+4*s}:{Q0+4*s+3}], v1')
    a('s_waitcnt lgkmcnt(0)')

    def tile(hb, tidx, kblocks=(), vblocks=(), after_k=None, after_v=None, after_qk=None, inloop=False, final=False, bump=False, pre_v=None, mid=None):
        c = []
        off = hb * 16384
        if not inloop: c += vm.need(('K', tidx))
        for s in range(8):
            c.append(f'ds_read_b128 v[{KV0+4*s}:{KV0+4*s+3}], v{vK[s]} offset:{off}')
        c.append('s_waitcnt lgkmcnt(4)')
        for s in range(8):
            if s == 4: c.append('s_waitcnt lgkmcnt(0)')
            srcc = '0' if s == 0 else f'v[{S0}:{S0+15}]'
            c.append(f'v_mfma_f32_32x32x16_bf16 v[{S0}:{S0+15}], v[{KV0+4*s}:{KV0+4*s+3}], v[{Q0+4*s}:{Q0+4*s+3}], {srcc}')
        vreads = []
        for s2 in range(2):
            for blk in range(4):
                for half in range(2):
                    r = KV0 + (s2*4 + blk)*4 + 2*half
                    vreads.append(f'ds_read_b64_tr_b16 v[{r}:{r+1}], v{vV[blk]} offset:{off + s2*4096 + half*2048}')
        nw = 0
        if after_k is not None:
            x = after_k(); c += x; nw += len(x)
        if after_qk is not None:
            x = after_qk(); c += x; nw += len(x)
        if not final:
            if not inloop: c += vm.need(('V', tidx))
            c.extend(vreads); nw += 16
        if nw < 12: c.append(f's_nop {min(7, 11 - nw)}'); nw += min(8, 12 - nw)
        if nw < 12: c.append(f's_nop {11 - nw}')
        sm = []
        S = lambda k: S0 + k
        sm.append(f'v_max3_f32 v{T[0]}, v{S(0)}, v{S(1)}, v{S(2)}')
        sm.append(f'v_max3_f32 v{T[1]}, v{S(3)}, v{S(4)}, v{S(5)}')
        sm.append(f'v_max3_f32 v{T[2]}, v{S(6)}, v{S(7)}, v{S(8)}')
        sm.append(f'v_max3_f32 v{T[3]}, v{S(9)}, v{S(10)}, v{S(11)}')
        sm.append(f'v_max3_f32 v{T[4]}, v{S(12)}, v{S(13)}, v{S(14)}')
        sm.append(f'v_max3_f32 v{T[0]}, v{T[0]}, v{T[1]}, v{S(15)}')
        sm.append(f'v_max3_f32 v{T[2]}, v{T[2]}, v{T[3]}, v{T[4]}')
        sm.append(f'v_max_f32 v{T[0]}, v{T[0]}, v{T[2]}')
        sm.append(f'v_mov_b32 v{T[1]}, v{T[0]}')
        sm.append('s_nop 1')
        sm.append(f'v_permlane32_swap_b32 v{T[0]}, v{T[1]}')
        sm.append(f's_nop 1')
        sm.append(f'v_max3_f32 v{T[0]}, v{T[0]}, v{T[1]}, v{vM}')
        sm.append(f'v_mul_f32 v{vNM}, s{sC}, v{T[0]}')
        sm.append(f'v_fma_f32 v{vAl}, v{vM}, s{sC}, -v{vNM}')
        sm.append(f'v_mov_b32 v{vM}, v{T[0]}')
        sm.append(f'v_exp_f32 v{vAl}, v{vAl}')
        for k in range(16): sm.append(f'v_fma_f32 v{S(k)}, v{S(k)}, s{sC}, -v{vNM}')
        for k in range(16): sm.append(f'v_exp_f32 v{S(k)}, v{S(k)}')
        sm.append(f'v_mul_f32 v{vL}, v{vL}, v{vAl}')
        for k in range(4): sm.append(f'v_add_f32 v{T[k]}, v{S(k)}, v{S(k+4)}')
        for k in range(4): sm.append(f'v_add_f32 v{T[k]}, v{T[k]}, v{S(k+8)}')
        for k in range(4): sm.append(f'v_add_f32 v{T[k]}, v{T[k]}, v{S(k+12)}')
        sm.append(f'v_add_f32 v{T[0]}, v{T[0]}, v{T[1]}')
        sm.append(f'v_add_f32 v{T[2]}, v{T[2]}, v{T[3]}')
        for k in range(8): sm.append(f'v_cvt_pk_bf16_f32 v{P0+k}, v{S(2*k)}, v{S(2*k+1)}')
        sm.append(f'v_add_f32 v{vL}, v{vL}, v{T[0]}')
        sm.append(f'v_add_f32 v{vL}, v{vL}, v{T[2]}')
        for r in range(64): sm.append(f'v_mul_f32 v{O0+r}, v{O0+r}, v{vAl}')
        c.extend(interleave(sm, list(kblocks)))
        if mid is not None: c += mid()
        if pre_v is not None: c += pre_v()
        if final:
            c += vm.need(('V', tidx))
            c.extend(vreads)
        c.append('s_waitcnt lgkmcnt(0)')
        if after_v is not None: c += after_v()
        pv = []
        for s2 in range(2):
            for blk in range(4):
                r = KV0 + (s2*4 + blk)*4
                pv.append(f'v_mfma_f32_32x32x16_bf16 v[{O0+16*blk}:{O0+16*blk+15}], v[{r}:{r+3}], v[{P0+4*s2}:{P0+4*s2+3}], v[{O0+16*blk}:{O0+16*blk+15}]')
        vb = list(vblocks)
        per = -(-len(vb) // 8) if vb else 0
        for i in range(8):
            c.append(pv[i])
            for b in vb[i*per:(i+1)*per]: c.extend(b())
        if bump:
            c.append(f's_add_u32 s{sG}, s{sG}, 32768'); gbase[0] += 1
        return c
    def iss(kv, hb, tile_): return [(lambda u=u: issue(kv, hb, u, tile_, W)) for u in range(8)]

    if stage:
        a.ext(tile(0, 0, kblocks=iss('K', 0, 3)))
        def wrK():
            return vm.need(('K', 2)) + [f'ds_write_b128 v{vLIN}, v[{R0+4*u}:{R0+4*u+3}] offset:{16384 + 1024*u}' for u in range(8)]
        def wrV():
            return vm.need(('V', 2)) + [f'ds_write_b128 v{vLIN}, v[{R0+32+4*u}:{R0+32+4*u+3}] offset:{16384 + 8192 + 1024*u}' for u in range(8)]
        a.ext(tile(1, 1, kblocks=iss('V', 0, 3), after_k=wrK, after_v=wrV))
        a(f's_add_u32 s{sG}, s{sG}, {4*32768}'); gbase[0] = 4
        first_loop, nit, order = 2, 5, (1, 0)
    else:
        a(f's_add_u32 s{sG}, s{sG}, {2*32768}'); gbase[0] = 2
        first_loop, nit, order = 0, 6, (0, 1)
    a(f's_mov_b32 s{sCnt}, {nit}')
    if WHI: a(f's_mov_b32 s50, {THR0}')
    a('L_loop:')
    if WHI:
        a('s_memrealtime s[48:49]\ns_waitcnt lgkmcnt(0)\ns_sub_u32 s48, s48, s62\ns_cmp_gt_u32 s48, s50\ns_cbranch_scc1 L_fast')
    force[0] = True
    snap = (list(vm.ops), vm.done, gbase[0])
    for hb in order:
        t = gbase[0]
        a.ext(tile(hb, None, kblocks=iss('K', hb, t), vblocks=iss('V', hb, t), inloop=True, bump=True))
    force[0] = False
    if WHI:
        a('s_branch L_next')
        a('L_fast:')
        after = (list(vm.ops), vm.done, gbase[0])
        vm.ops, vm.done, gbase[0] = list(snap[0]), snap[1], snap[2]
        def issue_hi(kv, hb, u, tile_):
            o = [f's_waitcnt vmcnt({WHI-1})']
            goff = (tile_ - gbase[0]) * 32768 + Bu(u)
            vd = vDK[u & 3] if kv == 'K' else vDV
            srd = SRD_K if kv == 'K' else SRD_V
            o.append(f's_add_u32 m0, s{sRing}, {hb*16384 + (8192 if kv=="V" else 0) + 1024*u}')
            o.append(f's_add_u32 s{sT}, s{sG}, {goff}')
            o.append(f'buffer_load_dwordx4 v{vd}, s[{srd}:{srd+3}], s{sT} offen {flags} lds')
            return o
        for hb in order:
            t = gbase[0]
            a.ext(tile(hb, None, kblocks=[(lambda u=u, hb=hb, t=t: issue_hi('K', hb, u, t)) for u in range(8)],
                       vblocks=[(lambda u=u, hb=hb, t=t: issue_hi('V', hb, u, t)) for u in range(8)], inloop=True, bump=True))
        vm.ops, vm.done, gbase[0] = after
        a('L_next:')
        a(f's_add_u32 s50, s50, {DTH}')
    if latewarm is not None:
        l = lab('noflag')
        a(f's_cmp_eq_u32 s{sCnt}, {latewarm}\ns_cbranch_scc0 {l}')
        a(f'v_mov_b32 v1, {CNT}\nv_mov_b32 v2, 1\nds_write_b32 v1, v2 offset:20')
        a(f'{l}:')
    a(f's_sub_u32 s{sCnt}, s{sCnt}, 1\ns_cmp_lg_u32 s{sCnt}, 0\ns_cbranch_scc1 L_loop')
    for it in range(1, nit):
        for hb in order:
            t = gbase[0]
            for u in range(8): vm.add(('K', t), True)
            for u in range(8): vm.add(('V', t), True)
            gbase[0] += 1
    vm.done = len(vm.ops) - max(W, WHI or 0)
    assert gbase[0] == 14, gbase
    hB, hA = order
    wl = wo_load_list(R0, 6) + wo_load_list(R0 + 32, 7)
    kb = []; vb = []
    for u in range(8):
        kb.append(lambda u=u: issue('K', hB, u, 14, W)); kb.append(other(wl[u], 'wo6'))
    for u in range(8):
        vb.append(lambda u=u: issue('V', hB, u, 14, W)); vb.append(other(wl[8+u], 'wo7'))
    a.ext(tile(hB, 12, kblocks=kb, vblocks=vb, bump=True))
    a.ext(tile(hA, 13, kblocks=iss('K', hA, 15), vblocks=iss('V', hA, 15), bump=True))
    d8 = wo_dma_list(hB*16384, 8); d9 = wo_dma_list(hB*16384 + 8192, 9)
    def pretr():
        return vm.need('wo7') + transpose_inplace(R0, 1, 2) + transpose_inplace(R0 + 32, 1, 2)
    a.ext(tile(hB, 14, kblocks=[other(x, 'wo8') for x in d8], vblocks=[other(x, 'wo9') for x in d9], mid=pretr))
    offA = hA * 16384
    def ld10():
        o = []
        for x in wo_load_list(Q0, 10): vm.add('wo10'); o += x
        return o
    def prepub():
        o = [f'v_mov_b32 v1, v{vL}', 's_nop 1', f'v_permlane32_swap_b32 v1, v{vL}', 's_nop 1', f'v_add_f32 v{vL}, v{vL}, v1',
             'v_and_b32 v2, 31, v0', 'v_lshrrev_b32 v3, 5, v0',
             'v_lshlrev_b32 v4, 5, v2', f's_lshl_b32 s{sT}, s{sWave}, 2', f'v_add_u32 v4, s{sT}, v4', f'v_add_u32 v4, {ML}, v4',
             f'ds_write_b32 v4, v{vM}', f'ds_write_b32 v4, v{vL} offset:16',
             'v_lshlrev_b32 v4, 9, v2', f'v_add_u32 v4, s{sRing}, v4', 'v_and_b32 v5, 7, v2', 'v_xor_b32 v5, v5, v3']
        for j in range(4):
            o += [f'v_xor_b32 v6, {2*j}, v5', 'v_lshlrev_b32 v6, 4, v6', f'v_add_u32 v{T[j]}, v4, v6']
        return o + merge_addr(offA)
    a.ext(tile(hA, 15, after_qk=ld10, final=True, pre_v=prepub))
    stamp(3)
    for x in wo_load_list(KV0, 11): vm.add('wo11'); a.ext(x)
    for blk in range(4):
        for j in range(4):
            r = O0 + 16*blk + 4*j
            a(f'ds_write_b128 v{T[j]}, v[{r}:{r+3}] offset:{offA + 128*blk}')
    a('s_waitcnt lgkmcnt(0)')
    if LATE12 == 0:
        for x in wo_load_list(O0, 12): vm.add('wo12'); a.ext(x)
    if tailst: stamp(8)
    a('s_barrier')
    if tailst: stamp(9)
    merge_body()
    a('s_waitcnt lgkmcnt(0)')
    a('s_barrier')
    stamp(4)
    if LATE12 == 1:
        for x in wo_load_list(O0, 12): vm.add('wo12'); a.ext(x)
    if A13AT < 0:
        for x in wo_load_list(O0 + 32, 13): vm.add('wo13'); a.ext(x)
    aACC, aTB, aAF = 8, [40, 44], [48, 52]
    seq = [(6, R0), (7, R0 + 32), (10, Q0), (11, KV0), (8, R0), (9, R0 + 32), (12, O0), (13, O0 + 32)]
    a(f'ds_read_b128 v[{aAF[0]}:{aAF[0]+3}], v{vACT} offset:{64*6}')
    nl = 1
    for i, (s_, land) in enumerate(seq):
        a.ext(vm.need(f'wo{s_}'))
        if i in (1,):   a('s_waitcnt lgkmcnt(8)')
        elif i in (2,): a('s_waitcnt lgkmcnt(8)')
        else: a('s_waitcnt lgkmcnt(0)')
        if i + 1 < len(seq): a(f'ds_read_b128 v[{aAF[(i+1)&1]}:{aAF[(i+1)&1]+3}], v{vACT} offset:{64*seq[i+1][0]}')
        if s_ in (6, 7):
            for e in range(8):
                c = '0' if i == 0 else f'v[{aACC+4*e}:{aACC+4*e+3}]'
                a(f'v_mfma_f32_16x16x32_bf16 v[{aACC+4*e}:{aACC+4*e+3}], v[{aAF[i&1]}:{aAF[i&1]+3}], v[{land+4*e}:{land+4*e+3}], {c}')
            a.ext(vm.need(f'wo{s_+2}'))
            for j in range(8):
                a(f'ds_read_b128 v[{land+4*j}:{land+4*j+3}], v{vLIN} offset:{hB*16384 + (s_-6)*8192 + 1024*j}')
        else:
            a.ext(mm_block(land, aTB, [aAF[i & 1]], [aACC]))
        if i == A13AT:
            for x in wo_load_list(O0 + 32, 13): vm.add('wo13'); a.ext(x)
        if opst and i in (1, 3, 5, 6): stamp({1: 8, 3: 9, 5: 11, 6: 1}[i])
    a('s_nop 7')
    for e in range(8):
        a(f'ds_write_b128 v{vLIN}, v[{aACC+4*e}:{aACC+4*e+3}] offset:{offA + e*1024}')
    a('s_waitcnt lgkmcnt(0)')
    if tailst: stamp(10)
    a('s_barrier')
    if stamps: a('s_branch L_stamps')
    else: a('s_endpgm')

    a('L_pwave:')
    a('s_mov_b32 s3, 1')
    if AFIRST: a('s_barrier')
    if pprio: a('s_setprio 3')
    if x_noq: a('s_branch L_noq')
    sPW, sGQ, sHQ, sRot = sNW, 42, 43, 39
    a(f's_lshr_b32 s{sGQ}, s{sB}, 2\ns_and_b32 s{sHQ}, s{sB}, 3\ns_and_b32 s{sRot}, s{sGQ}, 3')
    SRD_W, SRD_X = 24, 28
    XF, TB, ACC, LAND = 12, [44, 48], 56, 120
    vW, vX = 8, 9
    a(f's_mov_b32 s{SRD_X}, s{sX}\ns_and_b32 s{SRD_X+1}, s{sX+1}, 0xffff\ns_mov_b32 s{SRD_X+2}, 262144\ns_mov_b32 s{SRD_X+3}, 0x20000')
    a(f'v_and_b32 v2, 15, v0\nv_lshrrev_b32 v3, 4, v0\nv_lshlrev_b32 v4, 10, v2\nv_lshlrev_b32 v5, 4, v3\nv_add_u32 v{vX}, v4, v5')
    if x_xcontig: a(f'v_lshlrev_b32 v{vX}, 4, v0')
    a(f'v_lshlrev_b32 v4, 16, v3\nv_lshlrev_b32 v5, 4, v2\nv_add_u32 v{vW}, v4, v5')
    a(f's_lshl_b32 s{sT}, s{sH}, 2\ns_add_u32 s{sT}, s{sT}, s{sHQ}\ns_lshl_b32 s{sT}, s{sT}, 8')
    a(f's_add_u32 s{SRD_W}, s{sWq}, s{sT}\ns_addc_u32 s{SRD_W+1}, s{sWq+1}, 0\ns_and_b32 s{SRD_W+1}, s{SRD_W+1}, 0xffff')
    a(f's_sub_u32 s{SRD_W+2}, 4194304, s{sT}\ns_mov_b32 s{SRD_W+3}, 0x20000')
    for sg in range(4): a(f's_add_u32 s{48+sg}, s{sRot}, {sg}\ns_and_b32 s{48+sg}, s{48+sg}, 3')
    a(f's_and_b32 s{sT}, s{sPW}, 1')
    a(f's_lshl_b32 s52, s{sGQ}, 15\ns_lshl_b32 s{sT2}, s{sT}, 14\ns_add_u32 s52, s52, s{sT2}\ns_lshl_b32 s{sT2}, s{sPW}, 8\ns_add_u32 s52, s52, s{sT2}')
    a(f's_xor_b32 s53, s52, 16384')
    if QPF:
        a(f'v_lshrrev_b32 v4, 4, v0\nv_lshlrev_b32 v4, 13, v4\nv_and_b32 v5, 15, v0\nv_lshlrev_b32 v5, 4, v5\nv_add_u32 v4, v4, v5')
        a(f's_lshl_b32 s{sT2}, s{sGQ}, 2\ns_add_u32 s{sT2}, s{sT2}, s{sPW}\ns_lshl_b32 s{sT2}, s{sT2}, 17')
        for i in range(4):
            a(f's_add_u32 s{sT}, s{sT2}, {i*4*8192}')
            a(f'buffer_load_dwordx4 v[{LAND+4*i}:{LAND+4*i+3}], v4, s[{SRD_W}:{SRD_W+3}], s{sT} offen {wqflags}')
        a('v_lshlrev_b32 v5, 4, v0')
        a(f's_lshl_b32 s{sT2}, s{sGQ}, 5\ns_lshl_b32 s{sT}, s{sHQ}, 3\ns_add_u32 s{sT2}, s{sT2}, s{sT}\ns_lshl_b32 s{sT}, s{sPW}, 1\ns_add_u32 s{sT2}, s{sT2}, s{sT}\ns_lshl_b32 s{sT2}, s{sT2}, 10')
        for i in range(2):
            a(f'buffer_load_dwordx4 v[{LAND+16+4*i}:{LAND+16+4*i+3}], v5, s[{SRD_X}:{SRD_X+3}], s{sT2} offen offset:{i*1024} {xflags}')
        a('s_waitcnt vmcnt(0)')
        if QPFSLEEP: a(f's_sleep {QPFSLEEP}')
    npl = [0]
    def pthrottle():
        if PWIN and npl[0] >= PWIN: a(f's_waitcnt vmcnt({PWIN-1})')
        npl[0] += 1
    if XDMA:
        a('v_lshrrev_b32 v2, 4, v0\nv_and_b32 v3, 15, v0\nv_xor_b32 v4, v2, v3\nv_lshlrev_b32 v5, 10, v2')
        for t in range(4):
            a(f'v_xor_b32 v6, {4*t}, v4\nv_lshlrev_b32 v6, 4, v6\nv_add_u32 v{248+t}, v5, v6')
        a(f's_lshl_b32 s52, s{sGQ}, 15\ns_lshl_b32 s{sT2}, s{sPW}, 8\ns_add_u32 s52, s52, s{sT2}')
        a(f's_lshl_b32 s53, s{sPW}, 15\ns_add_u32 s53, s53, 24576')
        for t in range(8):
            a(f's_add_u32 m0, s53, {1024*t}\ns_add_u32 s{sT}, s52, {4096*t}')
            a(f'buffer_load_dwordx4 v{248 + (t & 3)}, s[{SRD_X}:{SRD_X+3}], s{sT} offen {xflags} lds')
    else:
        for sg in range(4):
            for rho in range(2):
                r = XF + (rho*4 + sg)*4
                a(f's_lshl_b32 s{sT}, s{48+sg}, 6\ns_add_u32 s{sT}, s{sT}, s{52+rho}')
                pthrottle()
                if not x_noload: a(f'buffer_load_dwordx4 v[{r}:{r+3}], v{vX}, s[{SRD_X}:{SRD_X+3}], s{sT} offen {xflags}')
    for sg in range(4):
        a(f's_lshl_b32 s{sT2}, s{sPW}, 2\ns_add_u32 s{sT2}, s{sT2}, s{48+sg}\ns_lshl_b32 s{sT2}, s{sT2}, 18')
        for j in range(8):
            r = LAND + sg*32 + 4*j
            a(f's_add_u32 s{sT}, s{sT2}, {j*8192}')
            pthrottle()
            if x_halfw and sg >= 2: continue
            if not x_noload: a(f'buffer_load_dwordx4 v[{r}:{r+3}], v{vW}, s[{SRD_W}:{SRD_W+3}], s{sT} offen {wqflags}')
    if AGATE is not None:
        a(f'v_mov_b32 v6, {CNT}\nv_mov_b32 v7, 1'); lds_inc(24, 6, 7)
    if XDMA:
        a('v_and_b32 v2, 15, v0\nv_lshrrev_b32 v3, 4, v0')
        a('v_and_b32 v4, 3, v2\nv_xor_b32 v4, v4, v3\nv_lshlrev_b32 v4, 4, v4\nv_lshlrev_b32 v5, 8, v2\nv_add_u32 v4, v4, v5')
        a(f's_and_b32 s{sT}, s{sPW}, 1\ns_lshl_b32 s{sT}, s{sT}, 12\ns_add_u32 s{sT}, s{sT}, s53\nv_add_u32 v4, s{sT}, v4')
        a('v_lshrrev_b32 v5, 2, v2')
        for sg in range(4):
            a(f'v_xor_b32 v6, s{48+sg}, v5\nv_lshlrev_b32 v6, 6, v6\nv_add_u32 v{248+sg}, v4, v6')
    if stamps: a('s_memrealtime s[80:81]')
    if XDMA:
        a('s_waitcnt vmcnt(32)')
        for sg in range(4):
            r0 = XF + sg*4; r1 = XF + (4 + sg)*4
            a(f'ds_read_b128 v[{r0}:{r0+3}], v{248+sg}')
            a(f'v_xor_b32 v6, 4096, v{248+sg}\nds_read_b128 v[{r1}:{r1+3}], v6')
        a('s_waitcnt lgkmcnt(0)')
        a(f'v_mov_b32 v6, {CNT}\nv_mov_b32 v7, 1'); lds_inc(28, 6, 7)
    for sg in range(4):
        a(f's_waitcnt vmcnt({24 - 8*sg})')
        a.ext(mm_block(LAND + sg*32, TB, [XF + sg*4, XF + (4+sg)*4], [ACC, ACC + 32], first=(sg == 0)))
    if stamps: a('s_memrealtime s[82:83]')
    def region(dst, sTile, sK):
        a(f's_mul_i32 s{dst}, s{sTile}, 3\ns_add_u32 s{dst}, s{dst}, s{sK}')
        a(f's_lshl_b32 s{sT}, s{dst}, 15\ns_add_u32 s{sT}, s{sT}, 24576')
        a(f's_sub_u32 s{sT2}, s{dst}, 4\ns_lshl_b32 s{sT2}, s{sT2}, 13\ns_add_u32 s{sT2}, s{sT2}, 131072')
        a(f's_cmp_lt_u32 s{dst}, 4\ns_cselect_b32 s{dst}, s{sT}, s{sT2}')
    a(f's_sub_u32 s54, s{sPW}, 1\ns_cmp_lt_u32 s{sPW}, 2\ns_cselect_b32 s54, 0, s54')
    a(f's_and_b32 s55, s{sPW}, 1')
    a(f's_xor_b32 s56, s55, 1')
    if XDMA:
        a(f'v_mov_b32 v6, {CNT}')
        lds_spin(28, 4, 6, 5)
    region(57, 56, 54)
    a('v_lshlrev_b32 v1, 4, v0')
    a('v_add_u32 v2, s57, v1')
    for e in range(8):
        r = ACC + 32 + 4*e
        a(f'ds_write_b128 v2, v[{r}:{r+3}] offset:{e*1024}')
    lown = lab('owner')
    a(f's_cmp_lt_u32 s{sPW}, 2\ns_cbranch_scc1 {lown}')
    region(57, 55, 54)
    a('v_add_u32 v2, s57, v1')
    for e in range(8):
        r = ACC + 4*e
        a(f'ds_write_b128 v2, v[{r}:{r+3}] offset:{e*1024}')
    a(f'{lown}:')
    a(f's_waitcnt lgkmcnt(0)')
    a(f'v_mov_b32 v6, {CNT}\nv_mov_b32 v7, 1')
    lds_inc(0, 6, 7)
    lqwait = lab('qwait')
    a(f's_cmp_ge_u32 s{sPW}, 2\ns_cbranch_scc1 {lqwait}')
    RD = LAND
    for k in range(3):
        a(f's_mov_b32 s58, {k}')
        region(57, 55, 58)
        a(f'v_add_u32 v{2+k}, s57, v1')
    lds_spin(0, 4, 6, 5)
    for k in range(3):
        for e in range(8):
            r = RD + k*32 + 4*e
            a(f'ds_read_b128 v[{r}:{r+3}], v{2+k} offset:{e*1024}')
    a('v_and_b32 v8, 15, v0\nv_lshrrev_b32 v9, 4, v0')
    a('v_lshrrev_b32 v10, 1, v9\nv_lshlrev_b32 v10, 17, v10\nv_and_b32 v11, 1, v9\nv_lshlrev_b32 v11, 11, v11\nv_add_u32 v10, v10, v11\nv_lshlrev_b32 v11, 4, v8\nv_add_u32 v10, v10, v11')
    a(f's_lshl_b32 s{sT}, s{sGQ}, 2\ns_lshl_b32 s{sT2}, s55, 1\ns_add_u32 s{sT}, s{sT}, s{sT2}\ns_lshl_b32 s{sT}, s{sT}, 3\ns_add_u32 s{sT}, s{sT}, s{sH}\ns_lshl_b32 s{sT}, s{sT}, 14')
    a(f's_lshl_b32 s{sT2}, s{sHQ}, 12\ns_add_u32 s{sT}, s{sT}, s{sT2}')
    a(f's_add_u32 s58, s{sWs}, s{sT}\ns_addc_u32 s59, s{sWs+1}, 0')
    if WS_QX: a(f's_add_u32 s58, s58, {WS_QX}\ns_addc_u32 s59, s59, 0')
    a('s_waitcnt lgkmcnt(0)')
    lds_inc(4, 6, 7)
    for i in range(32): a(f'v_add_f32 v{ACC+i}, v{ACC+i}, v{RD+i}')
    for i in range(32): a(f'v_add_f32 v{RD+32+i}, v{RD+32+i}, v{RD+64+i}')
    for i in range(32): a(f'v_add_f32 v{ACC+i}, v{ACC+i}, v{RD+32+i}')
    get_nonce()
    for r in range(4):
        for hf in range(2):
            d = RD + 4*(2*r + hf)
            a(f'v_cvt_pk_bf16_f32 v{d}, v{ACC+4*(4*hf)+r}, v{ACC+4*(4*hf+1)+r}')
            a(f'v_cvt_pk_bf16_f32 v{d+1}, v{ACC+4*(4*hf+2)+r}, v{ACC+4*(4*hf+3)+r}')
            a(f'v_mov_b32 v{d+3}, s62')
            a.ext(make_granule(d))
            if not x_nost: a(f'global_store_dwordx4 v10, v[{d}:{d+3}], s[58:59] offset:{512*r + 256*hf} {qst}')
    if stamps: a('s_memrealtime s[86:87]')
    a('s_waitcnt vmcnt(0)')
    a(f'v_mov_b32 v6, {CNT}\nv_mov_b32 v7, 1')
    lds_inc(8, 6, 7)
    a(f'{lqwait}:')
    if stamps: a('s_memrealtime s[84:85]')
    a(f's_lshl_b32 s{sT}, s2, 14\ns_lshl_b32 s{sT2}, s{sPW}, 12\ns_add_u32 s{sT}, s{sT}, s{sT2}')
    a(f's_add_u32 s58, s{sWs}, s{sT}\ns_addc_u32 s59, s{sWs+1}, 0')
    if WS_QX: a(f's_add_u32 s58, s58, {WS_QX}\ns_addc_u32 s59, s59, 0')
    a('v_lshlrev_b32 v1, 4, v0')
    a(f'v_lshrrev_b32 v2, 5, v0\nv_and_b32 v3, 15, v0\nv_lshrrev_b32 v4, 4, v0\nv_and_b32 v4, 1, v4\nv_lshlrev_b32 v4, 3, v4\ns_lshl_b32 s{sT}, s{sPW}, 3\nv_add_u32 v2, s{sT}, v2')
    for t in range(4):
        a(f'v_add_u32 v5, {2*t}, v2\nv_and_b32 v6, 15, v5\nv_xor_b32 v6, v6, v3\nv_lshlrev_b32 v6, 4, v6\nv_lshlrev_b32 v5, 8, v5\nv_add_u32 v5, v5, v6\nv_add_u32 v5, v5, v4\nv_add_u32 v{32+t}, {QBUF}, v5')
    a(f'v_mov_b32 v6, {CNT}')
    lds_spin(8, 2, 6, 5)
    if QGATE is not None: lds_spin(24, 4, 6, 5)
    get_nonce()
    a(f's_mov_b32 s57, {SPIN_MAX}')
    lq = lab('qpoll'); lqd = lab('qdone')
    if x_nopoll: a(f's_branch {lqd}')
    if probe:
        lpb = lab('probe'); lpd = lab('probed')
        a(f'v_mov_b32 v24, {3*1024 + 1008}')
        a(f'{lpb}:')
        a(f'global_load_dwordx4 v[12:15], v24, s[58:59] {qld}\ns_waitcnt vmcnt(0)')
        a.ext(check_granule(12, 28, 29, True))
        a(f'v_cmp_ne_u32 vcc, 0, v28\ns_cbranch_vccz {lpd}')
        a(f's_sub_u32 s57, s57, 1\ns_cmp_eq_u32 s57, 0\ns_cbranch_scc1 {lpd}\ns_sleep {PSLEEP}\ns_branch {lpb}')
        a(f'{lpd}:')
    a(f'{lq}:')
    for t in range(4): a(f'global_load_dwordx4 v[{12+4*t}:{15+4*t}], v1, s[58:59] offset:{1024*t} {qld}')
    a('s_waitcnt vmcnt(0)')
    for t in range(4): a.ext(check_granule(12+4*t, 28, 29, t == 0))
    a(f'v_cmp_ne_u32 vcc, 0, v28\ns_cbranch_vccz {lqd}')
    a(f's_sub_u32 s57, s57, 1\ns_cmp_eq_u32 s57, 0\ns_cbranch_scc1 {lqd}\ns_sleep {QSLEEP}\ns_branch {lq}')
    a(f'{lqd}:')
    for t in range(4): a(f'ds_write_b64 v{32+t}, v[{12+4*t}:{13+4*t}]')
    if debug:
        a(f's_lshl_b32 s{sT}, s2, 13\ns_add_u32 s{sT}, s{sT}, {WS_QDUMP}')
        for t in range(4):
            a(f'v_add_u32 v5, {2*t}, v2\nv_lshlrev_b32 v5, 8, v5\nv_lshlrev_b32 v6, 4, v3\nv_add_u32 v5, v5, v6\nv_add_u32 v5, v5, v4\nv_add_u32 v5, s{sT}, v5')
            a(f'global_store_dwordx2 v5, v[{12+4*t}:{13+4*t}], s[{sWs}:{sWs+1}]')
    a('s_waitcnt lgkmcnt(0)')
    if x_noq: a('L_noq:')
    if pprio: a('s_setprio 0')
    stamp(1)
    a('s_barrier')
    stamp(2)
    HOLD = 56; PL = 12
    a(f's_lshl_b32 s{sT}, s{sH}, 19')
    a(f's_add_u32 s48, s{sWo}, s{sT}\ns_addc_u32 s49, s{sWo+1}, 0\ns_and_b32 s49, s49, 0xffff\ns_mov_b32 s50, 524288\ns_mov_b32 s51, 0x20000')
    a(f's_lshl_b32 s{sT2}, s{sB}, 4\ns_lshl_b32 s52, s{sPW}, 2\ns_add_u32 s{sT2}, s{sT2}, s52\ns_lshl_b32 s{sT2}, s{sT2}, 10')
    a('v_lshlrev_b32 v1, 4, v0')
    if latewarm is not None:
        l2 = lab('wdone')
        a(f's_cmp_ge_u32 s{sB}, {2*NHOLD}\ns_cbranch_scc1 {l2}')
        for i in range(4): a(f'buffer_load_dwordx4 v[{PL+4*i}:{PL+4*i+3}], v1, s[48:51], s{sT2} offen offset:{i*1024} nt')
        a(f'{l2}:')
    elif wosplit:
        l1 = lab('wdef'); l2 = lab('wdone')
        a(f's_cmp_ge_u32 s{sB}, {2*NHOLD}\ns_cbranch_scc1 {l1}')
        for i in range(4): a(f'buffer_load_dwordx4 v[{PL+4*i}:{PL+4*i+3}], v1, s[48:51], s{sT2} offen offset:{i*1024} nt')
        a(f's_branch {l2}\n{l1}:')
        for i in range(4): a(f'buffer_load_dwordx4 v[{PL+4*i}:{PL+4*i+3}], v1, s[48:51], s{sT2} offen offset:{i*1024}')
        a(f'{l2}:')
    else:
        for i in range(4):
            a(f'buffer_load_dwordx4 v[{PL+4*i}:{PL+4*i+3}], v1, s[48:51], s{sT2} offen offset:{i*1024} {woflags if warmflags is None else warmflags}')
    a('s_waitcnt vmcnt(0)')
    for s in range(NHOLD):
        for j, x in enumerate(wo_load_list(PL, s)):
            if plflags is not None: x = [y + ' ' + plflags if y.startswith('buffer_load') else y for y in x]
            a.ext(x)
            if (j + 1) % PTH == 0: a('s_waitcnt vmcnt(0)')
        a('s_waitcnt vmcnt(0)')
        for e in range(8):
            m = e >> 1; sel = SEL_LO + (e & 1)
            for p in range(4):
                a(f'v_perm_b32 v{HOLD+s*32+4*e+p}, v{PL+4*(2*p+1)+m}, v{PL+4*(2*p)+m}, s{sel}')
    if latewarm is not None:
        a(f'v_mov_b32 v6, {CNT}')
        lw = lab('wwait')
        a(f'{lw}:\ns_sleep 8\nds_read_b32 v5, v6 offset:20\ns_waitcnt lgkmcnt(0)\nv_readfirstlane_b32 s{sT}, v5\ns_cmp_ge_u32 s{sT}, 1\ns_cbranch_scc0 {lw}')
        a('v_lshlrev_b32 v1, 4, v0')
        a(f's_mul_i32 s52, s{sB}, 10\ns_mul_i32 s53, s{sPW}, 3')
        for i in range(3):
            a(f's_add_u32 s54, s53, {i}\ns_add_u32 s{sT}, s52, s54\ns_add_u32 s{sT}, s{sT}, {32*NHOLD}\ns_lshl_b32 s{sT}, s{sT}, 10\ns_cmp_lt_u32 s54, 10\ns_cselect_b32 s{sT}, s{sT}, 0x400000')
            a(f'buffer_load_dwordx4 v[{PL+4*i}:{PL+4*i+3}], v1, s[48:51], s{sT} offen {lateflags}')
        a('s_waitcnt vmcnt(0)')
    a.ext(merge_addr(hA * 16384))
    offA = hA * 16384
    a(f's_mov_b32 s{sC}, {hex(f2u(C_SCALE))}')
    stamp(3)
    a('s_barrier')
    if tailst: stamp(8)
    merge_body()
    a('s_waitcnt lgkmcnt(0)')
    if tailst: stamp(9)
    a('s_barrier')
    stamp(4)
    pACC = 12; pAF = [44, 48]; pTB = [52, 248]
    if debug: a('s_waitcnt vmcnt(0)')
    a(f'ds_read_b128 v[{pAF[0]}:{pAF[0]+3}], v{vACT}')
    order_s = [0, 1, 2, 3, 4, 5, 14, 15]
    for i, s in enumerate(order_s):
        a('s_waitcnt lgkmcnt(0)')
        if i + 1 < 8: a(f'ds_read_b128 v[{pAF[(i+1)&1]}:{pAF[(i+1)&1]+3}], v{vACT} offset:{64*order_s[i+1]}')
        if s < 6:
            for e in range(8):
                c = '0' if i == 0 else f'v[{pACC+4*e}:{pACC+4*e+3}]'
                a(f'v_mfma_f32_16x16x32_bf16 v[{pACC+4*e}:{pACC+4*e+3}], v[{pAF[i&1]}:{pAF[i&1]+3}], v[{HOLD+s*32+4*e}:{HOLD+s*32+4*e+3}], {c}')
            for k in range(2):
                if P14AT[k] == s:
                    for x in wo_load_list(HOLD + k*32, 14 + k): a.ext(x)
        else:
            if opst and s == 14: stamp(8)
            a(f's_waitcnt vmcnt({8 if s == 14 else 0})')
            if opst: stamp(9 if s == 14 else 11)
            a.ext(mm_block(HOLD + (s-14)*32, pTB, [pAF[i & 1]], [pACC]))
    a('v_and_b32 v2, 15, v0\nv_lshrrev_b32 v3, 4, v0\nv_and_b32 v3, 1, v3\nv_lshrrev_b32 v5, 5, v0')
    a('v_lshrrev_b32 v4, 3, v2\nv_lshlrev_b32 v4, 14, v4\nv_lshlrev_b32 v6, 9, v3\nv_add_u32 v4, v4, v6\nv_lshlrev_b32 v6, 8, v5\nv_add_u32 v4, v4, v6\nv_and_b32 v6, 7, v2\nv_lshlrev_b32 v6, 4, v6\nv_add_u32 v4, v4, v6')
    a(f's_lshl_b32 s{sT}, s{sB}, 3\ns_lshl_b32 s{sT2}, s{sNW}, 1\ns_add_u32 s{sT}, s{sT}, s{sT2}\ns_lshl_b32 s{sT}, s{sT}, 14\ns_lshl_b32 s{sT2}, s{sH}, 11\ns_add_u32 s{sT}, s{sT}, s{sT2}\ns_add_u32 s{sT}, s{sT}, {WS_MB}')
    a(f's_add_u32 s58, s{sWs}, s{sT}\ns_addc_u32 s59, s{sWs+1}, 0')
    a(f's_lshl_b32 s{sT}, s{sNW}, 15\nv_lshlrev_b32 v1, 4, v0\nv_add_u32 v1, s{sT}, v1')
    RA = 120; SM = 152; GR = 184; HH = 200
    for g in range(4): a(f'v_mov_b32 v{GR+4*g+3}, s62')
    a('v_lshrrev_b32 v8, 4, v0\nv_and_b32 v8, 1, v8\nv_lshrrev_b32 v9, 3, v0\nv_and_b32 v9, 1, v9\nv_and_b32 v10, 7, v0\nv_lshrrev_b32 v7, 5, v0')
    a('v_lshlrev_b32 v11, 10, v8\nv_lshlrev_b32 v6, 7, v9\nv_add_u32 v11, v11, v6\nv_lshlrev_b32 v6, 4, v10\nv_add_u32 v11, v11, v6\nv_lshlrev_b32 v6, 11, v7\nv_add_u32 v11, v11, v6')
    for t in range(1, 4): a(f'v_add_u32 v{208+t}, {4096*t}, v11')
    a(f's_lshl_b32 s{sT}, s2, 14\ns_lshl_b32 s{sT2}, s{sNW}, 8\ns_add_u32 s{sT}, s{sT}, s{sT2}\ns_add_u32 s{sT}, s{sT}, {WS_MB}')
    a(f's_add_u32 s56, s{sWs}, s{sT}\ns_addc_u32 s57, s{sWs+1}, 0')
    a(f's_lshl_b32 s{sT}, s{sB}, 3\ns_lshl_b32 s{sT2}, s{sNW}, 1\ns_add_u32 s{sT}, s{sT}, s{sT2}\ns_lshl_b32 s{sT}, s{sT}, 10\ns_lshl_b32 s{sT2}, s{sH}, 7\ns_add_u32 s{sT}, s{sT}, s{sT2}')
    a(f'v_lshlrev_b32 v212, 10, v9\nv_lshlrev_b32 v6, 4, v10\nv_add_u32 v212, v212, v6\nv_lshlrev_b32 v6, 3, v8\nv_add_u32 v212, v212, v6\nv_add_u32 v212, s{sT}, v212')
    a('s_mov_b32 s54, 0xffff0000')
    if tailst: stamp(10)
    a('s_barrier')
    stamp(5)
    for e in range(8): a(f'ds_read_b128 v[{RA+4*e}:{RA+4*e+3}], v1 offset:{offA + e*1024}')
    for hfw, wait in ((0, 4), (1, 0)):
        a(f's_waitcnt lgkmcnt({wait})')
        for e in range(4*hfw, 4*hfw + 4):
            for r in range(4):
                a(f'v_add_f32 v{SM+8*r+e}, v{pACC+4*e+r}, v{RA+4*e+r}')
        p = hfw
        for rs in range(2):
            g = GR + 4*(2*rs + p); h = HH + 2*(2*rs + p)
            for x in range(2):
                a(f'v_cvt_pk_bf16_f32 v{g+x}, v{SM+8*rs+4*p+2*x}, v{SM+8*rs+4*p+2*x+1}')
                a(f'v_cvt_pk_bf16_f32 v{h+x}, v{SM+8*(rs+2)+4*p+2*x}, v{SM+8*(rs+2)+4*p+2*x+1}')
    a('s_nop 1')
    for rs in range(2):
        for p in range(2):
            g = GR + 4*(2*rs + p); h = HH + 2*(2*rs + p)
            a(f'v_permlane32_swap_b32 v{g}, v{h}\nv_permlane32_swap_b32 v{g+1}, v{h+1}')
    for rs in range(2):
        for p in range(2):
            g = GR + 4*(2*rs + p)
            a.ext(make_granule(g))
            a(f'global_store_dwordx4 v4, v[{g}:{g+3}], s[58:59] offset:{p*1024 + rs*128} sc1')
    if tailst: stamp(11)
    a(f's_mov_b32 s55, {SPIN_MAX}')
    lp = lab('rpoll'); ld = lab('rdone')
    a(f'{lp}:')
    for t in range(4):
        va = 11 if t == 0 else 208 + t
        a(f'global_load_dwordx4 v[{12+4*t}:{15+4*t}], v{va}, s[56:57] sc1')
    a('s_waitcnt vmcnt(0)')
    for t in range(4): a.ext(check_granule(12+4*t, 44, 45, t == 0))
    a(f'v_cmp_ne_u32 vcc, 0, v44\ns_cbranch_vccz {ld}')
    a(f's_sub_u32 s55, s55, 1\ns_cmp_eq_u32 s55, 0\ns_cbranch_scc1 {ld}\n' + (f's_sleep {RSLEEP}\n' if RSLEEP else '') + f's_branch {lp}')
    a(f'{ld}:')
    if tailst: a(f's_sub_u32 s78, {SPIN_MAX}, s55')
    for t in range(4):
        g = 12 + 4*t
        d = 28 if t == 0 else 32
        a(f'v_lshlrev_b32 v{d}, 16, v{g}\nv_and_b32 v{d+1}, s54, v{g}\nv_lshlrev_b32 v{d+2}, 16, v{g+1}\nv_and_b32 v{d+3}, s54, v{g+1}')
        if t:
            for k in range(4): a(f'v_add_f32 v{28+k}, v{28+k}, v{32+k}')
    for k in range(4): a(f'v_mov_b32 v{32+k}, v{28+k}')
    a('s_nop 1')
    for k in range(4): a(f'v_permlane32_swap_b32 v{28+k}, v{32+k}')
    a('s_nop 0')
    for k in range(4): a(f'v_add_f32 v{28+k}, v{28+k}, v{32+k}')
    a('v_cvt_pk_bf16_f32 v28, v28, v29\nv_cvt_pk_bf16_f32 v29, v30, v31')
    a('s_mov_b32 exec_lo, -1\ns_mov_b32 exec_hi, 0')
    a(f'global_store_dwordx2 v212, v[28:29], s[{sOut}:{sOut+1}] {outfl}')
    a('s_mov_b64 exec, -1')
    if stamps:
        stamp(6)
        a('L_stamps:')
        a('s_waitcnt lgkmcnt(0)')
        a(f's_lshl_b32 s{sT}, s2, 3\ns_add_u32 s{sT}, s{sT}, s{sWave}\ns_lshl_b32 s{sT}, s{sT}, 6\ns_add_u32 s{sT}, s{sT}, {WS_STAMP}\nv_mov_b32 v3, s{sT}')
        a('s_mov_b32 exec_lo, 1\ns_mov_b32 exec_hi, 0')
        for q in range(3):
            regs = [64+2*(4*q+i) for i in range(4)]
            a('\n'.join(f'v_mov_b32 v{4+i}, s{regs[i]}' for i in range(4)))
            a(f'global_store_dwordx4 v3, v[4:7], s[{sWs}:{sWs+1}] offset:{16*q}\ns_nop 1')
    a('L_end:\ns_endpgm')
    a.raw('.section .rodata,"a"\n.p2align 6')
    a.raw(f'.amdhsa_kernel {K}')
    a.raw('  .amdhsa_next_free_vgpr 256\n  .amdhsa_next_free_sgpr 96\n  .amdhsa_accum_offset 256')
    a.raw('  .amdhsa_group_segment_fixed_size 0\n  .amdhsa_kernarg_size 64\n  .amdhsa_user_sgpr_count 2\n  .amdhsa_user_sgpr_kernarg_segment_ptr 1\n  .amdhsa_system_sgpr_workgroup_id_x 1')
    a.raw('.end_amdhsa_kernel')
    return a.text()

if __name__ == '__main__':
    kw = json.loads(sys.argv[2]) if len(sys.argv) > 2 else {}
    open(sys.argv[1], 'w').write(gen(**kw))
```

```python
import sys, json, struct
K = 'standalone__gqa_block_cached__sampling_kernel'

QBUF = 131072
ACT = 139264
ACT_STRIDE = 1056
ML = 147712
CNT = 148736
LDS_BYTES = 148800
WS_QX = 0
WS_MB = 0x400000
TAGK = 0x9E3779B9
WS_STAMP = 0xD00000
WS_QDUMP = 0x1000000
WS_ODUMP = 0x2000000
SPIN_MAX = 200000

C_SCALE = 0.08838834764831845 * 1.4426950408889634
def f2u(f): return struct.unpack('<I', struct.pack('<f', f))[0]

class Asm:
    def __init__(self): self.L = []
    def __call__(self, s):
        for line in s.split('\n'):
            line = line.strip()
            if line: self.L.append(('  ' + line) if not line.endswith(':') else line)
    def ext(self, lst):
        for s in lst: self(s)
    def raw(self, s): self.L.append(s)
    def text(self): return '\n'.join(self.L) + '\n'

def interleave(code, blocks, start=0, end=None):
    if end is None: end = len(code)
    n = len(blocks)
    out = list(code[:start])
    span = end - start
    pos = [start + (span * (i + 1)) // (n + 1) for i in range(n)] if n else []
    bi = 0
    for i in range(start, end):
        while bi < n and pos[bi] == i:
            out.extend(blocks[bi]()); bi += 1
        out.append(code[i])
    while bi < n:
        out.extend(blocks[bi]()); bi += 1
    out.extend(code[end:])
    return out

class VM:
    def __init__(self): self.ops = []; self.done = 0
    def add(self, tag, piece=False): self.ops.append((tag, piece))
    def _wait(self, idx):
        if idx < self.done: return []
        n = len(self.ops) - 1 - idx
        self.done = idx + 1
        assert n <= 63, n
        return [f's_waitcnt vmcnt({n})']
    def window(self, W):
        pcs = [i for i, (t, p) in enumerate(self.ops) if p]
        if len(pcs) < W: return []
        return self._wait(pcs[-W])
    def need(self, tag):
        idx = [i for i, (t, p) in enumerate(self.ops) if t == tag]
        assert idx, tag
        return self._wait(idx[-1])

sX, sKp, sVp, sWq, sWo, sOut, sDbg, sWs = 4, 6, 8, 10, 12, 14, 16, 18
sWave, sH, sB, sNW = 20, 21, 22, 23
sT, sT2, sC = 34, 38, 36
SEL_LO, SEL_HI = 40, 41

def gen(W=5, W0=None, layout='p1', flags='nt', debug=False, wqflags='', woflags='', stamps=False, pprio=True,
        PTH=2, QSLEEP=4, RSLEEP=2, AGATE=None, stage=True, QPF=False, QPFSLEEP=0, x_noq=False, x_nopoll=False, x_nost=False, x_noload=False, PWIN=None, xflags='', aprio=False, PDELAY=0, qst='sc1', qld='sc1', tailst=False, LATE12=0, opst=False, P14AT=(3, 5), A13AT=1, x_xcontig=False, x_halfw=False, AFIRST=0, WHI=None, THR0=1350, DTH=455, warmflags=None, wosplit=False, plflags=None, latewarm=None, lateflags='nt', probe=False, PSLEEP=2, QGATE=None, XDMA=True, outfl='', AORD=0, oprio=0, M13=True, loopst=False, WR=16, startst=False, WRMODE=1, PLDELAY=0):
    NHOLD = 6
    W0 = W0 or W
    a = Asm()
    uid = [0]
    def lab(n):
        uid[0] += 1
        return f'L_{n}_{uid[0]}'
    def lds_spin(off, target, vaddr, vtmp):
        l = lab('spin')
        a(f'{l}:')
        a(f'ds_read_b32 v{vtmp}, v{vaddr} offset:{off}\ns_waitcnt lgkmcnt(0)\nv_readfirstlane_b32 s{sT}, v{vtmp}\ns_cmp_ge_u32 s{sT}, {target}\ns_cbranch_scc0 {l}')
    def lds_inc(off, vaddr, vone):
        a(f's_mov_b32 exec_lo, 1\ns_mov_b32 exec_hi, 0\nds_add_u32 v{vaddr}, v{vone} offset:{off}\ns_mov_b64 exec, -1')
    def get_nonce():
        pass
    def make_granule(g):
        return [f'v_xor_b32 v{g+2}, v{g}, v{g+1}', f'v_xor_b32 v{g+2}, s61, v{g+2}']
    def check_granule(g, bad, tmp, first):
        o = [f'v_xor_b32 v{tmp}, v{g}, v{g+1}', f'v_xor_b32 v{tmp}, v{tmp}, v{g+2}', f'v_xor_b32 v{tmp}, v{tmp}, v{g+3}', f'v_xor_b32 v{tmp}, {hex(TAGK)}, v{tmp}',
             f'v_subrev_u32 v{tmp+1}, s60, v{g+3}', f'v_lshrrev_b32 v{tmp+1}, 12, v{tmp+1}']
        o.append(f'v_or_b32 v{bad}, v{tmp}, v{tmp+1}' if first else f'v_or3_b32 v{bad}, v{bad}, v{tmp}, v{tmp+1}')
        return o
    def stamp(i):
        if stamps: a(f's_memrealtime s[{64+2*i}:{65+2*i}]')

    vK = list(range(8, 16)); vV = list(range(16, 20)); vDK = list(range(20, 24)); vDV = 24
    vM, vL, vNM, vAl = 25, 26, 27, 28
    T = list(range(29, 36))
    P0, S0, Q0, KV0, O0, R0 = 36, 44, 60, 92, 124, 188
    vWO = 252; vACT = 253
    SRD_K, SRD_V, SRD_WO = 24, 28, 44
    sRing, sG, sCnt = 32, 33, 35
    if layout == 'p1':   Bu = lambda u: 4096 * u;  Cw = 1024
    elif layout == 'p2': Bu = lambda u: 8192 * (u >> 1) + 1024 * (u & 1); Cw = 2048
    elif layout == 'p4': Bu = lambda u: 16384 * (u >> 2) + 1024 * (u & 3); Cw = 4096
    elif layout == 'p8': Bu = lambda u: 1024 * u; Cw = 8192

    a.raw(f'; @launch grid=(256,1,1) block=(512,1,1) lds={LDS_BYTES}')
    a.raw('.amdgcn_target "amdgcn-amd-amdhsa--gfx950"')
    a.raw('.text')
    a.raw(f'.globl {K}\n.p2align 8\n.type {K},@function\n{K}:')
    a('s_cmp_ge_u32 s2, 256\ns_cbranch_scc1 L_end')
    a('s_load_dwordx16 s[4:19], s[0:1], 0')
    a('s_memrealtime s[62:63]')
    stamp(0)
    a(f'v_mov_b32 v2, {CNT}\nv_mov_b32 v3, 0')
    for o in range(0, 32, 4): a(f'ds_write_b32 v2, v3 offset:{o}')
    a('v_lshrrev_b32 v1, 6, v0\nv_and_b32 v0, 63, v0')
    a(f'v_readfirstlane_b32 s{sWave}, v1')
    a(f's_and_b32 s{sH}, s2, 7\ns_lshr_b32 s{sB}, s2, 3')
    a(f's_mov_b32 s{SEL_LO}, 0x05040100\ns_mov_b32 s{SEL_HI}, 0x07060302')
    a(f'v_lshrrev_b32 v2, 4, v0\nv_and_b32 v3, 15, v0\nv_lshlrev_b32 v2, 13, v2\nv_lshlrev_b32 v4, 4, v3\nv_add_u32 v{vWO}, v2, v4')
    a(f'v_and_b32 v2, 7, v0\nv_mul_u32_u24 v2, {ACT_STRIDE}, v2\nv_lshrrev_b32 v3, 4, v0\nv_lshlrev_b32 v3, 4, v3\nv_add_u32 v2, v2, v3\nv_add_u32 v{vACT}, {ACT}, v2')
    a(f's_and_b32 s{sNW}, s{sWave}, 3')
    a('s_waitcnt lgkmcnt(0)')
    a(f's_sub_u32 s60, s62, 2048\ns_xor_b32 s61, s62, {hex(TAGK)}')
    a(f's_lshl_b32 s{sT}, s{sH}, 19\ns_lshl_b32 s{sT2}, s{sNW}, 8\ns_add_u32 s{sT}, s{sT}, s{sT2}')
    a(f's_add_u32 s{SRD_WO}, s{sWo}, s{sT}\ns_addc_u32 s{SRD_WO+1}, s{sWo+1}, 0\ns_and_b32 s{SRD_WO+1}, s{SRD_WO+1}, 0xffff')
    a(f's_sub_u32 s{SRD_WO+2}, 524288, s{sT2}\ns_mov_b32 s{SRD_WO+3}, 0x20000')
    if not AFIRST: a('s_barrier')
    a(f's_cmp_ge_u32 s{sWave}, 4\ns_cbranch_scc1 L_pwave')

    def perms(land, e, tb):
        m = e >> 1; sel = SEL_LO + (e & 1); t = tb[e % 2]
        return [f'v_perm_b32 v{t+p}, v{land+4*(2*p+1)+m}, v{land+4*(2*p)+m}, s{sel}' for p in range(4)]
    def mm_block(land, tb, afs, accs, first=False):
        o = perms(land, 0, tb) + perms(land, 1, tb)
        for e in range(8):
            t = tb[e % 2]
            if e == 7 and len(afs) == 1: o.append('s_nop 0')
            for af, acc in zip(afs, accs):
                c = '0' if first else f'v[{acc+4*e}:{acc+4*e+3}]'
                o.append(f'v_mfma_f32_16x16x32_bf16 v[{acc+4*e}:{acc+4*e+3}], v[{af}:{af+3}], v[{t}:{t+3}], {c}')
            if e + 2 < 8: o += perms(land, e + 2, tb)
        return o
    def transpose_inplace(b, t0, t1):
        o = []
        P_ = lambda d, hi_, lo_, x: f'v_perm_b32 v{d}, v{hi_}, v{lo_}, s{SEL_LO + x}'
        for p in range(4):
            o += [P_(t0, b+8*p+4+p, b+8*p+p, 0), P_(b+8*p+4+p, b+8*p+4+p, b+8*p+p, 1), f'v_mov_b32 v{b+8*p+p}, v{t0}']
        for p in range(4):
            for m in range(p + 1, 4):
                o += [P_(t0, b+8*p+4+m, b+8*p+m, 0), P_(t1, b+8*p+4+m, b+8*p+m, 1),
                      P_(b+8*p+m, b+8*m+4+p, b+8*m+p, 0), P_(b+8*p+4+m, b+8*m+4+p, b+8*m+p, 1),
                      f'v_mov_b32 v{b+8*m+p}, v{t0}', f'v_mov_b32 v{b+8*m+4+p}, v{t1}']
        return o
    vMa, vMb, vMc, vMd = 52, 53, 54, 55
    def merge_addr(offA):
        o = [f's_lshl_b32 s{sT}, s{sWave}, 6', f'v_add_u32 v1, s{sT}, v0', 'v_lshrrev_b32 v2, 4, v1', 'v_and_b32 v3, 15, v1',
             f'v_lshlrev_b32 v{vMa}, 5, v2', f'v_add_u32 v{vMa}, {ML}, v{vMa}',
             'v_and_b32 v5, 7, v2', 'v_xor_b32 v5, v5, v3', 'v_lshlrev_b32 v5, 4, v5', 'v_lshlrev_b32 v6, 9, v2', 'v_add_u32 v5, v5, v6', f'v_add_u32 v{vMb}, {offA}, v5',
             f'v_add_u32 v{vMc}, 65536, v{vMb}',
             'v_and_b32 v4, 7, v2', f'v_mul_u32_u24 v4, {ACT_STRIDE}, v4', 'v_lshrrev_b32 v5, 3, v2', 'v_lshlrev_b32 v5, 8, v5', 'v_add_u32 v4, v4, v5', 'v_lshlrev_b32 v5, 3, v3', 'v_add_u32 v4, v4, v5', f'v_add_u32 v{vMd}, {ACT}, v4']
        return o
    def merge_body(hook=None):
        a(f'ds_read_b128 v[8:11], v{vMa}\nds_read_b128 v[12:15], v{vMa} offset:16')
        for w in range(4):
            for half in range(2):
                r = 16 + (w*2 + half)*4
                a(f'ds_read_b128 v[{r}:{r+3}], v{vMb if w < 2 else vMc} offset:{(w&1)*32768 + 256*half}')
        if hook is not None: hook()
        a('s_waitcnt lgkmcnt(8)')
        a('v_max3_f32 v48, v8, v9, v10\nv_max_f32 v48, v48, v11')
        for w in range(4): a(f'v_sub_f32 v{8+w}, v{8+w}, v48')
        for w in range(4): a(f'v_mul_f32 v{8+w}, s{sC}, v{8+w}')
        for w in range(4): a(f'v_exp_f32 v{8+w}, v{8+w}')
        a('s_nop 0')
        a('v_mul_f32 v48, v8, v12\nv_fmac_f32 v48, v9, v13\nv_fmac_f32 v48, v10, v14\nv_fmac_f32 v48, v11, v15')
        a('v_rcp_f32 v48, v48\ns_nop 0')
        for w in range(4): a(f'v_mul_f32 v{8+w}, v{8+w}, v48')
        a('s_waitcnt lgkmcnt(0)')
        for half in range(2):
            for i in range(4): a(f'v_mul_f32 v{16+half*4+i}, v8, v{16+half*4+i}')
        for w in range(1, 4):
            for half in range(2):
                for i in range(4): a(f'v_fmac_f32 v{16+half*4+i}, v{8+w}, v{16+(w*2+half)*4+i}')
        a('v_cvt_pk_bf16_f32 v48, v16, v17\nv_cvt_pk_bf16_f32 v49, v18, v19\nv_cvt_pk_bf16_f32 v50, v20, v21\nv_cvt_pk_bf16_f32 v51, v22, v23')
        a(f'ds_write_b64 v{vMd}, v[48:49]\nds_write_b64 v{vMd}, v[50:51] offset:128')
        if debug:
            a(f's_lshl_b32 s{sT}, s{sWave}, 6\nv_add_u32 v1, s{sT}, v0\nv_lshrrev_b32 v2, 4, v1\nv_and_b32 v3, 15, v1')
            a(f'v_and_b32 v4, 7, v2\nv_lshlrev_b32 v4, 13, v4\nv_lshrrev_b32 v5, 3, v2\nv_lshlrev_b32 v5, 8, v5\nv_add_u32 v4, v4, v5\nv_lshlrev_b32 v5, 3, v3\nv_add_u32 v4, v4, v5')
            a(f's_lshl_b32 s{sT}, s{sB}, 16\ns_lshl_b32 s{sT2}, s{sH}, 10\ns_add_u32 s{sT}, s{sT}, s{sT2}\ns_add_u32 s{sT}, s{sT}, {WS_ODUMP}\nv_add_u32 v4, s{sT}, v4')
            a(f'global_store_dwordx2 v4, v[48:49], s[{sWs}:{sWs+1}]\nglobal_store_dwordx2 v4, v[50:51], s[{sWs}:{sWs+1}] offset:128')
            a('s_waitcnt vmcnt(0)')
    def wo_load_list(land, s):
        o = []
        for j in range(8):
            r = land + 4*j
            o.append([f's_mov_b32 s{sT}, {s*32768 + (j//4)*4096}',
                      f'buffer_load_dwordx4 v[{r}:{r+3}], v{vWO}, s[{SRD_WO}:{SRD_WO+3}], s{sT} offen offset:{(j%4)*1024} {woflags}'])
        return o
    def wo_dma_list(ldsoff, s):
        o = []
        for j in range(8):
            o.append([f's_add_u32 m0, s{sRing}, {ldsoff + j*1024}', f's_mov_b32 s{sT}, {s*32768 + j*1024}',
                      f'buffer_load_dwordx4 v{vWO}, s[{SRD_WO}:{SRD_WO+3}], s{sT} offen {woflags} lds'])
        return o

    a('s_mov_b32 s3, 0')
    if aprio: a('s_setprio 3')
    a(f's_lshl_b32 s{sT}, s2, 19')
    for srd, p in ((SRD_K, sKp), (SRD_V, sVp)):
        a(f's_add_u32 s{srd}, s{p}, s{sT}\ns_addc_u32 s{srd+1}, s{p+1}, 0\ns_and_b32 s{srd+1}, s{srd+1}, 0xffff')
        a(f's_mov_b32 s{srd+2}, 524288\ns_mov_b32 s{srd+3}, 0x20000')
    a(f's_lshl_b32 s{sRing}, s{sWave}, 15')
    a(f's_mul_i32 s{sG}, s{sWave}, {Cw}')
    a(f's_mov_b32 s{sC}, {hex(f2u(C_SCALE))}')
    a('v_lshrrev_b32 v1, 4, v0\nv_and_b32 v2, 15, v0')
    a('v_lshlrev_b32 v3, 8, v1')
    a('v_xor_b32 v4, v2, v1')
    for u in range(4):
        a(f'v_xor_b32 v5, {4*u}, v4\nv_lshlrev_b32 v5, 4, v5\nv_add_u32 v{vDK[u]}, v3, v5')
    a(f'v_lshlrev_b32 v5, 2, v1\nv_xor_b32 v5, v5, v2\nv_lshlrev_b32 v5, 4, v5\nv_add_u32 v{vDV}, v3, v5')

    vm = VM()
    force = [False]
    gbase = [0]
    def issue(kv, hb, u, tile, win, toreg=None):
        o = vm.window(win) if win else []
        if force[0] and not o: o = [f's_waitcnt vmcnt({win-1})']
        if force[0]: assert o == [f's_waitcnt vmcnt({win-1})'], o
        goff = (tile - gbase[0]) * 32768 + Bu(u)
        vd = vDK[u & 3] if kv == 'K' else vDV
        srd = SRD_K if kv == 'K' else SRD_V
        if toreg is None:
            o.append(f's_add_u32 m0, s{sRing}, {hb*16384 + (8192 if kv=="V" else 0) + 1024*u}')
            o.append(f's_add_u32 s{sT}, s{sG}, {goff}')
            o.append(f'buffer_load_dwordx4 v{vd}, s[{srd}:{srd+3}], s{sT} offen {flags} lds')
        else:
            o.append(f's_add_u32 s{sT}, s{sG}, {goff}')
            o.append(f'buffer_load_dwordx4 v[{toreg}:{toreg+3}], v{vd}, s[{srd}:{srd+3}], s{sT} offen {flags}')
        vm.add((kv, tile), True)
        return o
    def other(lst, tag):
        def f():
            vm.add(tag, False)
            return list(lst)
        return f

    npro = [0]
    def pro(kv, hb, tile, toreg=None, us=range(8)):
        for u in us:
            if AGATE is not None and npro[0] == AGATE:
                a(f'v_mov_b32 v6, {CNT}'); lds_spin(24, 4, 6, 7)
            a.ext(issue(kv, hb, u, tile, W0, None if toreg is None else toreg + 4*u)); npro[0] += 1
            if QGATE is not None and npro[0] == QGATE:
                a(f'v_mov_b32 v6, {CNT}\nv_mov_b32 v7, 1'); lds_inc(24, 6, 7)
    if AFIRST:
        for u in range(AFIRST):
            pro('K', 0, 0, us=[u]); pro('V', 0, 0, us=[u])
        a('s_barrier')
        pro('K', 0, 0, us=range(AFIRST, 8))
    else:
        pro('K', 0, 0)
    a('v_and_b32 v1, 31, v0\nv_lshrrev_b32 v2, 5, v0')
    a('v_and_b32 v3, 15, v1\nv_xor_b32 v3, v3, v2')
    a(f'v_lshlrev_b32 v4, 8, v1\nv_add_u32 v4, s{sRing}, v4')
    for s in range(8):
        a(f'v_xor_b32 v5, {2*s}, v3\nv_lshlrev_b32 v5, 4, v5\nv_add_u32 v{vK[s]}, v4, v5')
    a('v_lshrrev_b32 v1, 4, v0')
    a('v_lshrrev_b32 v2, 2, v0\nv_and_b32 v2, 3, v2')
    a('v_and_b32 v3, 3, v0')
    a('v_lshrrev_b32 v4, 1, v1\nv_lshlrev_b32 v4, 2, v4\nv_add_u32 v4, v4, v2\nv_lshlrev_b32 v4, 8, v4')
    a('v_and_b32 v5, 1, v1\nv_lshlrev_b32 v5, 5, v5\nv_add_u32 v4, v4, v5')
    a('v_lshlrev_b32 v5, 3, v3\nv_add_u32 v4, v4, v5')
    a(f'v_add_u32 v4, s{sRing}, v4\nv_add_u32 v4, 8192, v4')
    for blk in range(4):
        a(f'v_xor_b32 v5, {blk}, v2\nv_lshlrev_b32 v5, 6, v5\nv_add_u32 v{vV[blk]}, v4, v5')
    a(f'v_mov_b32 v{vM}, 0xff800000\nv_mov_b32 v{vL}, 0')
    for r in range(64): a(f'v_mov_b32 v{O0+r}, 0')
    vLIN = 254
    a(f'v_lshlrev_b32 v{vLIN}, 4, v0\nv_add_u32 v{vLIN}, s{sRing}, v{vLIN}')
    pro('V', 0, 0, us=range(AFIRST, 8))
    if not (loopst or startst): stamp(8)
    pro('K', 1, 1)
    if not (loopst or startst): stamp(9)
    if stage:
        pro('K', 0, 2, toreg=R0)
        if not (loopst or startst): stamp(10)
        pro('V', 0, 2, toreg=R0 + 32)
        if not (loopst or startst): stamp(11)
    a(f'v_mov_b32 v6, {CNT}')
    if not x_noq: lds_spin(4, 2, 6, 7)
    pro('V', 1, 1)
    if not loopst: stamp(1)
    if aprio: a('s_setprio 0')
    a('s_barrier')
    if not loopst: stamp(2)
    a(f's_sub_u32 s{sT}, {QBUF}, s{sRing}')
    for s in range(8):
        a(f'v_add_u32 v1, s{sT}, v{vK[s]}\nds_read_b128 v[{Q0+4*s}:{Q0+4*s+3}], v1')
    a('s_waitcnt lgkmcnt(0)')

    def tile(hb, tidx, kblocks=(), vblocks=(), after_k=None, after_v=None, after_qk=None, inloop=False, final=False, bump=False, pre_v=None, mid=None, kfront=False):
        c = []
        off = hb * 16384
        if not inloop: c += vm.need(('K', tidx))
        for s in range(8):
            c.append(f'ds_read_b128 v[{KV0+4*s}:{KV0+4*s+3}], v{vK[s]} offset:{off}')
        c.append('s_waitcnt lgkmcnt(4)')
        for s in range(8):
            if s == 4: c.append('s_waitcnt lgkmcnt(0)')
            srcc = '0' if s == 0 else f'v[{S0}:{S0+15}]'
            c.append(f'v_mfma_f32_32x32x16_bf16 v[{S0}:{S0+15}], v[{KV0+4*s}:{KV0+4*s+3}], v[{Q0+4*s}:{Q0+4*s+3}], {srcc}')
        vreads = []
        for s2 in range(2):
            for blk in range(4):
                for half in range(2):
                    r = KV0 + (s2*4 + blk)*4 + 2*half
                    vreads.append(f'ds_read_b64_tr_b16 v[{r}:{r+1}], v{vV[blk]} offset:{off + s2*4096 + half*2048}')
        nw = 0
        if after_k is not None:
            x = after_k(); c += x; nw += len(x)
        if after_qk is not None:
            x = after_qk(); c += x; nw += len(x)
        if not final:
            if not inloop: c += vm.need(('V', tidx))
            c.extend(vreads); nw += 16
        if nw < 12: c.append(f's_nop {min(7, 11 - nw)}'); nw += min(8, 12 - nw)
        if nw < 12: c.append(f's_nop {11 - nw}')
        sm = []
        S = lambda k: S0 + k
        sm.append(f'v_max3_f32 v{T[0]}, v{S(0)}, v{S(1)}, v{S(2)}')
        sm.append(f'v_max3_f32 v{T[1]}, v{S(3)}, v{S(4)}, v{S(5)}')
        sm.append(f'v_max3_f32 v{T[2]}, v{S(6)}, v{S(7)}, v{S(8)}')
        sm.append(f'v_max3_f32 v{T[3]}, v{S(9)}, v{S(10)}, v{S(11)}')
        sm.append(f'v_max3_f32 v{T[4]}, v{S(12)}, v{S(13)}, v{S(14)}')
        sm.append(f'v_max3_f32 v{T[0]}, v{T[0]}, v{T[1]}, v{S(15)}')
        sm.append(f'v_max3_f32 v{T[2]}, v{T[2]}, v{T[3]}, v{T[4]}')
        sm.append(f'v_max_f32 v{T[0]}, v{T[0]}, v{T[2]}')
        sm.append(f'v_mov_b32 v{T[1]}, v{T[0]}')
        sm.append('s_nop 1')
        sm.append(f'v_permlane32_swap_b32 v{T[0]}, v{T[1]}')
        sm.append(f's_nop 1')
        sm.append(f'v_max3_f32 v{T[0]}, v{T[0]}, v{T[1]}, v{vM}')
        sm.append(f'v_mul_f32 v{vNM}, s{sC}, v{T[0]}')
        sm.append(f'v_fma_f32 v{vAl}, v{vM}, s{sC}, -v{vNM}')
        sm.append(f'v_mov_b32 v{vM}, v{T[0]}')
        sm.append(f'v_exp_f32 v{vAl}, v{vAl}')
        for k in range(16): sm.append(f'v_fma_f32 v{S(k)}, v{S(k)}, s{sC}, -v{vNM}')
        for k in range(16): sm.append(f'v_exp_f32 v{S(k)}, v{S(k)}')
        sm.append(f'v_mul_f32 v{vL}, v{vL}, v{vAl}')
        for k in range(4): sm.append(f'v_add_f32 v{T[k]}, v{S(k)}, v{S(k+4)}')
        for k in range(4): sm.append(f'v_add_f32 v{T[k]}, v{T[k]}, v{S(k+8)}')
        for k in range(4): sm.append(f'v_add_f32 v{T[k]}, v{T[k]}, v{S(k+12)}')
        sm.append(f'v_add_f32 v{T[0]}, v{T[0]}, v{T[1]}')
        sm.append(f'v_add_f32 v{T[2]}, v{T[2]}, v{T[3]}')
        for k in range(8): sm.append(f'v_cvt_pk_bf16_f32 v{P0+k}, v{S(2*k)}, v{S(2*k+1)}')
        sm.append(f'v_add_f32 v{vL}, v{vL}, v{T[0]}')
        sm.append(f'v_add_f32 v{vL}, v{vL}, v{T[2]}')
        for r in range(64): sm.append(f'v_mul_f32 v{O0+r}, v{O0+r}, v{vAl}')
        if kfront:
            for b in kblocks: c.extend(b())
            c.extend(sm)
        else:
            c.extend(interleave(sm, list(kblocks)))
        if mid is not None: c += mid()
        if pre_v is not None: c += pre_v()
        if final:
            c += vm.need(('V', tidx))
            c.extend(vreads)
        c.append('s_waitcnt lgkmcnt(0)')
        if after_v is not None: c += after_v()
        pv = []
        for s2 in range(2):
            for blk in range(4):
                r = KV0 + (s2*4 + blk)*4
                pv.append(f'v_mfma_f32_32x32x16_bf16 v[{O0+16*blk}:{O0+16*blk+15}], v[{r}:{r+3}], v[{P0+4*s2}:{P0+4*s2+3}], v[{O0+16*blk}:{O0+16*blk+15}]')
        vb = list(vblocks)
        per = -(-len(vb) // 8) if vb else 0
        for i in range(8):
            c.append(pv[i])
            for b in vb[i*per:(i+1)*per]: c.extend(b())
        if bump:
            c.append(f's_add_u32 s{sG}, s{sG}, 32768'); gbase[0] += 1
        return c
    def iss(kv, hb, tile_): return [(lambda u=u: issue(kv, hb, u, tile_, W)) for u in range(8)]

    if stage:
        def wrK():
            return vm.need(('K', 2)) + [f'ds_write_b128 v{vLIN}, v[{R0+4*u}:{R0+4*u+3}] offset:{16384 + 1024*u}' for u in range(8)]
        def wrV():
            return vm.need(('V', 2)) + [f'ds_write_b128 v{vLIN}, v[{R0+32+4*u}:{R0+32+4*u+3}] offset:{16384 + 8192 + 1024*u}' for u in range(8)]
        if WR:
            issr = lambda kv: [(lambda u=u: issue(kv, 0, u, 3, WR)) for u in range(8)]
            if startst: a('s_memrealtime s[80:81]\ns_waitcnt lgkmcnt(0)')
            if WRMODE == 0:
                a.ext(tile(0, 0, kblocks=issr('K'), vblocks=issr('V'), kfront=True))
            else:
                a.ext(tile(0, 0, kblocks=issr('K'), kfront=True))
            if startst: a('s_memrealtime s[82:83]\ns_waitcnt lgkmcnt(0)')
            if WRMODE == 0:
                a.ext(tile(1, 1, after_k=wrK, after_v=wrV))
            elif WRMODE == 1:
                a.ext(tile(1, 1, kblocks=issr('V'), kfront=True, after_k=wrK, after_v=wrV))
            else:
                a.ext(tile(1, 1, kblocks=issr('V'), after_k=wrK, after_v=wrV))
            if startst: a('s_memrealtime s[84:85]\ns_waitcnt lgkmcnt(0)')
        else:
            a.ext(tile(0, 0, kblocks=iss('K', 0, 3)))
            a.ext(tile(1, 1, kblocks=iss('V', 0, 3), after_k=wrK, after_v=wrV))
        a(f's_add_u32 s{sG}, s{sG}, {4*32768}'); gbase[0] = 4
        first_loop, nit, order = 2, 5, (1, 0)
    else:
        a(f's_add_u32 s{sG}, s{sG}, {2*32768}'); gbase[0] = 2
        first_loop, nit, order = 0, 6, (0, 1)
    a(f's_mov_b32 s{sCnt}, {nit}')
    if WHI: a(f's_mov_b32 s50, {THR0}')
    a('L_loop:')
    if loopst:
        a('s_mov_b32 s86, s84\ns_mov_b32 s84, s82\ns_mov_b32 s82, s80\ns_mov_b32 s80, s66\ns_memrealtime s[66:67]\ns_waitcnt lgkmcnt(0)')
    if WHI:
        a('s_memrealtime s[48:49]\ns_waitcnt lgkmcnt(0)\ns_sub_u32 s48, s48, s62\ns_cmp_gt_u32 s48, s50\ns_cbranch_scc1 L_fast')
    force[0] = True
    snap = (list(vm.ops), vm.done, gbase[0])
    for hb in order:
        t = gbase[0]
        a.ext(tile(hb, None, kblocks=iss('K', hb, t), vblocks=iss('V', hb, t), inloop=True, bump=True))
    force[0] = False
    if WHI:
        a('s_branch L_next')
        a('L_fast:')
        after = (list(vm.ops), vm.done, gbase[0])
        vm.ops, vm.done, gbase[0] = list(snap[0]), snap[1], snap[2]
        def issue_hi(kv, hb, u, tile_):
            o = [f's_waitcnt vmcnt({WHI-1})']
            goff = (tile_ - gbase[0]) * 32768 + Bu(u)
            vd = vDK[u & 3] if kv == 'K' else vDV
            srd = SRD_K if kv == 'K' else SRD_V
            o.append(f's_add_u32 m0, s{sRing}, {hb*16384 + (8192 if kv=="V" else 0) + 1024*u}')
            o.append(f's_add_u32 s{sT}, s{sG}, {goff}')
            o.append(f'buffer_load_dwordx4 v{vd}, s[{srd}:{srd+3}], s{sT} offen {flags} lds')
            return o
        for hb in order:
            t = gbase[0]
            a.ext(tile(hb, None, kblocks=[(lambda u=u, hb=hb, t=t: issue_hi('K', hb, u, t)) for u in range(8)],
                       vblocks=[(lambda u=u, hb=hb, t=t: issue_hi('V', hb, u, t)) for u in range(8)], inloop=True, bump=True))
        vm.ops, vm.done, gbase[0] = after
        a('L_next:')
        a(f's_add_u32 s50, s50, {DTH}')
    if latewarm is not None:
        l = lab('noflag')
        a(f's_cmp_eq_u32 s{sCnt}, {latewarm}\ns_cbranch_scc0 {l}')
        a(f'v_mov_b32 v1, {CNT}\nv_mov_b32 v2, 1\nds_write_b32 v1, v2 offset:20')
        a(f'{l}:')
    a(f's_sub_u32 s{sCnt}, s{sCnt}, 1\ns_cmp_lg_u32 s{sCnt}, 0\ns_cbranch_scc1 L_loop')
    if loopst: a('s_memrealtime s[68:69]\ns_waitcnt lgkmcnt(0)')
    for it in range(1, nit):
        for hb in order:
            t = gbase[0]
            for u in range(8): vm.add(('K', t), True)
            for u in range(8): vm.add(('V', t), True)
            gbase[0] += 1
    vm.done = len(vm.ops) - max(W, WHI or 0)
    assert gbase[0] == 14, gbase
    hB, hA = order
    wl = wo_load_list(R0, 6) + wo_load_list(R0 + 32, 7)
    kb = []; vb = []
    for u in range(8):
        kb.append(lambda u=u: issue('K', hB, u, 14, W)); kb.append(other(wl[u], 'wo6'))
    for u in range(8):
        vb.append(lambda u=u: issue('V', hB, u, 14, W)); vb.append(other(wl[8+u], 'wo7'))
    a.ext(tile(hB, 12, kblocks=kb, vblocks=vb, bump=True))
    a.ext(tile(hA, 13, kblocks=iss('K', hA, 15), vblocks=iss('V', hA, 15), bump=True))
    d8 = wo_dma_list(hB*16384, 8); d9 = wo_dma_list(hB*16384 + 8192, 9)
    def pretr():
        return vm.need('wo7') + transpose_inplace(R0, 1, 2) + transpose_inplace(R0 + 32, 1, 2)
    a.ext(tile(hB, 14, kblocks=[other(x, 'wo8') for x in d8], vblocks=[other(x, 'wo9') for x in d9], mid=pretr))
    offA = hA * 16384
    def ld10():
        o = []
        for x in wo_load_list(Q0, 10): vm.add('wo10'); o += x
        return o
    def prepub():
        o = [f'v_mov_b32 v1, v{vL}', 's_nop 1', f'v_permlane32_swap_b32 v1, v{vL}', 's_nop 1', f'v_add_f32 v{vL}, v{vL}, v1',
             'v_and_b32 v2, 31, v0', 'v_lshrrev_b32 v3, 5, v0',
             'v_lshlrev_b32 v4, 5, v2', f's_lshl_b32 s{sT}, s{sWave}, 2', f'v_add_u32 v4, s{sT}, v4', f'v_add_u32 v4, {ML}, v4',
             f'ds_write_b32 v4, v{vM}', f'ds_write_b32 v4, v{vL} offset:16',
             'v_lshlrev_b32 v4, 9, v2', f'v_add_u32 v4, s{sRing}, v4', 'v_and_b32 v5, 7, v2', 'v_xor_b32 v5, v5, v3']
        for j in range(4):
            o += [f'v_xor_b32 v6, {2*j}, v5', 'v_lshlrev_b32 v6, 4, v6', f'v_add_u32 v{T[j]}, v4, v6']
        return o + merge_addr(offA)
    a.ext(tile(hA, 15, after_qk=ld10, final=True, pre_v=prepub))
    stamp(3)
    for x in wo_load_list(KV0, 11): vm.add('wo11'); a.ext(x)
    for blk in range(4):
        for j in range(4):
            r = O0 + 16*blk + 4*j
            a(f'ds_write_b128 v{T[j]}, v[{r}:{r+3}] offset:{offA + 128*blk}')
    a('s_waitcnt lgkmcnt(0)')
    if LATE12 == 0:
        for x in wo_load_list(O0, 12): vm.add('wo12'); a.ext(x)
    if tailst: stamp(8)
    a('s_barrier')
    if tailst: stamp(9)
    def ld13():
        for x in wo_load_list(O0 + 32, 13): vm.add('wo13'); a.ext(x)
    merge_body(ld13 if M13 else None)
    a('s_waitcnt lgkmcnt(0)')
    a('s_barrier')
    stamp(4)
    if LATE12 == 1:
        for x in wo_load_list(O0, 12): vm.add('wo12'); a.ext(x)
    aACC, aTB, aAF = 8, [40, 44], [48, 52]
    if oprio: a(f's_setprio {oprio}')
    def rback(land, blk):
        a.ext(vm.need(f'wo{blk}'))
        for j in range(8):
            a(f'ds_read_b128 v[{land+4*j}:{land+4*j+3}], v{vLIN} offset:{hB*16384 + (blk-8)*8192 + 1024*j}')
    if M13: ld13 = lambda: None
    if AORD == 0:
        seq = [(6, R0), (7, R0 + 32), (10, Q0), (11, KV0), (8, R0), (9, R0 + 32), (12, O0), (13, O0 + 32)]
        waits = [0, 8, 8, 0, 0, 0, 0, 0]
        post = {0: lambda: rback(R0, 8), 1: lambda: (rback(R0 + 32, 9), ld13())}
    else:
        seq = [(10, Q0), (11, KV0), (6, R0), (12, O0), (8, Q0), (9, KV0), (7, R0 + 32), (13, O0 + 32)]
        waits = [0, 8, 8, 0, 0, 0, 0, 0]
        post = {0: lambda: rback(Q0, 8), 1: lambda: (rback(KV0, 9), ld13())}
    a(f'ds_read_b128 v[{aAF[0]}:{aAF[0]+3}], v{vACT} offset:{64*seq[0][0]}')
    for i, (s_, land) in enumerate(seq):
        if s_ not in (8, 9): a.ext(vm.need(f'wo{s_}'))
        a(f's_waitcnt lgkmcnt({waits[i]})')
        if i + 1 < len(seq): a(f'ds_read_b128 v[{aAF[(i+1)&1]}:{aAF[(i+1)&1]+3}], v{vACT} offset:{64*seq[i+1][0]}')
        if s_ in (6, 7):
            for e in range(8):
                c = '0' if i == 0 else f'v[{aACC+4*e}:{aACC+4*e+3}]'
                a(f'v_mfma_f32_16x16x32_bf16 v[{aACC+4*e}:{aACC+4*e+3}], v[{aAF[i&1]}:{aAF[i&1]+3}], v[{land+4*e}:{land+4*e+3}], {c}')
        else:
            a.ext(mm_block(land, aTB, [aAF[i & 1]], [aACC], first=(i == 0)))
        if i in post: post[i]()
        if opst and i in (1, 3, 5, 6): stamp({1: 8, 3: 9, 5: 11, 6: 1}[i])
    a('s_nop 7')
    for e in range(8):
        a(f'ds_write_b128 v{vLIN}, v[{aACC+4*e}:{aACC+4*e+3}] offset:{offA + e*1024}')
    a('s_waitcnt lgkmcnt(0)')
    if tailst: stamp(10)
    a('s_barrier')
    if stamps: a('s_branch L_stamps')
    else: a('s_endpgm')

    a('L_pwave:')
    a('s_mov_b32 s3, 1')
    if AFIRST: a('s_barrier')
    if pprio: a('s_setprio 3')
    if x_noq: a('s_branch L_noq')
    sPW, sGQ, sHQ, sRot = sNW, 42, 43, 39
    a(f's_lshr_b32 s{sGQ}, s{sB}, 2\ns_and_b32 s{sHQ}, s{sB}, 3\ns_and_b32 s{sRot}, s{sGQ}, 3')
    SRD_W, SRD_X = 24, 28
    XF, TB, ACC, LAND = 12, [44, 48], 56, 120
    vW, vX = 8, 9
    a(f's_mov_b32 s{SRD_X}, s{sX}\ns_and_b32 s{SRD_X+1}, s{sX+1}, 0xffff\ns_mov_b32 s{SRD_X+2}, 262144\ns_mov_b32 s{SRD_X+3}, 0x20000')
    a(f'v_and_b32 v2, 15, v0\nv_lshrrev_b32 v3, 4, v0\nv_lshlrev_b32 v4, 10, v2\nv_lshlrev_b32 v5, 4, v3\nv_add_u32 v{vX}, v4, v5')
    if x_xcontig: a(f'v_lshlrev_b32 v{vX}, 4, v0')
    a(f'v_lshlrev_b32 v4, 16, v3\nv_lshlrev_b32 v5, 4, v2\nv_add_u32 v{vW}, v4, v5')
    a(f's_lshl_b32 s{sT}, s{sH}, 2\ns_add_u32 s{sT}, s{sT}, s{sHQ}\ns_lshl_b32 s{sT}, s{sT}, 8')
    a(f's_add_u32 s{SRD_W}, s{sWq}, s{sT}\ns_addc_u32 s{SRD_W+1}, s{sWq+1}, 0\ns_and_b32 s{SRD_W+1}, s{SRD_W+1}, 0xffff')
    a(f's_sub_u32 s{SRD_W+2}, 4194304, s{sT}\ns_mov_b32 s{SRD_W+3}, 0x20000')
    for sg in range(4): a(f's_add_u32 s{48+sg}, s{sRot}, {sg}\ns_and_b32 s{48+sg}, s{48+sg}, 3')
    a(f's_and_b32 s{sT}, s{sPW}, 1')
    a(f's_lshl_b32 s52, s{sGQ}, 15\ns_lshl_b32 s{sT2}, s{sT}, 14\ns_add_u32 s52, s52, s{sT2}\ns_lshl_b32 s{sT2}, s{sPW}, 8\ns_add_u32 s52, s52, s{sT2}')
    a(f's_xor_b32 s53, s52, 16384')
    if QPF:
        a(f'v_lshrrev_b32 v4, 4, v0\nv_lshlrev_b32 v4, 13, v4\nv_and_b32 v5, 15, v0\nv_lshlrev_b32 v5, 4, v5\nv_add_u32 v4, v4, v5')
        a(f's_lshl_b32 s{sT2}, s{sGQ}, 2\ns_add_u32 s{sT2}, s{sT2}, s{sPW}\ns_lshl_b32 s{sT2}, s{sT2}, 17')
        for i in range(4):
            a(f's_add_u32 s{sT}, s{sT2}, {i*4*8192}')
            a(f'buffer_load_dwordx4 v[{LAND+4*i}:{LAND+4*i+3}], v4, s[{SRD_W}:{SRD_W+3}], s{sT} offen {wqflags}')
        a('v_lshlrev_b32 v5, 4, v0')
        a(f's_lshl_b32 s{sT2}, s{sGQ}, 5\ns_lshl_b32 s{sT}, s{sHQ}, 3\ns_add_u32 s{sT2}, s{sT2}, s{sT}\ns_lshl_b32 s{sT}, s{sPW}, 1\ns_add_u32 s{sT2}, s{sT2}, s{sT}\ns_lshl_b32 s{sT2}, s{sT2}, 10')
        for i in range(2):
            a(f'buffer_load_dwordx4 v[{LAND+16+4*i}:{LAND+16+4*i+3}], v5, s[{SRD_X}:{SRD_X+3}], s{sT2} offen offset:{i*1024} {xflags}')
        a('s_waitcnt vmcnt(0)')
        if QPFSLEEP: a(f's_sleep {QPFSLEEP}')
    npl = [0]
    def pthrottle():
        if PWIN and npl[0] >= PWIN: a(f's_waitcnt vmcnt({PWIN-1})')
        npl[0] += 1
    if XDMA:
        a('v_lshrrev_b32 v2, 4, v0\nv_and_b32 v3, 15, v0\nv_xor_b32 v4, v2, v3\nv_lshlrev_b32 v5, 10, v2')
        for t in range(4):
            a(f'v_xor_b32 v6, {4*t}, v4\nv_lshlrev_b32 v6, 4, v6\nv_add_u32 v{248+t}, v5, v6')
        a(f's_lshl_b32 s52, s{sGQ}, 15\ns_lshl_b32 s{sT2}, s{sPW}, 8\ns_add_u32 s52, s52, s{sT2}')
        a(f's_lshl_b32 s53, s{sPW}, 15\ns_add_u32 s53, s53, 24576')
        for t in range(8):
            a(f's_add_u32 m0, s53, {1024*t}\ns_add_u32 s{sT}, s52, {4096*t}')
            a(f'buffer_load_dwordx4 v{248 + (t & 3)}, s[{SRD_X}:{SRD_X+3}], s{sT} offen {xflags} lds')
    else:
        for sg in range(4):
            for rho in range(2):
                r = XF + (rho*4 + sg)*4
                a(f's_lshl_b32 s{sT}, s{48+sg}, 6\ns_add_u32 s{sT}, s{sT}, s{52+rho}')
                pthrottle()
                if not x_noload: a(f'buffer_load_dwordx4 v[{r}:{r+3}], v{vX}, s[{SRD_X}:{SRD_X+3}], s{sT} offen {xflags}')
    for sg in range(4):
        a(f's_lshl_b32 s{sT2}, s{sPW}, 2\ns_add_u32 s{sT2}, s{sT2}, s{48+sg}\ns_lshl_b32 s{sT2}, s{sT2}, 18')
        for j in range(8):
            r = LAND + sg*32 + 4*j
            a(f's_add_u32 s{sT}, s{sT2}, {j*8192}')
            pthrottle()
            if x_halfw and sg >= 2: continue
            if not x_noload: a(f'buffer_load_dwordx4 v[{r}:{r+3}], v{vW}, s[{SRD_W}:{SRD_W+3}], s{sT} offen {wqflags}')
    if AGATE is not None:
        a(f'v_mov_b32 v6, {CNT}\nv_mov_b32 v7, 1'); lds_inc(24, 6, 7)
    if XDMA:
        a('v_and_b32 v2, 15, v0\nv_lshrrev_b32 v3, 4, v0')
        a('v_and_b32 v4, 3, v2\nv_xor_b32 v4, v4, v3\nv_lshlrev_b32 v4, 4, v4\nv_lshlrev_b32 v5, 8, v2\nv_add_u32 v4, v4, v5')
        a(f's_and_b32 s{sT}, s{sPW}, 1\ns_lshl_b32 s{sT}, s{sT}, 12\ns_add_u32 s{sT}, s{sT}, s53\nv_add_u32 v4, s{sT}, v4')
        a('v_lshrrev_b32 v5, 2, v2')
        for sg in range(4):
            a(f'v_xor_b32 v6, s{48+sg}, v5\nv_lshlrev_b32 v6, 6, v6\nv_add_u32 v{248+sg}, v4, v6')
    if stamps: a('s_memrealtime s[80:81]')
    if XDMA:
        a('s_waitcnt vmcnt(32)')
        for sg in range(4):
            r0 = XF + sg*4; r1 = XF + (4 + sg)*4
            a(f'ds_read_b128 v[{r0}:{r0+3}], v{248+sg}')
            a(f'v_xor_b32 v6, 4096, v{248+sg}\nds_read_b128 v[{r1}:{r1+3}], v6')
        a('s_waitcnt lgkmcnt(0)')
        a(f'v_mov_b32 v6, {CNT}\nv_mov_b32 v7, 1'); lds_inc(28, 6, 7)
    for sg in range(4):
        a(f's_waitcnt vmcnt({24 - 8*sg})')
        a.ext(mm_block(LAND + sg*32, TB, [XF + sg*4, XF + (4+sg)*4], [ACC, ACC + 32], first=(sg == 0)))
    if stamps: a('s_memrealtime s[82:83]')
    def region(dst, sTile, sK):
        a(f's_mul_i32 s{dst}, s{sTile}, 3\ns_add_u32 s{dst}, s{dst}, s{sK}')
        a(f's_lshl_b32 s{sT}, s{dst}, 15\ns_add_u32 s{sT}, s{sT}, 24576')
        a(f's_sub_u32 s{sT2}, s{dst}, 4\ns_lshl_b32 s{sT2}, s{sT2}, 13\ns_add_u32 s{sT2}, s{sT2}, 131072')
        a(f's_cmp_lt_u32 s{dst}, 4\ns_cselect_b32 s{dst}, s{sT}, s{sT2}')
    a(f's_sub_u32 s54, s{sPW}, 1\ns_cmp_lt_u32 s{sPW}, 2\ns_cselect_b32 s54, 0, s54')
    a(f's_and_b32 s55, s{sPW}, 1')
    a(f's_xor_b32 s56, s55, 1')
    if XDMA:
        a(f'v_mov_b32 v6, {CNT}')
        lds_spin(28, 4, 6, 5)
    region(57, 56, 54)
    a('v_lshlrev_b32 v1, 4, v0')
    a('v_add_u32 v2, s57, v1')
    for e in range(8):
        r = ACC + 32 + 4*e
        a(f'ds_write_b128 v2, v[{r}:{r+3}] offset:{e*1024}')
    lown = lab('owner')
    a(f's_cmp_lt_u32 s{sPW}, 2\ns_cbranch_scc1 {lown}')
    region(57, 55, 54)
    a('v_add_u32 v2, s57, v1')
    for e in range(8):
        r = ACC + 4*e
        a(f'ds_write_b128 v2, v[{r}:{r+3}] offset:{e*1024}')
    a(f'{lown}:')
    a(f's_waitcnt lgkmcnt(0)')
    a(f'v_mov_b32 v6, {CNT}\nv_mov_b32 v7, 1')
    lds_inc(0, 6, 7)
    lqwait = lab('qwait')
    a(f's_cmp_ge_u32 s{sPW}, 2\ns_cbranch_scc1 {lqwait}')
    RD = LAND
    for k in range(3):
        a(f's_mov_b32 s58, {k}')
        region(57, 55, 58)
        a(f'v_add_u32 v{2+k}, s57, v1')
    lds_spin(0, 4, 6, 5)
    for k in range(3):
        for e in range(8):
            r = RD + k*32 + 4*e
            a(f'ds_read_b128 v[{r}:{r+3}], v{2+k} offset:{e*1024}')
    a('v_and_b32 v8, 15, v0\nv_lshrrev_b32 v9, 4, v0')
    a('v_lshrrev_b32 v10, 1, v9\nv_lshlrev_b32 v10, 17, v10\nv_and_b32 v11, 1, v9')
    a('v_lshlrev_b32 v4, 10, v11\nv_add_u32 v4, v4, v10\nv_lshlrev_b32 v5, 4, v8\nv_add_u32 v4, v4, v5')
    a('v_lshlrev_b32 v5, 5, v11\nv_add_u32 v5, v5, v10\nv_lshlrev_b32 v3, 3, v8\nv_add_u32 v5, v5, v3\nv_add_u32 v5, 8192, v5')
    a(f's_lshl_b32 s{sT}, s{sGQ}, 2\ns_lshl_b32 s{sT2}, s55, 1\ns_add_u32 s{sT}, s{sT}, s{sT2}\ns_lshl_b32 s{sT}, s{sT}, 3\ns_add_u32 s{sT}, s{sT}, s{sH}\ns_lshl_b32 s{sT}, s{sT}, 14')
    a(f's_add_u32 s58, s{sWs}, s{sT}\ns_addc_u32 s59, s{sWs+1}, 0')
    if WS_QX: a(f's_add_u32 s58, s58, {WS_QX}\ns_addc_u32 s59, s59, 0')
    a(f's_lshl_b32 s{sT}, s{sHQ}, 11\nv_add_u32 v4, s{sT}, v4\ns_lshl_b32 s{sT}, s{sHQ}, 6\nv_add_u32 v5, s{sT}, v5')
    a(f's_lshr_b32 s{sT}, s{sHQ}, 1\ns_and_b32 s{sT2}, s{sHQ}, 1')
    a(f's_cmp_eq_u32 s{sT2}, 0\ns_cselect_b32 s50, -1, 0\ns_cselect_b32 s51, 0, -1')
    a(f's_cmp_eq_u32 s{sT}, s55\ns_cselect_b32 s50, s50, 0\ns_cselect_b32 s51, s51, 0\ns_not_b64 s[52:53], s[50:51]')
    a(f's_lshl_b32 s{sT}, s{sHQ}, 3\nv_lshlrev_b32 v3, 2, v11\nv_add_u32 v3, s{sT}, v3')
    for r in range(4):
        a(f'v_add_u32 v2, {r}, v3\nv_and_b32 v1, 15, v2\nv_xor_b32 v1, v1, v8\nv_lshlrev_b32 v1, 4, v1\nv_lshlrev_b32 v2, 8, v2\nv_add_u32 v1, v1, v2\nv_add_u32 v{248+r}, {QBUF}, v1')
    a('s_waitcnt lgkmcnt(0)')
    lds_inc(4, 6, 7)
    for i in range(32): a(f'v_add_f32 v{ACC+i}, v{ACC+i}, v{RD+i}')
    for i in range(32): a(f'v_add_f32 v{RD+32+i}, v{RD+32+i}, v{RD+64+i}')
    for i in range(32): a(f'v_add_f32 v{ACC+i}, v{ACC+i}, v{RD+32+i}')
    X = RD + 16
    for r in range(4):
        d = RD + 4*r
        for p in range(4):
            a(f'v_cvt_pk_bf16_f32 v{d+p}, v{ACC+4*(2*p)+r}, v{ACC+4*(2*p+1)+r}')
    a('s_mov_b64 exec, s[52:53]')
    if not x_nost:
        for r in range(4):
            a(f'global_store_dwordx4 v4, v[{RD+4*r}:{RD+4*r+3}], s[58:59] offset:{256*r} {qst}')
    a('s_mov_b64 exec, -1')
    for r in range(4):
        d = RD + 4*r
        a(f'v_xor_b32 v{X+r}, v{d}, v{d+1}\nv_xor_b32 v{X+4+r}, v{d+2}, v{d+3}')
    for r in range(4): a(f'v_xor_b32 v{X+r}, v{X+r}, v{X+4+r}')
    for step in (8, 4, 2, 1):
        for r in range(4): a(f'v_xor_b32_dpp v{X+r}, v{X+r}, v{X+r} row_ror:{step} row_mask:0xf bank_mask:0xf')
    for r in range(1, 4):
        m = 0x00010001 << r
        a(f's_mov_b32 s56, {hex(m)}\ns_mov_b32 s57, {hex(m)}\nv_cndmask_b32 v{X}, v{X}, v{X+r}, s[56:57]')
    a(f'v_mov_b32 v{X+8}, s62\nv_xor_b32 v{X+9}, s61, v{X}')
    a('s_mov_b32 s56, 0x000f000f\ns_mov_b32 s57, 0x000f000f\ns_and_b64 exec, s[56:57], s[52:53]')
    if not x_nost: a(f'global_store_dwordx2 v5, v[{X+8}:{X+9}], s[58:59] {qst}')
    a('s_mov_b64 exec, -1')
    lnl = lab('nolocal')
    a(f's_cmp_eq_u64 s[50:51], 0\ns_cbranch_scc1 {lnl}')
    lds_spin(4, 2, 6, 2)
    a('s_mov_b64 exec, s[50:51]')
    for r in range(4): a(f'ds_write_b128 v{248+r}, v[{RD+4*r}:{RD+4*r+3}]')
    a('s_mov_b64 exec, -1')
    if debug:
        a(f's_lshl_b32 s{sT}, s2, 13\ns_add_u32 s{sT}, s{sT}, {WS_QDUMP}')
        a('s_mov_b64 exec, s[50:51]')
        for r in range(4):
            a(f'v_add_u32 v2, {r}, v3\nv_lshlrev_b32 v2, 8, v2\nv_lshlrev_b32 v1, 4, v8\nv_add_u32 v2, v2, v1\nv_add_u32 v2, s{sT}, v2')
            a(f'global_store_dwordx4 v2, v[{RD+4*r}:{RD+4*r+3}], s[{sWs}:{sWs+1}]')
        a('s_mov_b64 exec, -1')
    a(f'{lnl}:')
    if stamps: a('s_memrealtime s[86:87]')
    a('s_waitcnt vmcnt(0)')
    a(f'v_mov_b32 v6, {CNT}\nv_mov_b32 v7, 1')
    lds_inc(8, 6, 7)
    a(f'{lqwait}:')
    if stamps: a('s_memrealtime s[84:85]')
    lq = lab('qpoll'); lqd = lab('qdone'); lqs = lab('qskip')
    a(f's_cmp_eq_u32 s{sPW}, s{sHQ}\ns_cbranch_scc1 {lqs}')
    a(f's_lshl_b32 s{sT}, s2, 14')
    a(f's_add_u32 s58, s{sWs}, s{sT}\ns_addc_u32 s59, s{sWs+1}, 0')
    if WS_QX: a(f's_add_u32 s58, s58, {WS_QX}\ns_addc_u32 s59, s59, 0')
    a(f's_lshl_b32 s{sT}, s{sPW}, 11\nv_lshlrev_b32 v1, 4, v0\nv_add_u32 v1, s{sT}, v1')
    a(f'v_lshrrev_b32 v2, 4, v0\nv_and_b32 v3, 15, v0\ns_lshl_b32 s{sT}, s{sPW}, 3\nv_add_u32 v2, s{sT}, v2')
    a('v_lshlrev_b32 v4, 3, v2\nv_add_u32 v4, 8192, v4')
    for u in range(2):
        a(f'v_add_u32 v5, {4*u}, v2\nv_and_b32 v6, 15, v5\nv_xor_b32 v6, v6, v3\nv_lshlrev_b32 v6, 4, v6\nv_lshlrev_b32 v5, 8, v5\nv_add_u32 v5, v5, v6\nv_add_u32 v{32+u}, {QBUF}, v5')
    a(f'v_mov_b32 v6, {CNT}')
    lds_spin(8, 2, 6, 5)
    if QGATE is not None: lds_spin(24, 4, 6, 5)
    a(f's_mov_b32 s57, {SPIN_MAX}')
    if x_nopoll: a(f's_branch {lqd}')
    a(f'{lq}:')
    for u in range(2): a(f'global_load_dwordx4 v[{12+4*u}:{15+4*u}], v1, s[58:59] offset:{1024*u} {qld}')
    for u in range(2): a(f'global_load_dwordx2 v[{20+2*u}:{21+2*u}], v4, s[58:59] offset:{32*u} {qld}')
    a('s_waitcnt vmcnt(0)')
    for u in range(2): a(f'v_xor_b32 v{24+u}, v{12+4*u}, v{13+4*u}\nv_xor_b32 v{26+u}, v{14+4*u}, v{15+4*u}')
    for u in range(2): a(f'v_xor_b32 v{24+u}, v{24+u}, v{26+u}')
    for u in range(2): a(f'v_subrev_u32 v{26+u}, s60, v{20+2*u}\nv_lshrrev_b32 v{26+u}, 12, v{26+u}')
    for step in (8, 4, 2, 1):
        for u in range(2): a(f'v_xor_b32_dpp v{24+u}, v{24+u}, v{24+u} row_ror:{step} row_mask:0xf bank_mask:0xf')
        a('s_nop 0')
    for u in range(2): a(f'v_xor_b32 v{24+u}, v{24+u}, v{20+2*u}\nv_xor_b32 v{24+u}, v{24+u}, v{21+2*u}\nv_xor_b32 v{24+u}, {hex(TAGK)}, v{24+u}')
    a('v_or3_b32 v28, v24, v25, v26\nv_or_b32 v28, v28, v27')
    a(f'v_cmp_ne_u32 vcc, 0, v28\ns_cbranch_vccz {lqd}')
    a(f's_sub_u32 s57, s57, 1\ns_cmp_eq_u32 s57, 0\ns_cbranch_scc1 {lqd}\ns_sleep {QSLEEP}\ns_branch {lq}')
    a(f'{lqd}:')
    for u in range(2): a(f'ds_write_b128 v{32+u}, v[{12+4*u}:{15+4*u}]')
    if debug:
        a(f's_lshl_b32 s{sT}, s2, 13\ns_add_u32 s{sT}, s{sT}, {WS_QDUMP}\nv_add_u32 v1, s{sT}, v1')
        for u in range(2): a(f'global_store_dwordx4 v1, v[{12+4*u}:{15+4*u}], s[{sWs}:{sWs+1}] offset:{1024*u}')
    a(f'{lqs}:')
    a('s_waitcnt lgkmcnt(0)')
    if x_noq: a('L_noq:')
    if pprio: a('s_setprio 0')
    stamp(1)
    a('s_barrier')
    stamp(2)
    for _ in range(PLDELAY): a('s_sleep 32')
    HOLD = 56; PL = 12
    a(f's_lshl_b32 s{sT}, s{sH}, 19')
    a(f's_add_u32 s48, s{sWo}, s{sT}\ns_addc_u32 s49, s{sWo+1}, 0\ns_and_b32 s49, s49, 0xffff\ns_mov_b32 s50, 524288\ns_mov_b32 s51, 0x20000')
    a(f's_lshl_b32 s{sT2}, s{sB}, 4\ns_lshl_b32 s52, s{sPW}, 2\ns_add_u32 s{sT2}, s{sT2}, s52\ns_lshl_b32 s{sT2}, s{sT2}, 10')
    a('v_lshlrev_b32 v1, 4, v0')
    if latewarm is not None:
        l2 = lab('wdone')
        a(f's_cmp_ge_u32 s{sB}, {2*NHOLD}\ns_cbranch_scc1 {l2}')
        for i in range(4): a(f'buffer_load_dwordx4 v[{PL+4*i}:{PL+4*i+3}], v1, s[48:51], s{sT2} offen offset:{i*1024} nt')
        a(f'{l2}:')
    elif wosplit:
        l1 = lab('wdef'); l2 = lab('wdone')
        a(f's_cmp_ge_u32 s{sB}, {2*NHOLD}\ns_cbranch_scc1 {l1}')
        for i in range(4): a(f'buffer_load_dwordx4 v[{PL+4*i}:{PL+4*i+3}], v1, s[48:51], s{sT2} offen offset:{i*1024} nt')
        a(f's_branch {l2}\n{l1}:')
        for i in range(4): a(f'buffer_load_dwordx4 v[{PL+4*i}:{PL+4*i+3}], v1, s[48:51], s{sT2} offen offset:{i*1024}')
        a(f'{l2}:')
    else:
        for i in range(4):
            a(f'buffer_load_dwordx4 v[{PL+4*i}:{PL+4*i+3}], v1, s[48:51], s{sT2} offen offset:{i*1024} {woflags if warmflags is None else warmflags}')
    a('s_waitcnt vmcnt(0)')
    for s in range(NHOLD):
        for j, x in enumerate(wo_load_list(PL, s)):
            if plflags is not None: x = [y + ' ' + plflags if y.startswith('buffer_load') else y for y in x]
            a.ext(x)
            if (j + 1) % PTH == 0: a('s_waitcnt vmcnt(0)')
        a('s_waitcnt vmcnt(0)')
        for e in range(8):
            m = e >> 1; sel = SEL_LO + (e & 1)
            for p in range(4):
                a(f'v_perm_b32 v{HOLD+s*32+4*e+p}, v{PL+4*(2*p+1)+m}, v{PL+4*(2*p)+m}, s{sel}')
    if latewarm is not None:
        a(f'v_mov_b32 v6, {CNT}')
        lw = lab('wwait')
        a(f'{lw}:\ns_sleep 8\nds_read_b32 v5, v6 offset:20\ns_waitcnt lgkmcnt(0)\nv_readfirstlane_b32 s{sT}, v5\ns_cmp_ge_u32 s{sT}, 1\ns_cbranch_scc0 {lw}')
        a('v_lshlrev_b32 v1, 4, v0')
        a(f's_mul_i32 s52, s{sB}, 10\ns_mul_i32 s53, s{sPW}, 3')
        for i in range(3):
            a(f's_add_u32 s54, s53, {i}\ns_add_u32 s{sT}, s52, s54\ns_add_u32 s{sT}, s{sT}, {32*NHOLD}\ns_lshl_b32 s{sT}, s{sT}, 10\ns_cmp_lt_u32 s54, 10\ns_cselect_b32 s{sT}, s{sT}, 0x400000')
            a(f'buffer_load_dwordx4 v[{PL+4*i}:{PL+4*i+3}], v1, s[48:51], s{sT} offen {lateflags}')
        a('s_waitcnt vmcnt(0)')
    a.ext(merge_addr(hA * 16384))
    offA = hA * 16384
    a(f's_mov_b32 s{sC}, {hex(f2u(C_SCALE))}')
    stamp(3)
    a('s_barrier')
    if tailst: stamp(8)
    merge_body()
    a('s_waitcnt lgkmcnt(0)')
    if tailst: stamp(9)
    a('s_barrier')
    stamp(4)
    pACC = 12; pAF = [44, 48]; pTB = [52, 248]
    if debug: a('s_waitcnt vmcnt(0)')
    a(f'ds_read_b128 v[{pAF[0]}:{pAF[0]+3}], v{vACT}')
    order_s = [0, 1, 2, 3, 4, 5, 14, 15]
    for i, s in enumerate(order_s):
        a('s_waitcnt lgkmcnt(0)')
        if i + 1 < 8: a(f'ds_read_b128 v[{pAF[(i+1)&1]}:{pAF[(i+1)&1]+3}], v{vACT} offset:{64*order_s[i+1]}')
        if s < 6:
            for e in range(8):
                c = '0' if i == 0 else f'v[{pACC+4*e}:{pACC+4*e+3}]'
                a(f'v_mfma_f32_16x16x32_bf16 v[{pACC+4*e}:{pACC+4*e+3}], v[{pAF[i&1]}:{pAF[i&1]+3}], v[{HOLD+s*32+4*e}:{HOLD+s*32+4*e+3}], {c}')
            for k in range(2):
                if P14AT[k] == s:
                    for x in wo_load_list(HOLD + k*32, 14 + k): a.ext(x)
        else:
            if opst and s == 14: stamp(8)
            a(f's_waitcnt vmcnt({8 if s == 14 else 0})')
            if opst: stamp(9 if s == 14 else 11)
            a.ext(mm_block(HOLD + (s-14)*32, pTB, [pAF[i & 1]], [pACC]))
    a('v_and_b32 v2, 15, v0\nv_lshrrev_b32 v3, 4, v0\nv_and_b32 v3, 1, v3\nv_lshrrev_b32 v5, 5, v0')
    a('v_lshrrev_b32 v4, 3, v2\nv_lshlrev_b32 v4, 14, v4\nv_lshlrev_b32 v6, 9, v3\nv_add_u32 v4, v4, v6\nv_lshlrev_b32 v6, 8, v5\nv_add_u32 v4, v4, v6\nv_and_b32 v6, 7, v2\nv_lshlrev_b32 v6, 4, v6\nv_add_u32 v4, v4, v6')
    a(f's_lshl_b32 s{sT}, s{sB}, 3\ns_lshl_b32 s{sT2}, s{sNW}, 1\ns_add_u32 s{sT}, s{sT}, s{sT2}\ns_lshl_b32 s{sT}, s{sT}, 14\ns_lshl_b32 s{sT2}, s{sH}, 11\ns_add_u32 s{sT}, s{sT}, s{sT2}\ns_add_u32 s{sT}, s{sT}, {WS_MB}')
    a(f's_add_u32 s58, s{sWs}, s{sT}\ns_addc_u32 s59, s{sWs+1}, 0')
    a(f's_lshl_b32 s{sT}, s{sNW}, 15\nv_lshlrev_b32 v1, 4, v0\nv_add_u32 v1, s{sT}, v1')
    RA = 120; SM = 152; GR = 184; HH = 200
    for g in range(4): a(f'v_mov_b32 v{GR+4*g+3}, s62')
    a('v_lshrrev_b32 v8, 4, v0\nv_and_b32 v8, 1, v8\nv_lshrrev_b32 v9, 3, v0\nv_and_b32 v9, 1, v9\nv_and_b32 v10, 7, v0\nv_lshrrev_b32 v7, 5, v0')
    a('v_lshlrev_b32 v11, 10, v8\nv_lshlrev_b32 v6, 7, v9\nv_add_u32 v11, v11, v6\nv_lshlrev_b32 v6, 4, v10\nv_add_u32 v11, v11, v6\nv_lshlrev_b32 v6, 11, v7\nv_add_u32 v11, v11, v6')
    for t in range(1, 4): a(f'v_add_u32 v{208+t}, {4096*t}, v11')
    a(f's_lshl_b32 s{sT}, s2, 14\ns_lshl_b32 s{sT2}, s{sNW}, 8\ns_add_u32 s{sT}, s{sT}, s{sT2}\ns_add_u32 s{sT}, s{sT}, {WS_MB}')
    a(f's_add_u32 s56, s{sWs}, s{sT}\ns_addc_u32 s57, s{sWs+1}, 0')
    a(f's_lshl_b32 s{sT}, s{sB}, 3\ns_lshl_b32 s{sT2}, s{sNW}, 1\ns_add_u32 s{sT}, s{sT}, s{sT2}\ns_lshl_b32 s{sT}, s{sT}, 10\ns_lshl_b32 s{sT2}, s{sH}, 7\ns_add_u32 s{sT}, s{sT}, s{sT2}')
    a(f'v_lshlrev_b32 v212, 10, v9\nv_lshlrev_b32 v6, 4, v10\nv_add_u32 v212, v212, v6\nv_lshlrev_b32 v6, 3, v8\nv_add_u32 v212, v212, v6\nv_add_u32 v212, s{sT}, v212')
    a('s_mov_b32 s54, 0xffff0000')
    if tailst: stamp(10)
    a('s_barrier')
    stamp(5)
    for e in range(8): a(f'ds_read_b128 v[{RA+4*e}:{RA+4*e+3}], v1 offset:{offA + e*1024}')
    for hfw, wait in ((0, 4), (1, 0)):
        a(f's_waitcnt lgkmcnt({wait})')
        for e in range(4*hfw, 4*hfw + 4):
            for r in range(4):
                a(f'v_add_f32 v{SM+8*r+e}, v{pACC+4*e+r}, v{RA+4*e+r}')
        p = hfw
        for rs in range(2):
            g = GR + 4*(2*rs + p); h = HH + 2*(2*rs + p)
            for x in range(2):
                a(f'v_cvt_pk_bf16_f32 v{g+x}, v{SM+8*rs+4*p+2*x}, v{SM+8*rs+4*p+2*x+1}')
                a(f'v_cvt_pk_bf16_f32 v{h+x}, v{SM+8*(rs+2)+4*p+2*x}, v{SM+8*(rs+2)+4*p+2*x+1}')
    a('s_nop 1')
    for rs in range(2):
        for p in range(2):
            g = GR + 4*(2*rs + p); h = HH + 2*(2*rs + p)
            a(f'v_permlane32_swap_b32 v{g}, v{h}\nv_permlane32_swap_b32 v{g+1}, v{h+1}')
    for rs in range(2):
        for p in range(2):
            g = GR + 4*(2*rs + p)
            a.ext(make_granule(g))
            a(f'global_store_dwordx4 v4, v[{g}:{g+3}], s[58:59] offset:{p*1024 + rs*128} sc1')
    if tailst: stamp(11)
    a(f's_mov_b32 s55, {SPIN_MAX}')
    lp = lab('rpoll'); ld = lab('rdone')
    a(f'{lp}:')
    for t in range(4):
        va = 11 if t == 0 else 208 + t
        a(f'global_load_dwordx4 v[{12+4*t}:{15+4*t}], v{va}, s[56:57] sc1')
    a('s_waitcnt vmcnt(0)')
    for t in range(4): a.ext(check_granule(12+4*t, 44, 45, t == 0))
    a(f'v_cmp_ne_u32 vcc, 0, v44\ns_cbranch_vccz {ld}')
    a(f's_sub_u32 s55, s55, 1\ns_cmp_eq_u32 s55, 0\ns_cbranch_scc1 {ld}\n' + (f's_sleep {RSLEEP}\n' if RSLEEP else '') + f's_branch {lp}')
    a(f'{ld}:')
    if tailst: a(f's_sub_u32 s78, {SPIN_MAX}, s55')
    for t in range(4):
        g = 12 + 4*t
        d = 28 if t == 0 else 32
        a(f'v_lshlrev_b32 v{d}, 16, v{g}\nv_and_b32 v{d+1}, s54, v{g}\nv_lshlrev_b32 v{d+2}, 16, v{g+1}\nv_and_b32 v{d+3}, s54, v{g+1}')
        if t:
            for k in range(4): a(f'v_add_f32 v{28+k}, v{28+k}, v{32+k}')
    for k in range(4): a(f'v_mov_b32 v{32+k}, v{28+k}')
    a('s_nop 1')
    for k in range(4): a(f'v_permlane32_swap_b32 v{28+k}, v{32+k}')
    a('s_nop 0')
    for k in range(4): a(f'v_add_f32 v{28+k}, v{28+k}, v{32+k}')
    a('v_cvt_pk_bf16_f32 v28, v28, v29\nv_cvt_pk_bf16_f32 v29, v30, v31')
    a('s_mov_b32 exec_lo, -1\ns_mov_b32 exec_hi, 0')
    a(f'global_store_dwordx2 v212, v[28:29], s[{sOut}:{sOut+1}] {outfl}')
    a('s_mov_b64 exec, -1')
    if stamps:
        stamp(6)
        a('L_stamps:')
        a('s_waitcnt lgkmcnt(0)')
        a(f's_lshl_b32 s{sT}, s2, 3\ns_add_u32 s{sT}, s{sT}, s{sWave}\ns_lshl_b32 s{sT}, s{sT}, 6\ns_add_u32 s{sT}, s{sT}, {WS_STAMP}\nv_mov_b32 v3, s{sT}')
        a('s_mov_b32 exec_lo, 1\ns_mov_b32 exec_hi, 0')
        for q in range(3):
            regs = [64+2*(4*q+i) for i in range(4)]
            a('\n'.join(f'v_mov_b32 v{4+i}, s{regs[i]}' for i in range(4)))
            a(f'global_store_dwordx4 v3, v[4:7], s[{sWs}:{sWs+1}] offset:{16*q}\ns_nop 1')
    a('L_end:\ns_endpgm')
    a.raw('.section .rodata,"a"\n.p2align 6')
    a.raw(f'.amdhsa_kernel {K}')
    a.raw('  .amdhsa_next_free_vgpr 256\n  .amdhsa_next_free_sgpr 96\n  .amdhsa_accum_offset 256')
    a.raw('  .amdhsa_group_segment_fixed_size 0\n  .amdhsa_kernarg_size 64\n  .amdhsa_user_sgpr_count 2\n  .amdhsa_user_sgpr_kernarg_segment_ptr 1\n  .amdhsa_system_sgpr_workgroup_id_x 1')
    a.raw('.end_amdhsa_kernel')
    return a.text()

if __name__ == '__main__':
    kw = json.loads(sys.argv[2]) if len(sys.argv) > 2 else {}
    open(sys.argv[1], 'w').write(gen(**kw))
```

```python
import sys, json, struct
K = 'standalone__gqa_block_cached__sampling_kernel'

QBUF = 131072
ACT = 139264
ACT_STRIDE = 1056
ML = 147712
CNT = 148736
LDS_BYTES = 148800
WS_QX = 0
WS_MB = 0x400000
TAGK = 0x9E3779B9
WS_STAMP = 0xD00000
WS_QDUMP = 0x1000000
WS_ODUMP = 0x2000000
SPIN_MAX = 200000

C_SCALE = 0.08838834764831845 * 1.4426950408889634
def f2u(f): return struct.unpack('<I', struct.pack('<f', f))[0]

class Asm:
    def __init__(self): self.L = []
    def __call__(self, s):
        for line in s.split('\n'):
            line = line.strip()
            if line: self.L.append(('  ' + line) if not line.endswith(':') else line)
    def ext(self, lst):
        for s in lst: self(s)
    def raw(self, s): self.L.append(s)
    def text(self): return '\n'.join(self.L) + '\n'

def interleave(code, blocks, start=0, end=None):
    if end is None: end = len(code)
    n = len(blocks)
    out = list(code[:start])
    span = end - start
    pos = [start + (span * (i + 1)) // (n + 1) for i in range(n)] if n else []
    bi = 0
    for i in range(start, end):
        while bi < n and pos[bi] == i:
            out.extend(blocks[bi]()); bi += 1
        out.append(code[i])
    while bi < n:
        out.extend(blocks[bi]()); bi += 1
    out.extend(code[end:])
    return out

class VM:
    def __init__(self): self.ops = []; self.done = 0
    def add(self, tag, piece=False): self.ops.append((tag, piece))
    def _wait(self, idx):
        if idx < self.done: return []
        n = len(self.ops) - 1 - idx
        self.done = idx + 1
        assert n <= 63, n
        return [f's_waitcnt vmcnt({n})']
    def window(self, W):
        pcs = [i for i, (t, p) in enumerate(self.ops) if p]
        if len(pcs) < W: return []
        return self._wait(pcs[-W])
    def need(self, tag):
        idx = [i for i, (t, p) in enumerate(self.ops) if t == tag]
        assert idx, tag
        return self._wait(idx[-1])

sX, sKp, sVp, sWq, sWo, sOut, sDbg, sWs = 4, 6, 8, 10, 12, 14, 16, 18
sWave, sH, sB, sNW = 20, 21, 22, 23
sT, sT2, sC = 34, 38, 36
SEL_LO, SEL_HI = 40, 41

def gen(W=5, W0=None, layout='p1', flags='nt', debug=False, wqflags='', woflags='', stamps=False, pprio=True,
        PTH=2, QSLEEP=4, RSLEEP=2, AGATE=None, stage=True, QPF=False, QPFSLEEP=0, x_noq=False, x_nopoll=False, x_nost=False, x_noload=False, PWIN=None, xflags='', aprio=False, PDELAY=0, qst='sc1', qld='sc1', tailst=False, LATE12=0, opst=False, P14AT=(3, 5), A13AT=1, x_xcontig=False, x_halfw=False, AFIRST=0, WHI=None, THR0=1350, DTH=455, warmflags=None, wosplit=False, plflags=None, latewarm=None, lateflags='nt', probe=False, PSLEEP=2, QGATE=None, XDMA=True, outfl='', AORD=0, oprio=0, M13=True, loopst=False, WR=16, startst=False, WRMODE=1, PLDELAY=0, WEND=None, WHICNT=None, QACK=True, QPRE=0, RPRE=0):
    NHOLD = 6
    W0 = W0 or W
    a = Asm()
    uid = [0]
    def lab(n):
        uid[0] += 1
        return f'L_{n}_{uid[0]}'
    def lds_spin(off, target, vaddr, vtmp):
        l = lab('spin')
        a(f'{l}:')
        a(f'ds_read_b32 v{vtmp}, v{vaddr} offset:{off}\ns_waitcnt lgkmcnt(0)\nv_readfirstlane_b32 s{sT}, v{vtmp}\ns_cmp_ge_u32 s{sT}, {target}\ns_cbranch_scc0 {l}')
    def lds_inc(off, vaddr, vone):
        a(f's_mov_b32 exec_lo, 1\ns_mov_b32 exec_hi, 0\nds_add_u32 v{vaddr}, v{vone} offset:{off}\ns_mov_b64 exec, -1')
    def get_nonce():
        pass
    def make_granule(g):
        return [f'v_xor_b32 v{g+2}, v{g}, v{g+1}', f'v_xor_b32 v{g+2}, s61, v{g+2}']
    def check_granule(g, bad, tmp, first):
        o = [f'v_xor_b32 v{tmp}, v{g}, v{g+1}', f'v_xor_b32 v{tmp}, v{tmp}, v{g+2}', f'v_xor_b32 v{tmp}, v{tmp}, v{g+3}', f'v_xor_b32 v{tmp}, {hex(TAGK)}, v{tmp}',
             f'v_subrev_u32 v{tmp+1}, s60, v{g+3}', f'v_lshrrev_b32 v{tmp+1}, 12, v{tmp+1}']
        o.append(f'v_or_b32 v{bad}, v{tmp}, v{tmp+1}' if first else f'v_or3_b32 v{bad}, v{bad}, v{tmp}, v{tmp+1}')
        return o
    def stamp(i):
        if stamps: a(f's_memrealtime s[{64+2*i}:{65+2*i}]')

    vK = list(range(8, 16)); vV = list(range(16, 20)); vDK = list(range(20, 24)); vDV = 24
    vM, vL, vNM, vAl = 25, 26, 27, 28
    T = list(range(29, 36))
    P0, S0, Q0, KV0, O0, R0 = 36, 44, 60, 92, 124, 188
    vWO = 252; vACT = 253
    SRD_K, SRD_V, SRD_WO = 24, 28, 44
    sRing, sG, sCnt = 32, 33, 35
    if layout == 'p1':   Bu = lambda u: 4096 * u;  Cw = 1024
    elif layout == 'p2': Bu = lambda u: 8192 * (u >> 1) + 1024 * (u & 1); Cw = 2048
    elif layout == 'p4': Bu = lambda u: 16384 * (u >> 2) + 1024 * (u & 3); Cw = 4096
    elif layout == 'p8': Bu = lambda u: 1024 * u; Cw = 8192

    a.raw(f'; @launch grid=(256,1,1) block=(512,1,1) lds={LDS_BYTES}')
    a.raw('.amdgcn_target "amdgcn-amd-amdhsa--gfx950"')
    a.raw('.text')
    a.raw(f'.globl {K}\n.p2align 8\n.type {K},@function\n{K}:')
    a('s_cmp_ge_u32 s2, 256\ns_cbranch_scc1 L_end')
    a('s_load_dwordx16 s[4:19], s[0:1], 0')
    a('s_memrealtime s[62:63]')
    stamp(0)
    a(f'v_mov_b32 v2, {CNT}\nv_mov_b32 v3, 0')
    for o in range(0, 32, 4): a(f'ds_write_b32 v2, v3 offset:{o}')
    a('v_lshrrev_b32 v1, 6, v0\nv_and_b32 v0, 63, v0')
    a(f'v_readfirstlane_b32 s{sWave}, v1')
    a(f's_and_b32 s{sH}, s2, 7\ns_lshr_b32 s{sB}, s2, 3')
    a(f's_mov_b32 s{SEL_LO}, 0x05040100\ns_mov_b32 s{SEL_HI}, 0x07060302')
    a(f'v_lshrrev_b32 v2, 4, v0\nv_and_b32 v3, 15, v0\nv_lshlrev_b32 v2, 13, v2\nv_lshlrev_b32 v4, 4, v3\nv_add_u32 v{vWO}, v2, v4')
    a(f'v_and_b32 v2, 7, v0\nv_mul_u32_u24 v2, {ACT_STRIDE}, v2\nv_lshrrev_b32 v3, 4, v0\nv_lshlrev_b32 v3, 4, v3\nv_add_u32 v2, v2, v3\nv_add_u32 v{vACT}, {ACT}, v2')
    a(f's_and_b32 s{sNW}, s{sWave}, 3')
    a('s_waitcnt lgkmcnt(0)')
    a(f's_sub_u32 s60, s62, 2048\ns_xor_b32 s61, s62, {hex(TAGK)}')
    a(f's_lshl_b32 s{sT}, s{sH}, 19\ns_lshl_b32 s{sT2}, s{sNW}, 8\ns_add_u32 s{sT}, s{sT}, s{sT2}')
    a(f's_add_u32 s{SRD_WO}, s{sWo}, s{sT}\ns_addc_u32 s{SRD_WO+1}, s{sWo+1}, 0\ns_and_b32 s{SRD_WO+1}, s{SRD_WO+1}, 0xffff')
    a(f's_sub_u32 s{SRD_WO+2}, 524288, s{sT2}\ns_mov_b32 s{SRD_WO+3}, 0x20000')
    if not AFIRST: a('s_barrier')
    a(f's_cmp_ge_u32 s{sWave}, 4\ns_cbranch_scc1 L_pwave')

    def perms(land, e, tb):
        m = e >> 1; sel = SEL_LO + (e & 1); t = tb[e % 2]
        return [f'v_perm_b32 v{t+p}, v{land+4*(2*p+1)+m}, v{land+4*(2*p)+m}, s{sel}' for p in range(4)]
    def mm_block(land, tb, afs, accs, first=False):
        o = perms(land, 0, tb) + perms(land, 1, tb)
        for e in range(8):
            t = tb[e % 2]
            if e == 7 and len(afs) == 1: o.append('s_nop 0')
            for af, acc in zip(afs, accs):
                c = '0' if first else f'v[{acc+4*e}:{acc+4*e+3}]'
                o.append(f'v_mfma_f32_16x16x32_bf16 v[{acc+4*e}:{acc+4*e+3}], v[{af}:{af+3}], v[{t}:{t+3}], {c}')
            if e + 2 < 8: o += perms(land, e + 2, tb)
        return o
    def transpose_inplace(b, t0, t1):
        o = []
        P_ = lambda d, hi_, lo_, x: f'v_perm_b32 v{d}, v{hi_}, v{lo_}, s{SEL_LO + x}'
        for p in range(4):
            o += [P_(t0, b+8*p+4+p, b+8*p+p, 0), P_(b+8*p+4+p, b+8*p+4+p, b+8*p+p, 1), f'v_mov_b32 v{b+8*p+p}, v{t0}']
        for p in range(4):
            for m in range(p + 1, 4):
                o += [P_(t0, b+8*p+4+m, b+8*p+m, 0), P_(t1, b+8*p+4+m, b+8*p+m, 1),
                      P_(b+8*p+m, b+8*m+4+p, b+8*m+p, 0), P_(b+8*p+4+m, b+8*m+4+p, b+8*m+p, 1),
                      f'v_mov_b32 v{b+8*m+p}, v{t0}', f'v_mov_b32 v{b+8*m+4+p}, v{t1}']
        return o
    vMa, vMb, vMc, vMd = 52, 53, 54, 55
    def merge_addr(offA):
        o = [f's_lshl_b32 s{sT}, s{sWave}, 6', f'v_add_u32 v1, s{sT}, v0', 'v_lshrrev_b32 v2, 4, v1', 'v_and_b32 v3, 15, v1',
             f'v_lshlrev_b32 v{vMa}, 5, v2', f'v_add_u32 v{vMa}, {ML}, v{vMa}',
             'v_and_b32 v5, 7, v2', 'v_xor_b32 v5, v5, v3', 'v_lshlrev_b32 v5, 4, v5', 'v_lshlrev_b32 v6, 9, v2', 'v_add_u32 v5, v5, v6', f'v_add_u32 v{vMb}, {offA}, v5',
             f'v_add_u32 v{vMc}, 65536, v{vMb}',
             'v_and_b32 v4, 7, v2', f'v_mul_u32_u24 v4, {ACT_STRIDE}, v4', 'v_lshrrev_b32 v5, 3, v2', 'v_lshlrev_b32 v5, 8, v5', 'v_add_u32 v4, v4, v5', 'v_lshlrev_b32 v5, 3, v3', 'v_add_u32 v4, v4, v5', f'v_add_u32 v{vMd}, {ACT}, v4']
        return o
    def merge_body(hook=None):
        a(f'ds_read_b128 v[8:11], v{vMa}\nds_read_b128 v[12:15], v{vMa} offset:16')
        for w in range(4):
            for half in range(2):
                r = 16 + (w*2 + half)*4
                a(f'ds_read_b128 v[{r}:{r+3}], v{vMb if w < 2 else vMc} offset:{(w&1)*32768 + 256*half}')
        if hook is not None: hook()
        a('s_waitcnt lgkmcnt(8)')
        a('v_max3_f32 v48, v8, v9, v10\nv_max_f32 v48, v48, v11')
        for w in range(4): a(f'v_sub_f32 v{8+w}, v{8+w}, v48')
        for w in range(4): a(f'v_mul_f32 v{8+w}, s{sC}, v{8+w}')
        for w in range(4): a(f'v_exp_f32 v{8+w}, v{8+w}')
        a('s_nop 0')
        a('v_mul_f32 v48, v8, v12\nv_fmac_f32 v48, v9, v13\nv_fmac_f32 v48, v10, v14\nv_fmac_f32 v48, v11, v15')
        a('v_rcp_f32 v48, v48\ns_nop 0')
        for w in range(4): a(f'v_mul_f32 v{8+w}, v{8+w}, v48')
        a('s_waitcnt lgkmcnt(0)')
        for half in range(2):
            for i in range(4): a(f'v_mul_f32 v{16+half*4+i}, v8, v{16+half*4+i}')
        for w in range(1, 4):
            for half in range(2):
                for i in range(4): a(f'v_fmac_f32 v{16+half*4+i}, v{8+w}, v{16+(w*2+half)*4+i}')
        a('v_cvt_pk_bf16_f32 v48, v16, v17\nv_cvt_pk_bf16_f32 v49, v18, v19\nv_cvt_pk_bf16_f32 v50, v20, v21\nv_cvt_pk_bf16_f32 v51, v22, v23')
        a(f'ds_write_b64 v{vMd}, v[48:49]\nds_write_b64 v{vMd}, v[50:51] offset:128')
        if debug:
            a(f's_lshl_b32 s{sT}, s{sWave}, 6\nv_add_u32 v1, s{sT}, v0\nv_lshrrev_b32 v2, 4, v1\nv_and_b32 v3, 15, v1')
            a(f'v_and_b32 v4, 7, v2\nv_lshlrev_b32 v4, 13, v4\nv_lshrrev_b32 v5, 3, v2\nv_lshlrev_b32 v5, 8, v5\nv_add_u32 v4, v4, v5\nv_lshlrev_b32 v5, 3, v3\nv_add_u32 v4, v4, v5')
            a(f's_lshl_b32 s{sT}, s{sB}, 16\ns_lshl_b32 s{sT2}, s{sH}, 10\ns_add_u32 s{sT}, s{sT}, s{sT2}\ns_add_u32 s{sT}, s{sT}, {WS_ODUMP}\nv_add_u32 v4, s{sT}, v4')
            a(f'global_store_dwordx2 v4, v[48:49], s[{sWs}:{sWs+1}]\nglobal_store_dwordx2 v4, v[50:51], s[{sWs}:{sWs+1}] offset:128')
            a('s_waitcnt vmcnt(0)')
    def wo_load_list(land, s):
        o = []
        for j in range(8):
            r = land + 4*j
            o.append([f's_mov_b32 s{sT}, {s*32768 + (j//4)*4096}',
                      f'buffer_load_dwordx4 v[{r}:{r+3}], v{vWO}, s[{SRD_WO}:{SRD_WO+3}], s{sT} offen offset:{(j%4)*1024} {woflags}'])
        return o
    def wo_dma_list(ldsoff, s):
        o = []
        for j in range(8):
            o.append([f's_add_u32 m0, s{sRing}, {ldsoff + j*1024}', f's_mov_b32 s{sT}, {s*32768 + j*1024}',
                      f'buffer_load_dwordx4 v{vWO}, s[{SRD_WO}:{SRD_WO+3}], s{sT} offen {woflags} lds'])
        return o

    a('s_mov_b32 s3, 0')
    if aprio: a('s_setprio 3')
    a(f's_lshl_b32 s{sT}, s2, 19')
    for srd, p in ((SRD_K, sKp), (SRD_V, sVp)):
        a(f's_add_u32 s{srd}, s{p}, s{sT}\ns_addc_u32 s{srd+1}, s{p+1}, 0\ns_and_b32 s{srd+1}, s{srd+1}, 0xffff')
        a(f's_mov_b32 s{srd+2}, 524288\ns_mov_b32 s{srd+3}, 0x20000')
    a(f's_lshl_b32 s{sRing}, s{sWave}, 15')
    a(f's_mul_i32 s{sG}, s{sWave}, {Cw}')
    a(f's_mov_b32 s{sC}, {hex(f2u(C_SCALE))}')
    a('v_lshrrev_b32 v1, 4, v0\nv_and_b32 v2, 15, v0')
    a('v_lshlrev_b32 v3, 8, v1')
    a('v_xor_b32 v4, v2, v1')
    for u in range(4):
        a(f'v_xor_b32 v5, {4*u}, v4\nv_lshlrev_b32 v5, 4, v5\nv_add_u32 v{vDK[u]}, v3, v5')
    a(f'v_lshlrev_b32 v5, 2, v1\nv_xor_b32 v5, v5, v2\nv_lshlrev_b32 v5, 4, v5\nv_add_u32 v{vDV}, v3, v5')

    vm = VM()
    force = [False]
    gbase = [0]
    def issue(kv, hb, u, tile, win, toreg=None):
        o = vm.window(win) if win else []
        if force[0] and not o: o = [f's_waitcnt vmcnt({win-1})']
        if force[0]: assert o == [f's_waitcnt vmcnt({win-1})'], o
        goff = (tile - gbase[0]) * 32768 + Bu(u)
        vd = vDK[u & 3] if kv == 'K' else vDV
        srd = SRD_K if kv == 'K' else SRD_V
        if toreg is None:
            o.append(f's_add_u32 m0, s{sRing}, {hb*16384 + (8192 if kv=="V" else 0) + 1024*u}')
            o.append(f's_add_u32 s{sT}, s{sG}, {goff}')
            o.append(f'buffer_load_dwordx4 v{vd}, s[{srd}:{srd+3}], s{sT} offen {flags} lds')
        else:
            o.append(f's_add_u32 s{sT}, s{sG}, {goff}')
            o.append(f'buffer_load_dwordx4 v[{toreg}:{toreg+3}], v{vd}, s[{srd}:{srd+3}], s{sT} offen {flags}')
        vm.add((kv, tile), True)
        return o
    def other(lst, tag):
        def f():
            vm.add(tag, False)
            return list(lst)
        return f

    npro = [0]
    def pro(kv, hb, tile, toreg=None, us=range(8)):
        for u in us:
            if AGATE is not None and npro[0] == AGATE:
                a(f'v_mov_b32 v6, {CNT}'); lds_spin(24, 4, 6, 7)
            a.ext(issue(kv, hb, u, tile, W0, None if toreg is None else toreg + 4*u)); npro[0] += 1
            if QGATE is not None and npro[0] == QGATE:
                a(f'v_mov_b32 v6, {CNT}\nv_mov_b32 v7, 1'); lds_inc(24, 6, 7)
    if AFIRST:
        for u in range(AFIRST):
            pro('K', 0, 0, us=[u]); pro('V', 0, 0, us=[u])
        a('s_barrier')
        pro('K', 0, 0, us=range(AFIRST, 8))
    else:
        pro('K', 0, 0)
    a('v_and_b32 v1, 31, v0\nv_lshrrev_b32 v2, 5, v0')
    a('v_and_b32 v3, 15, v1\nv_xor_b32 v3, v3, v2')
    a(f'v_lshlrev_b32 v4, 8, v1\nv_add_u32 v4, s{sRing}, v4')
    for s in range(8):
        a(f'v_xor_b32 v5, {2*s}, v3\nv_lshlrev_b32 v5, 4, v5\nv_add_u32 v{vK[s]}, v4, v5')
    a('v_lshrrev_b32 v1, 4, v0')
    a('v_lshrrev_b32 v2, 2, v0\nv_and_b32 v2, 3, v2')
    a('v_and_b32 v3, 3, v0')
    a('v_lshrrev_b32 v4, 1, v1\nv_lshlrev_b32 v4, 2, v4\nv_add_u32 v4, v4, v2\nv_lshlrev_b32 v4, 8, v4')
    a('v_and_b32 v5, 1, v1\nv_lshlrev_b32 v5, 5, v5\nv_add_u32 v4, v4, v5')
    a('v_lshlrev_b32 v5, 3, v3\nv_add_u32 v4, v4, v5')
    a(f'v_add_u32 v4, s{sRing}, v4\nv_add_u32 v4, 8192, v4')
    for blk in range(4):
        a(f'v_xor_b32 v5, {blk}, v2\nv_lshlrev_b32 v5, 6, v5\nv_add_u32 v{vV[blk]}, v4, v5')
    a(f'v_mov_b32 v{vM}, 0xff800000\nv_mov_b32 v{vL}, 0')
    for r in range(64): a(f'v_mov_b32 v{O0+r}, 0')
    vLIN = 254
    a(f'v_lshlrev_b32 v{vLIN}, 4, v0\nv_add_u32 v{vLIN}, s{sRing}, v{vLIN}')
    pro('V', 0, 0, us=range(AFIRST, 8))
    if not (loopst or startst): stamp(8)
    pro('K', 1, 1)
    if not (loopst or startst): stamp(9)
    if stage:
        pro('K', 0, 2, toreg=R0)
        if not (loopst or startst): stamp(10)
        pro('V', 0, 2, toreg=R0 + 32)
        if not (loopst or startst): stamp(11)
    a(f'v_mov_b32 v6, {CNT}')
    if not x_noq: lds_spin(4, 2, 6, 7)
    pro('V', 1, 1)
    if not loopst: stamp(1)
    if aprio: a('s_setprio 0')
    a('s_barrier')
    if not loopst: stamp(2)
    a(f's_sub_u32 s{sT}, {QBUF}, s{sRing}')
    for s in range(8):
        a(f'v_add_u32 v1, s{sT}, v{vK[s]}\nds_read_b128 v[{Q0+4*s}:{Q0+4*s+3}], v1')
    a('s_waitcnt lgkmcnt(0)')

    def tile(hb, tidx, kblocks=(), vblocks=(), after_k=None, after_v=None, after_qk=None, inloop=False, final=False, bump=False, pre_v=None, mid=None, kfront=False):
        c = []
        off = hb * 16384
        if not inloop: c += vm.need(('K', tidx))
        for s in range(8):
            c.append(f'ds_read_b128 v[{KV0+4*s}:{KV0+4*s+3}], v{vK[s]} offset:{off}')
        c.append('s_waitcnt lgkmcnt(4)')
        for s in range(8):
            if s == 4: c.append('s_waitcnt lgkmcnt(0)')
            srcc = '0' if s == 0 else f'v[{S0}:{S0+15}]'
            c.append(f'v_mfma_f32_32x32x16_bf16 v[{S0}:{S0+15}], v[{KV0+4*s}:{KV0+4*s+3}], v[{Q0+4*s}:{Q0+4*s+3}], {srcc}')
        vreads = []
        for s2 in range(2):
            for blk in range(4):
                for half in range(2):
                    r = KV0 + (s2*4 + blk)*4 + 2*half
                    vreads.append(f'ds_read_b64_tr_b16 v[{r}:{r+1}], v{vV[blk]} offset:{off + s2*4096 + half*2048}')
        nw = 0
        if after_k is not None:
            x = after_k(); c += x; nw += len(x)
        if after_qk is not None:
            x = after_qk(); c += x; nw += len(x)
        if not final:
            if not inloop: c += vm.need(('V', tidx))
            c.extend(vreads); nw += 16
        if nw < 12: c.append(f's_nop {min(7, 11 - nw)}'); nw += min(8, 12 - nw)
        if nw < 12: c.append(f's_nop {11 - nw}')
        sm = []
        S = lambda k: S0 + k
        sm.append(f'v_max3_f32 v{T[0]}, v{S(0)}, v{S(1)}, v{S(2)}')
        sm.append(f'v_max3_f32 v{T[1]}, v{S(3)}, v{S(4)}, v{S(5)}')
        sm.append(f'v_max3_f32 v{T[2]}, v{S(6)}, v{S(7)}, v{S(8)}')
        sm.append(f'v_max3_f32 v{T[3]}, v{S(9)}, v{S(10)}, v{S(11)}')
        sm.append(f'v_max3_f32 v{T[4]}, v{S(12)}, v{S(13)}, v{S(14)}')
        sm.append(f'v_max3_f32 v{T[0]}, v{T[0]}, v{T[1]}, v{S(15)}')
        sm.append(f'v_max3_f32 v{T[2]}, v{T[2]}, v{T[3]}, v{T[4]}')
        sm.append(f'v_max_f32 v{T[0]}, v{T[0]}, v{T[2]}')
        sm.append(f'v_mov_b32 v{T[1]}, v{T[0]}')
        sm.append('s_nop 1')
        sm.append(f'v_permlane32_swap_b32 v{T[0]}, v{T[1]}')
        sm.append(f's_nop 1')
        sm.append(f'v_max3_f32 v{T[0]}, v{T[0]}, v{T[1]}, v{vM}')
        sm.append(f'v_mul_f32 v{vNM}, s{sC}, v{T[0]}')
        sm.append(f'v_fma_f32 v{vAl}, v{vM}, s{sC}, -v{vNM}')
        sm.append(f'v_mov_b32 v{vM}, v{T[0]}')
        sm.append(f'v_exp_f32 v{vAl}, v{vAl}')
        for k in range(16): sm.append(f'v_fma_f32 v{S(k)}, v{S(k)}, s{sC}, -v{vNM}')
        for k in range(16): sm.append(f'v_exp_f32 v{S(k)}, v{S(k)}')
        sm.append(f'v_mul_f32 v{vL}, v{vL}, v{vAl}')
        for k in range(4): sm.append(f'v_add_f32 v{T[k]}, v{S(k)}, v{S(k+4)}')
        for k in range(4): sm.append(f'v_add_f32 v{T[k]}, v{T[k]}, v{S(k+8)}')
        for k in range(4): sm.append(f'v_add_f32 v{T[k]}, v{T[k]}, v{S(k+12)}')
        sm.append(f'v_add_f32 v{T[0]}, v{T[0]}, v{T[1]}')
        sm.append(f'v_add_f32 v{T[2]}, v{T[2]}, v{T[3]}')
        for k in range(8): sm.append(f'v_cvt_pk_bf16_f32 v{P0+k}, v{S(2*k)}, v{S(2*k+1)}')
        sm.append(f'v_add_f32 v{vL}, v{vL}, v{T[0]}')
        sm.append(f'v_add_f32 v{vL}, v{vL}, v{T[2]}')
        for r in range(64): sm.append(f'v_mul_f32 v{O0+r}, v{O0+r}, v{vAl}')
        if kfront:
            for b in kblocks: c.extend(b())
            c.extend(sm)
        else:
            c.extend(interleave(sm, list(kblocks)))
        if mid is not None: c += mid()
        if pre_v is not None: c += pre_v()
        if final:
            c += vm.need(('V', tidx))
            c.extend(vreads)
        c.append('s_waitcnt lgkmcnt(0)')
        if after_v is not None: c += after_v()
        pv = []
        for s2 in range(2):
            for blk in range(4):
                r = KV0 + (s2*4 + blk)*4
                pv.append(f'v_mfma_f32_32x32x16_bf16 v[{O0+16*blk}:{O0+16*blk+15}], v[{r}:{r+3}], v[{P0+4*s2}:{P0+4*s2+3}], v[{O0+16*blk}:{O0+16*blk+15}]')
        vb = list(vblocks)
        per = -(-len(vb) // 8) if vb else 0
        for i in range(8):
            c.append(pv[i])
            for b in vb[i*per:(i+1)*per]: c.extend(b())
        if bump:
            c.append(f's_add_u32 s{sG}, s{sG}, 32768'); gbase[0] += 1
        return c
    def iss(kv, hb, tile_): return [(lambda u=u: issue(kv, hb, u, tile_, W)) for u in range(8)]

    if stage:
        def wrK():
            return vm.need(('K', 2)) + [f'ds_write_b128 v{vLIN}, v[{R0+4*u}:{R0+4*u+3}] offset:{16384 + 1024*u}' for u in range(8)]
        def wrV():
            return vm.need(('V', 2)) + [f'ds_write_b128 v{vLIN}, v[{R0+32+4*u}:{R0+32+4*u+3}] offset:{16384 + 8192 + 1024*u}' for u in range(8)]
        if WR:
            issr = lambda kv: [(lambda u=u: issue(kv, 0, u, 3, WR)) for u in range(8)]
            if startst: a('s_memrealtime s[80:81]\ns_waitcnt lgkmcnt(0)')
            if WRMODE == 0:
                a.ext(tile(0, 0, kblocks=issr('K'), vblocks=issr('V'), kfront=True))
            else:
                a.ext(tile(0, 0, kblocks=issr('K'), kfront=True))
            if startst: a('s_memrealtime s[82:83]\ns_waitcnt lgkmcnt(0)')
            if WRMODE == 0:
                a.ext(tile(1, 1, after_k=wrK, after_v=wrV))
            elif WRMODE == 1:
                a.ext(tile(1, 1, kblocks=issr('V'), kfront=True, after_k=wrK, after_v=wrV))
            else:
                a.ext(tile(1, 1, kblocks=issr('V'), after_k=wrK, after_v=wrV))
            if startst: a('s_memrealtime s[84:85]\ns_waitcnt lgkmcnt(0)')
        else:
            a.ext(tile(0, 0, kblocks=iss('K', 0, 3)))
            a.ext(tile(1, 1, kblocks=iss('V', 0, 3), after_k=wrK, after_v=wrV))
        a(f's_add_u32 s{sG}, s{sG}, {4*32768}'); gbase[0] = 4
        first_loop, nit, order = 2, 5, (1, 0)
    else:
        a(f's_add_u32 s{sG}, s{sG}, {2*32768}'); gbase[0] = 2
        first_loop, nit, order = 0, 6, (0, 1)
    a(f's_mov_b32 s{sCnt}, {nit}')
    if WHI: a(f's_mov_b32 s50, {THR0}')
    a('L_loop:')
    if loopst:
        a('s_mov_b32 s86, s84\ns_mov_b32 s84, s82\ns_mov_b32 s82, s80\ns_mov_b32 s80, s66\ns_memrealtime s[66:67]\ns_waitcnt lgkmcnt(0)')
    if WHI:
        if WHICNT is not None:
            a(f's_cmp_le_u32 s{sCnt}, {WHICNT}\ns_cbranch_scc1 L_fast')
        else:
            a('s_memrealtime s[48:49]\ns_waitcnt lgkmcnt(0)\ns_sub_u32 s48, s48, s62\ns_cmp_gt_u32 s48, s50\ns_cbranch_scc1 L_fast')
    force[0] = True
    snap = (list(vm.ops), vm.done, gbase[0])
    for hb in order:
        t = gbase[0]
        a.ext(tile(hb, None, kblocks=iss('K', hb, t), vblocks=iss('V', hb, t), inloop=True, bump=True))
    force[0] = False
    if WHI:
        a('s_branch L_next')
        a('L_fast:')
        after = (list(vm.ops), vm.done, gbase[0])
        vm.ops, vm.done, gbase[0] = list(snap[0]), snap[1], snap[2]
        def issue_hi(kv, hb, u, tile_):
            o = [f's_waitcnt vmcnt({WHI-1})']
            goff = (tile_ - gbase[0]) * 32768 + Bu(u)
            vd = vDK[u & 3] if kv == 'K' else vDV
            srd = SRD_K if kv == 'K' else SRD_V
            o.append(f's_add_u32 m0, s{sRing}, {hb*16384 + (8192 if kv=="V" else 0) + 1024*u}')
            o.append(f's_add_u32 s{sT}, s{sG}, {goff}')
            o.append(f'buffer_load_dwordx4 v{vd}, s[{srd}:{srd+3}], s{sT} offen {flags} lds')
            return o
        for hb in order:
            t = gbase[0]
            a.ext(tile(hb, None, kblocks=[(lambda u=u, hb=hb, t=t: issue_hi('K', hb, u, t)) for u in range(8)],
                       vblocks=[(lambda u=u, hb=hb, t=t: issue_hi('V', hb, u, t)) for u in range(8)], inloop=True, bump=True))
        vm.ops, vm.done, gbase[0] = after
        a('L_next:')
        a(f's_add_u32 s50, s50, {DTH}')
    if latewarm is not None:
        l = lab('noflag')
        a(f's_cmp_eq_u32 s{sCnt}, {latewarm}\ns_cbranch_scc0 {l}')
        a(f'v_mov_b32 v1, {CNT}\nv_mov_b32 v2, 1\nds_write_b32 v1, v2 offset:20')
        a(f'{l}:')
    a(f's_sub_u32 s{sCnt}, s{sCnt}, 1\ns_cmp_lg_u32 s{sCnt}, 0\ns_cbranch_scc1 L_loop')
    if loopst: a('s_memrealtime s[68:69]\ns_waitcnt lgkmcnt(0)')
    for it in range(1, nit):
        for hb in order:
            t = gbase[0]
            for u in range(8): vm.add(('K', t), True)
            for u in range(8): vm.add(('V', t), True)
            gbase[0] += 1
    vm.done = len(vm.ops) - max(W, WHI or 0)
    assert gbase[0] == 14, gbase
    hB, hA = order
    wl = wo_load_list(R0, 6) + wo_load_list(R0 + 32, 7)
    kb = []; vb = []
    for u in range(8):
        kb.append(lambda u=u: issue('K', hB, u, 14, WEND or W)); kb.append(other(wl[u], 'wo6'))
    for u in range(8):
        vb.append(lambda u=u: issue('V', hB, u, 14, WEND or W)); vb.append(other(wl[8+u], 'wo7'))
    a.ext(tile(hB, 12, kblocks=kb, vblocks=vb, bump=True))
    isse = lambda kv: [(lambda u=u: issue(kv, hA, u, 15, WEND or W)) for u in range(8)]
    a.ext(tile(hA, 13, kblocks=isse('K'), vblocks=isse('V'), bump=True))
    d8 = wo_dma_list(hB*16384, 8); d9 = wo_dma_list(hB*16384 + 8192, 9)
    def pretr():
        return vm.need('wo7') + transpose_inplace(R0, 1, 2) + transpose_inplace(R0 + 32, 1, 2)
    a.ext(tile(hB, 14, kblocks=[other(x, 'wo8') for x in d8], vblocks=[other(x, 'wo9') for x in d9], mid=pretr))
    offA = hA * 16384
    def ld10():
        o = []
        for x in wo_load_list(Q0, 10): vm.add('wo10'); o += x
        return o
    def prepub():
        o = [f'v_mov_b32 v1, v{vL}', 's_nop 1', f'v_permlane32_swap_b32 v1, v{vL}', 's_nop 1', f'v_add_f32 v{vL}, v{vL}, v1',
             'v_and_b32 v2, 31, v0', 'v_lshrrev_b32 v3, 5, v0',
             'v_lshlrev_b32 v4, 5, v2', f's_lshl_b32 s{sT}, s{sWave}, 2', f'v_add_u32 v4, s{sT}, v4', f'v_add_u32 v4, {ML}, v4',
             f'ds_write_b32 v4, v{vM}', f'ds_write_b32 v4, v{vL} offset:16',
             'v_lshlrev_b32 v4, 9, v2', f'v_add_u32 v4, s{sRing}, v4', 'v_and_b32 v5, 7, v2', 'v_xor_b32 v5, v5, v3']
        for j in range(4):
            o += [f'v_xor_b32 v6, {2*j}, v5', 'v_lshlrev_b32 v6, 4, v6', f'v_add_u32 v{T[j]}, v4, v6']
        return o + merge_addr(offA)
    a.ext(tile(hA, 15, after_qk=ld10, final=True, pre_v=prepub))
    stamp(3)
    for x in wo_load_list(KV0, 11): vm.add('wo11'); a.ext(x)
    for blk in range(4):
        for j in range(4):
            r = O0 + 16*blk + 4*j
            a(f'ds_write_b128 v{T[j]}, v[{r}:{r+3}] offset:{offA + 128*blk}')
    a('s_waitcnt lgkmcnt(0)')
    if LATE12 == 0:
        for x in wo_load_list(O0, 12): vm.add('wo12'); a.ext(x)
    if tailst: stamp(8)
    a('s_barrier')
    if tailst: stamp(9)
    def ld13():
        for x in wo_load_list(O0 + 32, 13): vm.add('wo13'); a.ext(x)
    merge_body(ld13 if M13 else None)
    a('s_waitcnt lgkmcnt(0)')
    a('s_barrier')
    stamp(4)
    if LATE12 == 1:
        for x in wo_load_list(O0, 12): vm.add('wo12'); a.ext(x)
    aACC, aTB, aAF = 8, [40, 44], [48, 52]
    if oprio: a(f's_setprio {oprio}')
    def rback(land, blk):
        a.ext(vm.need(f'wo{blk}'))
        for j in range(8):
            a(f'ds_read_b128 v[{land+4*j}:{land+4*j+3}], v{vLIN} offset:{hB*16384 + (blk-8)*8192 + 1024*j}')
    if M13: ld13 = lambda: None
    if AORD == 0:
        seq = [(6, R0), (7, R0 + 32), (10, Q0), (11, KV0), (8, R0), (9, R0 + 32), (12, O0), (13, O0 + 32)]
        waits = [0, 8, 8, 0, 0, 0, 0, 0]
        post = {0: lambda: rback(R0, 8), 1: lambda: (rback(R0 + 32, 9), ld13())}
    else:
        seq = [(10, Q0), (11, KV0), (6, R0), (12, O0), (8, Q0), (9, KV0), (7, R0 + 32), (13, O0 + 32)]
        waits = [0, 8, 8, 0, 0, 0, 0, 0]
        post = {0: lambda: rback(Q0, 8), 1: lambda: (rback(KV0, 9), ld13())}
    a(f'ds_read_b128 v[{aAF[0]}:{aAF[0]+3}], v{vACT} offset:{64*seq[0][0]}')
    for i, (s_, land) in enumerate(seq):
        if s_ not in (8, 9): a.ext(vm.need(f'wo{s_}'))
        a(f's_waitcnt lgkmcnt({waits[i]})')
        if i + 1 < len(seq): a(f'ds_read_b128 v[{aAF[(i+1)&1]}:{aAF[(i+1)&1]+3}], v{vACT} offset:{64*seq[i+1][0]}')
        if s_ in (6, 7):
            for e in range(8):
                c = '0' if i == 0 else f'v[{aACC+4*e}:{aACC+4*e+3}]'
                a(f'v_mfma_f32_16x16x32_bf16 v[{aACC+4*e}:{aACC+4*e+3}], v[{aAF[i&1]}:{aAF[i&1]+3}], v[{land+4*e}:{land+4*e+3}], {c}')
        else:
            a.ext(mm_block(land, aTB, [aAF[i & 1]], [aACC], first=(i == 0)))
        if i in post: post[i]()
        if opst and i in (1, 3, 5, 6): stamp({1: 8, 3: 9, 5: 11, 6: 1}[i])
    a('s_nop 7')
    for e in range(8):
        a(f'ds_write_b128 v{vLIN}, v[{aACC+4*e}:{aACC+4*e+3}] offset:{offA + e*1024}')
    a('s_waitcnt lgkmcnt(0)')
    if tailst: stamp(10)
    a('s_barrier')
    if stamps: a('s_branch L_stamps')
    else: a('s_endpgm')

    a('L_pwave:')
    a('s_mov_b32 s3, 1')
    if AFIRST: a('s_barrier')
    if pprio: a('s_setprio 3')
    if x_noq: a('s_branch L_noq')
    sPW, sGQ, sHQ, sRot = sNW, 42, 43, 39
    a(f's_lshr_b32 s{sGQ}, s{sB}, 2\ns_and_b32 s{sHQ}, s{sB}, 3\ns_and_b32 s{sRot}, s{sGQ}, 3')
    SRD_W, SRD_X = 24, 28
    XF, TB, ACC, LAND = 12, [44, 48], 56, 120
    vW, vX = 8, 9
    a(f's_mov_b32 s{SRD_X}, s{sX}\ns_and_b32 s{SRD_X+1}, s{sX+1}, 0xffff\ns_mov_b32 s{SRD_X+2}, 262144\ns_mov_b32 s{SRD_X+3}, 0x20000')
    a(f'v_and_b32 v2, 15, v0\nv_lshrrev_b32 v3, 4, v0\nv_lshlrev_b32 v4, 10, v2\nv_lshlrev_b32 v5, 4, v3\nv_add_u32 v{vX}, v4, v5')
    if x_xcontig: a(f'v_lshlrev_b32 v{vX}, 4, v0')
    a(f'v_lshlrev_b32 v4, 16, v3\nv_lshlrev_b32 v5, 4, v2\nv_add_u32 v{vW}, v4, v5')
    a(f's_lshl_b32 s{sT}, s{sH}, 2\ns_add_u32 s{sT}, s{sT}, s{sHQ}\ns_lshl_b32 s{sT}, s{sT}, 8')
    a(f's_add_u32 s{SRD_W}, s{sWq}, s{sT}\ns_addc_u32 s{SRD_W+1}, s{sWq+1}, 0\ns_and_b32 s{SRD_W+1}, s{SRD_W+1}, 0xffff')
    a(f's_sub_u32 s{SRD_W+2}, 4194304, s{sT}\ns_mov_b32 s{SRD_W+3}, 0x20000')
    for sg in range(4): a(f's_add_u32 s{48+sg}, s{sRot}, {sg}\ns_and_b32 s{48+sg}, s{48+sg}, 3')
    a(f's_and_b32 s{sT}, s{sPW}, 1')
    a(f's_lshl_b32 s52, s{sGQ}, 15\ns_lshl_b32 s{sT2}, s{sT}, 14\ns_add_u32 s52, s52, s{sT2}\ns_lshl_b32 s{sT2}, s{sPW}, 8\ns_add_u32 s52, s52, s{sT2}')
    a(f's_xor_b32 s53, s52, 16384')
    if QPF:
        a(f'v_lshrrev_b32 v4, 4, v0\nv_lshlrev_b32 v4, 13, v4\nv_and_b32 v5, 15, v0\nv_lshlrev_b32 v5, 4, v5\nv_add_u32 v4, v4, v5')
        a(f's_lshl_b32 s{sT2}, s{sGQ}, 2\ns_add_u32 s{sT2}, s{sT2}, s{sPW}\ns_lshl_b32 s{sT2}, s{sT2}, 17')
        for i in range(4):
            a(f's_add_u32 s{sT}, s{sT2}, {i*4*8192}')
            a(f'buffer_load_dwordx4 v[{LAND+4*i}:{LAND+4*i+3}], v4, s[{SRD_W}:{SRD_W+3}], s{sT} offen {wqflags}')
        a('v_lshlrev_b32 v5, 4, v0')
        a(f's_lshl_b32 s{sT2}, s{sGQ}, 5\ns_lshl_b32 s{sT}, s{sHQ}, 3\ns_add_u32 s{sT2}, s{sT2}, s{sT}\ns_lshl_b32 s{sT}, s{sPW}, 1\ns_add_u32 s{sT2}, s{sT2}, s{sT}\ns_lshl_b32 s{sT2}, s{sT2}, 10')
        for i in range(2):
            a(f'buffer_load_dwordx4 v[{LAND+16+4*i}:{LAND+16+4*i+3}], v5, s[{SRD_X}:{SRD_X+3}], s{sT2} offen offset:{i*1024} {xflags}')
        a('s_waitcnt vmcnt(0)')
        if QPFSLEEP: a(f's_sleep {QPFSLEEP}')
    npl = [0]
    def pthrottle():
        if PWIN and npl[0] >= PWIN: a(f's_waitcnt vmcnt({PWIN-1})')
        npl[0] += 1
    if XDMA:
        a('v_lshrrev_b32 v2, 4, v0\nv_and_b32 v3, 15, v0\nv_xor_b32 v4, v2, v3\nv_lshlrev_b32 v5, 10, v2')
        for t in range(4):
            a(f'v_xor_b32 v6, {4*t}, v4\nv_lshlrev_b32 v6, 4, v6\nv_add_u32 v{248+t}, v5, v6')
        a(f's_lshl_b32 s52, s{sGQ}, 15\ns_lshl_b32 s{sT2}, s{sPW}, 8\ns_add_u32 s52, s52, s{sT2}')
        a(f's_lshl_b32 s53, s{sPW}, 15\ns_add_u32 s53, s53, 24576')
        for t in range(8):
            a(f's_add_u32 m0, s53, {1024*t}\ns_add_u32 s{sT}, s52, {4096*t}')
            a(f'buffer_load_dwordx4 v{248 + (t & 3)}, s[{SRD_X}:{SRD_X+3}], s{sT} offen {xflags} lds')
    else:
        for sg in range(4):
            for rho in range(2):
                r = XF + (rho*4 + sg)*4
                a(f's_lshl_b32 s{sT}, s{48+sg}, 6\ns_add_u32 s{sT}, s{sT}, s{52+rho}')
                pthrottle()
                if not x_noload: a(f'buffer_load_dwordx4 v[{r}:{r+3}], v{vX}, s[{SRD_X}:{SRD_X+3}], s{sT} offen {xflags}')
    for sg in range(4):
        a(f's_lshl_b32 s{sT2}, s{sPW}, 2\ns_add_u32 s{sT2}, s{sT2}, s{48+sg}\ns_lshl_b32 s{sT2}, s{sT2}, 18')
        for j in range(8):
            r = LAND + sg*32 + 4*j
            a(f's_add_u32 s{sT}, s{sT2}, {j*8192}')
            pthrottle()
            if x_halfw and sg >= 2: continue
            if not x_noload: a(f'buffer_load_dwordx4 v[{r}:{r+3}], v{vW}, s[{SRD_W}:{SRD_W+3}], s{sT} offen {wqflags}')
    if AGATE is not None:
        a(f'v_mov_b32 v6, {CNT}\nv_mov_b32 v7, 1'); lds_inc(24, 6, 7)
    if XDMA:
        a('v_and_b32 v2, 15, v0\nv_lshrrev_b32 v3, 4, v0')
        a('v_and_b32 v4, 3, v2\nv_xor_b32 v4, v4, v3\nv_lshlrev_b32 v4, 4, v4\nv_lshlrev_b32 v5, 8, v2\nv_add_u32 v4, v4, v5')
        a(f's_and_b32 s{sT}, s{sPW}, 1\ns_lshl_b32 s{sT}, s{sT}, 12\ns_add_u32 s{sT}, s{sT}, s53\nv_add_u32 v4, s{sT}, v4')
        a('v_lshrrev_b32 v5, 2, v2')
        for sg in range(4):
            a(f'v_xor_b32 v6, s{48+sg}, v5\nv_lshlrev_b32 v6, 6, v6\nv_add_u32 v{248+sg}, v4, v6')
    if stamps: a('s_memrealtime s[80:81]')
    if XDMA:
        a('s_waitcnt vmcnt(32)')
        for sg in range(4):
            r0 = XF + sg*4; r1 = XF + (4 + sg)*4
            a(f'ds_read_b128 v[{r0}:{r0+3}], v{248+sg}')
            a(f'v_xor_b32 v6, 4096, v{248+sg}\nds_read_b128 v[{r1}:{r1+3}], v6')
        a('s_waitcnt lgkmcnt(0)')
        a(f'v_mov_b32 v6, {CNT}\nv_mov_b32 v7, 1'); lds_inc(28, 6, 7)
    for sg in range(4):
        a(f's_waitcnt vmcnt({24 - 8*sg})')
        a.ext(mm_block(LAND + sg*32, TB, [XF + sg*4, XF + (4+sg)*4], [ACC, ACC + 32], first=(sg == 0)))
    if stamps: a('s_memrealtime s[82:83]')
    def region(dst, sTile, sK):
        a(f's_mul_i32 s{dst}, s{sTile}, 3\ns_add_u32 s{dst}, s{dst}, s{sK}')
        a(f's_lshl_b32 s{sT}, s{dst}, 15\ns_add_u32 s{sT}, s{sT}, 24576')
        a(f's_sub_u32 s{sT2}, s{dst}, 4\ns_lshl_b32 s{sT2}, s{sT2}, 13\ns_add_u32 s{sT2}, s{sT2}, 131072')
        a(f's_cmp_lt_u32 s{dst}, 4\ns_cselect_b32 s{dst}, s{sT}, s{sT2}')
    a(f's_sub_u32 s54, s{sPW}, 1\ns_cmp_lt_u32 s{sPW}, 2\ns_cselect_b32 s54, 0, s54')
    a(f's_and_b32 s55, s{sPW}, 1')
    a(f's_xor_b32 s56, s55, 1')
    if XDMA:
        a(f'v_mov_b32 v6, {CNT}')
        lds_spin(28, 4, 6, 5)
    region(57, 56, 54)
    a('v_lshlrev_b32 v1, 4, v0')
    a('v_add_u32 v2, s57, v1')
    for e in range(8):
        r = ACC + 32 + 4*e
        a(f'ds_write_b128 v2, v[{r}:{r+3}] offset:{e*1024}')
    lown = lab('owner')
    a(f's_cmp_lt_u32 s{sPW}, 2\ns_cbranch_scc1 {lown}')
    region(57, 55, 54)
    a('v_add_u32 v2, s57, v1')
    for e in range(8):
        r = ACC + 4*e
        a(f'ds_write_b128 v2, v[{r}:{r+3}] offset:{e*1024}')
    a(f'{lown}:')
    a(f's_waitcnt lgkmcnt(0)')
    a(f'v_mov_b32 v6, {CNT}\nv_mov_b32 v7, 1')
    lds_inc(0, 6, 7)
    lqwait = lab('qwait')
    a(f's_cmp_ge_u32 s{sPW}, 2\ns_cbranch_scc1 {lqwait}')
    RD = LAND
    for k in range(3):
        a(f's_mov_b32 s58, {k}')
        region(57, 55, 58)
        a(f'v_add_u32 v{2+k}, s57, v1')
    lds_spin(0, 4, 6, 5)
    for k in range(3):
        for e in range(8):
            r = RD + k*32 + 4*e
            a(f'ds_read_b128 v[{r}:{r+3}], v{2+k} offset:{e*1024}')
    a('v_and_b32 v8, 15, v0\nv_lshrrev_b32 v9, 4, v0')
    a('v_lshrrev_b32 v10, 1, v9\nv_lshlrev_b32 v10, 17, v10\nv_and_b32 v11, 1, v9')
    a('v_lshlrev_b32 v4, 10, v11\nv_add_u32 v4, v4, v10\nv_lshlrev_b32 v5, 4, v8\nv_add_u32 v4, v4, v5')
    a('v_lshlrev_b32 v5, 5, v11\nv_add_u32 v5, v5, v10\nv_lshlrev_b32 v3, 3, v8\nv_add_u32 v5, v5, v3\nv_add_u32 v5, 8192, v5')
    a(f's_lshl_b32 s{sT}, s{sGQ}, 2\ns_lshl_b32 s{sT2}, s55, 1\ns_add_u32 s{sT}, s{sT}, s{sT2}\ns_lshl_b32 s{sT}, s{sT}, 3\ns_add_u32 s{sT}, s{sT}, s{sH}\ns_lshl_b32 s{sT}, s{sT}, 14')
    a(f's_add_u32 s58, s{sWs}, s{sT}\ns_addc_u32 s59, s{sWs+1}, 0')
    if WS_QX: a(f's_add_u32 s58, s58, {WS_QX}\ns_addc_u32 s59, s59, 0')
    a(f's_lshl_b32 s{sT}, s{sHQ}, 11\nv_add_u32 v4, s{sT}, v4\ns_lshl_b32 s{sT}, s{sHQ}, 6\nv_add_u32 v5, s{sT}, v5')
    a(f's_lshr_b32 s{sT}, s{sHQ}, 1\ns_and_b32 s{sT2}, s{sHQ}, 1')
    a(f's_cmp_eq_u32 s{sT2}, 0\ns_cselect_b32 s50, -1, 0\ns_cselect_b32 s51, 0, -1')
    a(f's_cmp_eq_u32 s{sT}, s55\ns_cselect_b32 s50, s50, 0\ns_cselect_b32 s51, s51, 0\ns_not_b64 s[52:53], s[50:51]')
    a(f's_lshl_b32 s{sT}, s{sHQ}, 3\nv_lshlrev_b32 v3, 2, v11\nv_add_u32 v3, s{sT}, v3')
    for r in range(4):
        a(f'v_add_u32 v2, {r}, v3\nv_and_b32 v1, 15, v2\nv_xor_b32 v1, v1, v8\nv_lshlrev_b32 v1, 4, v1\nv_lshlrev_b32 v2, 8, v2\nv_add_u32 v1, v1, v2\nv_add_u32 v{248+r}, {QBUF}, v1')
    a('s_waitcnt lgkmcnt(0)')
    lds_inc(4, 6, 7)
    for i in range(32): a(f'v_add_f32 v{ACC+i}, v{ACC+i}, v{RD+i}')
    for i in range(32): a(f'v_add_f32 v{RD+32+i}, v{RD+32+i}, v{RD+64+i}')
    for i in range(32): a(f'v_add_f32 v{ACC+i}, v{ACC+i}, v{RD+32+i}')
    X = RD + 16
    for r in range(4):
        d = RD + 4*r
        for p in range(4):
            a(f'v_cvt_pk_bf16_f32 v{d+p}, v{ACC+4*(2*p)+r}, v{ACC+4*(2*p+1)+r}')
    a('s_mov_b64 exec, s[52:53]')
    if not x_nost:
        for r in range(4):
            a(f'global_store_dwordx4 v4, v[{RD+4*r}:{RD+4*r+3}], s[58:59] offset:{256*r} {qst}')
    a('s_mov_b64 exec, -1')
    for r in range(4):
        d = RD + 4*r
        a(f'v_xor_b32 v{X+r}, v{d}, v{d+1}\nv_xor_b32 v{X+4+r}, v{d+2}, v{d+3}')
    for r in range(4): a(f'v_xor_b32 v{X+r}, v{X+r}, v{X+4+r}')
    for step in (8, 4, 2, 1):
        for r in range(4): a(f'v_xor_b32_dpp v{X+r}, v{X+r}, v{X+r} row_ror:{step} row_mask:0xf bank_mask:0xf')
    for r in range(1, 4):
        m = 0x00010001 << r
        a(f's_mov_b32 s56, {hex(m)}\ns_mov_b32 s57, {hex(m)}\nv_cndmask_b32 v{X}, v{X}, v{X+r}, s[56:57]')
    a(f'v_mov_b32 v{X+8}, s62\nv_xor_b32 v{X+9}, s61, v{X}')
    a('s_mov_b32 s56, 0x000f000f\ns_mov_b32 s57, 0x000f000f\ns_and_b64 exec, s[56:57], s[52:53]')
    if not x_nost: a(f'global_store_dwordx2 v5, v[{X+8}:{X+9}], s[58:59] {qst}')
    a('s_mov_b64 exec, -1')
    lnl = lab('nolocal')
    a(f's_cmp_eq_u64 s[50:51], 0\ns_cbranch_scc1 {lnl}')
    lds_spin(4, 2, 6, 2)
    a('s_mov_b64 exec, s[50:51]')
    for r in range(4): a(f'ds_write_b128 v{248+r}, v[{RD+4*r}:{RD+4*r+3}]')
    a('s_mov_b64 exec, -1')
    if debug:
        a(f's_lshl_b32 s{sT}, s2, 13\ns_add_u32 s{sT}, s{sT}, {WS_QDUMP}')
        a('s_mov_b64 exec, s[50:51]')
        for r in range(4):
            a(f'v_add_u32 v2, {r}, v3\nv_lshlrev_b32 v2, 8, v2\nv_lshlrev_b32 v1, 4, v8\nv_add_u32 v2, v2, v1\nv_add_u32 v2, s{sT}, v2')
            a(f'global_store_dwordx4 v2, v[{RD+4*r}:{RD+4*r+3}], s[{sWs}:{sWs+1}]')
        a('s_mov_b64 exec, -1')
    a(f'{lnl}:')
    if stamps: a('s_memrealtime s[86:87]')
    if QACK:
        a('s_waitcnt vmcnt(0)')
        a(f'v_mov_b32 v6, {CNT}\nv_mov_b32 v7, 1')
        lds_inc(8, 6, 7)
    a(f'{lqwait}:')
    if stamps: a('s_memrealtime s[84:85]')
    lq = lab('qpoll'); lqd = lab('qdone'); lqs = lab('qskip')
    a(f's_cmp_eq_u32 s{sPW}, s{sHQ}\ns_cbranch_scc1 {lqs}')
    a(f's_lshl_b32 s{sT}, s2, 14')
    a(f's_add_u32 s58, s{sWs}, s{sT}\ns_addc_u32 s59, s{sWs+1}, 0')
    if WS_QX: a(f's_add_u32 s58, s58, {WS_QX}\ns_addc_u32 s59, s59, 0')
    a(f's_lshl_b32 s{sT}, s{sPW}, 11\nv_lshlrev_b32 v1, 4, v0\nv_add_u32 v1, s{sT}, v1')
    a(f'v_lshrrev_b32 v2, 4, v0\nv_and_b32 v3, 15, v0\ns_lshl_b32 s{sT}, s{sPW}, 3\nv_add_u32 v2, s{sT}, v2')
    a('v_lshlrev_b32 v4, 3, v2\nv_add_u32 v4, 8192, v4')
    for u in range(2):
        a(f'v_add_u32 v5, {4*u}, v2\nv_and_b32 v6, 15, v5\nv_xor_b32 v6, v6, v3\nv_lshlrev_b32 v6, 4, v6\nv_lshlrev_b32 v5, 8, v5\nv_add_u32 v5, v5, v6\nv_add_u32 v{32+u}, {QBUF}, v5')
    a(f'v_mov_b32 v6, {CNT}')
    if QACK:
        lds_spin(8, 2, 6, 5)
        if QPRE: a(f's_sleep {QPRE}')
    else:
        lds_spin(4, 2, 6, 5)
        if QPRE: a(f's_sleep {QPRE}')
    if QGATE is not None: lds_spin(24, 4, 6, 5)
    a(f's_mov_b32 s57, {SPIN_MAX}')
    if x_nopoll: a(f's_branch {lqd}')
    a(f'{lq}:')
    for u in range(2): a(f'global_load_dwordx4 v[{12+4*u}:{15+4*u}], v1, s[58:59] offset:{1024*u} {qld}')
    for u in range(2): a(f'global_load_dwordx2 v[{20+2*u}:{21+2*u}], v4, s[58:59] offset:{32*u} {qld}')
    a('s_waitcnt vmcnt(0)')
    for u in range(2): a(f'v_xor_b32 v{24+u}, v{12+4*u}, v{13+4*u}\nv_xor_b32 v{26+u}, v{14+4*u}, v{15+4*u}')
    for u in range(2): a(f'v_xor_b32 v{24+u}, v{24+u}, v{26+u}')
    for u in range(2): a(f'v_subrev_u32 v{26+u}, s60, v{20+2*u}\nv_lshrrev_b32 v{26+u}, 12, v{26+u}')
    for step in (8, 4, 2, 1):
        for u in range(2): a(f'v_xor_b32_dpp v{24+u}, v{24+u}, v{24+u} row_ror:{step} row_mask:0xf bank_mask:0xf')
        a('s_nop 0')
    for u in range(2): a(f'v_xor_b32 v{24+u}, v{24+u}, v{20+2*u}\nv_xor_b32 v{24+u}, v{24+u}, v{21+2*u}\nv_xor_b32 v{24+u}, {hex(TAGK)}, v{24+u}')
    a('v_or3_b32 v28, v24, v25, v26\nv_or_b32 v28, v28, v27')
    a(f'v_cmp_ne_u32 vcc, 0, v28\ns_cbranch_vccz {lqd}')
    a(f's_sub_u32 s57, s57, 1\ns_cmp_eq_u32 s57, 0\ns_cbranch_scc1 {lqd}\ns_sleep {QSLEEP}\ns_branch {lq}')
    a(f'{lqd}:')
    for u in range(2): a(f'ds_write_b128 v{32+u}, v[{12+4*u}:{15+4*u}]')
    if debug:
        a(f's_lshl_b32 s{sT}, s2, 13\ns_add_u32 s{sT}, s{sT}, {WS_QDUMP}\nv_add_u32 v1, s{sT}, v1')
        for u in range(2): a(f'global_store_dwordx4 v1, v[{12+4*u}:{15+4*u}], s[{sWs}:{sWs+1}] offset:{1024*u}')
    a(f'{lqs}:')
    a('s_waitcnt lgkmcnt(0)')
    if x_noq: a('L_noq:')
    if pprio: a('s_setprio 0')
    stamp(1)
    a('s_barrier')
    stamp(2)
    for _ in range(PLDELAY): a('s_sleep 32')
    HOLD = 56; PL = 12
    a(f's_lshl_b32 s{sT}, s{sH}, 19')
    a(f's_add_u32 s48, s{sWo}, s{sT}\ns_addc_u32 s49, s{sWo+1}, 0\ns_and_b32 s49, s49, 0xffff\ns_mov_b32 s50, 524288\ns_mov_b32 s51, 0x20000')
    a(f's_lshl_b32 s{sT2}, s{sB}, 4\ns_lshl_b32 s52, s{sPW}, 2\ns_add_u32 s{sT2}, s{sT2}, s52\ns_lshl_b32 s{sT2}, s{sT2}, 10')
    a('v_lshlrev_b32 v1, 4, v0')
    if latewarm is not None:
        l2 = lab('wdone')
        a(f's_cmp_ge_u32 s{sB}, {2*NHOLD}\ns_cbranch_scc1 {l2}')
        for i in range(4): a(f'buffer_load_dwordx4 v[{PL+4*i}:{PL+4*i+3}], v1, s[48:51], s{sT2} offen offset:{i*1024} nt')
        a(f'{l2}:')
    elif wosplit:
        l1 = lab('wdef'); l2 = lab('wdone')
        a(f's_cmp_ge_u32 s{sB}, {2*NHOLD}\ns_cbranch_scc1 {l1}')
        for i in range(4): a(f'buffer_load_dwordx4 v[{PL+4*i}:{PL+4*i+3}], v1, s[48:51], s{sT2} offen offset:{i*1024} nt')
        a(f's_branch {l2}\n{l1}:')
        for i in range(4): a(f'buffer_load_dwordx4 v[{PL+4*i}:{PL+4*i+3}], v1, s[48:51], s{sT2} offen offset:{i*1024}')
        a(f'{l2}:')
    else:
        for i in range(4):
            a(f'buffer_load_dwordx4 v[{PL+4*i}:{PL+4*i+3}], v1, s[48:51], s{sT2} offen offset:{i*1024} {woflags if warmflags is None else warmflags}')
    a('s_waitcnt vmcnt(0)')
    for s in range(NHOLD):
        for j, x in enumerate(wo_load_list(PL, s)):
            if plflags is not None: x = [y + ' ' + plflags if y.startswith('buffer_load') else y for y in x]
            a.ext(x)
            if (j + 1) % PTH == 0: a('s_waitcnt vmcnt(0)')
        a('s_waitcnt vmcnt(0)')
        for e in range(8):
            m = e >> 1; sel = SEL_LO + (e & 1)
            for p in range(4):
                a(f'v_perm_b32 v{HOLD+s*32+4*e+p}, v{PL+4*(2*p+1)+m}, v{PL+4*(2*p)+m}, s{sel}')
    if latewarm is not None:
        a(f'v_mov_b32 v6, {CNT}')
        lw = lab('wwait')
        a(f'{lw}:\ns_sleep 8\nds_read_b32 v5, v6 offset:20\ns_waitcnt lgkmcnt(0)\nv_readfirstlane_b32 s{sT}, v5\ns_cmp_ge_u32 s{sT}, 1\ns_cbranch_scc0 {lw}')
        a('v_lshlrev_b32 v1, 4, v0')
        a(f's_mul_i32 s52, s{sB}, 10\ns_mul_i32 s53, s{sPW}, 3')
        for i in range(3):
            a(f's_add_u32 s54, s53, {i}\ns_add_u32 s{sT}, s52, s54\ns_add_u32 s{sT}, s{sT}, {32*NHOLD}\ns_lshl_b32 s{sT}, s{sT}, 10\ns_cmp_lt_u32 s54, 10\ns_cselect_b32 s{sT}, s{sT}, 0x400000')
            a(f'buffer_load_dwordx4 v[{PL+4*i}:{PL+4*i+3}], v1, s[48:51], s{sT} offen {lateflags}')
        a('s_waitcnt vmcnt(0)')
    a.ext(merge_addr(hA * 16384))
    offA = hA * 16384
    a(f's_mov_b32 s{sC}, {hex(f2u(C_SCALE))}')
    stamp(3)
    a('s_barrier')
    if tailst: stamp(8)
    merge_body()
    a('s_waitcnt lgkmcnt(0)')
    if tailst: stamp(9)
    a('s_barrier')
    stamp(4)
    pACC = 12; pAF = [44, 48]; pTB = [52, 248]
    if debug: a('s_waitcnt vmcnt(0)')
    a(f'ds_read_b128 v[{pAF[0]}:{pAF[0]+3}], v{vACT}')
    order_s = [0, 1, 2, 3, 4, 5, 14, 15]
    for i, s in enumerate(order_s):
        a('s_waitcnt lgkmcnt(0)')
        if i + 1 < 8: a(f'ds_read_b128 v[{pAF[(i+1)&1]}:{pAF[(i+1)&1]+3}], v{vACT} offset:{64*order_s[i+1]}')
        if s < 6:
            for e in range(8):
                c = '0' if i == 0 else f'v[{pACC+4*e}:{pACC+4*e+3}]'
                a(f'v_mfma_f32_16x16x32_bf16 v[{pACC+4*e}:{pACC+4*e+3}], v[{pAF[i&1]}:{pAF[i&1]+3}], v[{HOLD+s*32+4*e}:{HOLD+s*32+4*e+3}], {c}')
            for k in range(2):
                if P14AT[k] == s:
                    for x in wo_load_list(HOLD + k*32, 14 + k): a.ext(x)
        else:
            if opst and s == 14: stamp(8)
            a(f's_waitcnt vmcnt({8 if s == 14 else 0})')
            if opst: stamp(9 if s == 14 else 11)
            a.ext(mm_block(HOLD + (s-14)*32, pTB, [pAF[i & 1]], [pACC]))
    a('v_and_b32 v2, 15, v0\nv_lshrrev_b32 v3, 4, v0\nv_and_b32 v3, 1, v3\nv_lshrrev_b32 v5, 5, v0')
    a('v_lshrrev_b32 v4, 3, v2\nv_lshlrev_b32 v4, 14, v4\nv_lshlrev_b32 v6, 9, v3\nv_add_u32 v4, v4, v6\nv_lshlrev_b32 v6, 8, v5\nv_add_u32 v4, v4, v6\nv_and_b32 v6, 7, v2\nv_lshlrev_b32 v6, 4, v6\nv_add_u32 v4, v4, v6')
    a(f's_lshl_b32 s{sT}, s{sB}, 3\ns_lshl_b32 s{sT2}, s{sNW}, 1\ns_add_u32 s{sT}, s{sT}, s{sT2}\ns_lshl_b32 s{sT}, s{sT}, 14\ns_lshl_b32 s{sT2}, s{sH}, 11\ns_add_u32 s{sT}, s{sT}, s{sT2}\ns_add_u32 s{sT}, s{sT}, {WS_MB}')
    a(f's_add_u32 s58, s{sWs}, s{sT}\ns_addc_u32 s59, s{sWs+1}, 0')
    a(f's_lshl_b32 s{sT}, s{sNW}, 15\nv_lshlrev_b32 v1, 4, v0\nv_add_u32 v1, s{sT}, v1')
    RA = 120; SM = 152; GR = 184; HH = 200
    for g in range(4): a(f'v_mov_b32 v{GR+4*g+3}, s62')
    a('v_lshrrev_b32 v8, 4, v0\nv_and_b32 v8, 1, v8\nv_lshrrev_b32 v9, 3, v0\nv_and_b32 v9, 1, v9\nv_and_b32 v10, 7, v0\nv_lshrrev_b32 v7, 5, v0')
    a('v_lshlrev_b32 v11, 10, v8\nv_lshlrev_b32 v6, 7, v9\nv_add_u32 v11, v11, v6\nv_lshlrev_b32 v6, 4, v10\nv_add_u32 v11, v11, v6\nv_lshlrev_b32 v6, 11, v7\nv_add_u32 v11, v11, v6')
    for t in range(1, 4): a(f'v_add_u32 v{208+t}, {4096*t}, v11')
    a(f's_lshl_b32 s{sT}, s2, 14\ns_lshl_b32 s{sT2}, s{sNW}, 8\ns_add_u32 s{sT}, s{sT}, s{sT2}\ns_add_u32 s{sT}, s{sT}, {WS_MB}')
    a(f's_add_u32 s56, s{sWs}, s{sT}\ns_addc_u32 s57, s{sWs+1}, 0')
    a(f's_lshl_b32 s{sT}, s{sB}, 3\ns_lshl_b32 s{sT2}, s{sNW}, 1\ns_add_u32 s{sT}, s{sT}, s{sT2}\ns_lshl_b32 s{sT}, s{sT}, 10\ns_lshl_b32 s{sT2}, s{sH}, 7\ns_add_u32 s{sT}, s{sT}, s{sT2}')
    a(f'v_lshlrev_b32 v212, 10, v9\nv_lshlrev_b32 v6, 4, v10\nv_add_u32 v212, v212, v6\nv_lshlrev_b32 v6, 3, v8\nv_add_u32 v212, v212, v6\nv_add_u32 v212, s{sT}, v212')
    a('s_mov_b32 s54, 0xffff0000')
    if tailst: stamp(10)
    a('s_barrier')
    stamp(5)
    for e in range(8): a(f'ds_read_b128 v[{RA+4*e}:{RA+4*e+3}], v1 offset:{offA + e*1024}')
    for hfw, wait in ((0, 4), (1, 0)):
        a(f's_waitcnt lgkmcnt({wait})')
        for e in range(4*hfw, 4*hfw + 4):
            for r in range(4):
                a(f'v_add_f32 v{SM+8*r+e}, v{pACC+4*e+r}, v{RA+4*e+r}')
        p = hfw
        for rs in range(2):
            g = GR + 4*(2*rs + p); h = HH + 2*(2*rs + p)
            for x in range(2):
                a(f'v_cvt_pk_bf16_f32 v{g+x}, v{SM+8*rs+4*p+2*x}, v{SM+8*rs+4*p+2*x+1}')
                a(f'v_cvt_pk_bf16_f32 v{h+x}, v{SM+8*(rs+2)+4*p+2*x}, v{SM+8*(rs+2)+4*p+2*x+1}')
    a('s_nop 1')
    for rs in range(2):
        for p in range(2):
            g = GR + 4*(2*rs + p); h = HH + 2*(2*rs + p)
            a(f'v_permlane32_swap_b32 v{g}, v{h}\nv_permlane32_swap_b32 v{g+1}, v{h+1}')
    for rs in range(2):
        for p in range(2):
            g = GR + 4*(2*rs + p)
            a.ext(make_granule(g))
            a(f'global_store_dwordx4 v4, v[{g}:{g+3}], s[58:59] offset:{p*1024 + rs*128} sc1')
    if tailst: stamp(11)
    a(f's_mov_b32 s55, {SPIN_MAX}')
    if RPRE: a(f's_sleep {RPRE}')
    lp = lab('rpoll'); ld = lab('rdone')
    a(f'{lp}:')
    for t in range(4):
        va = 11 if t == 0 else 208 + t
        a(f'global_load_dwordx4 v[{12+4*t}:{15+4*t}], v{va}, s[56:57] sc1')
    a('s_waitcnt vmcnt(0)')
    for t in range(4): a.ext(check_granule(12+4*t, 44, 45, t == 0))
    a(f'v_cmp_ne_u32 vcc, 0, v44\ns_cbranch_vccz {ld}')
    a(f's_sub_u32 s55, s55, 1\ns_cmp_eq_u32 s55, 0\ns_cbranch_scc1 {ld}\n' + (f's_sleep {RSLEEP}\n' if RSLEEP else '') + f's_branch {lp}')
    a(f'{ld}:')
    if tailst: a(f's_sub_u32 s78, {SPIN_MAX}, s55')
    for t in range(4):
        g = 12 + 4*t
        d = 28 if t == 0 else 32
        a(f'v_lshlrev_b32 v{d}, 16, v{g}\nv_and_b32 v{d+1}, s54, v{g}\nv_lshlrev_b32 v{d+2}, 16, v{g+1}\nv_and_b32 v{d+3}, s54, v{g+1}')
        if t:
            for k in range(4): a(f'v_add_f32 v{28+k}, v{28+k}, v{32+k}')
    for k in range(4): a(f'v_mov_b32 v{32+k}, v{28+k}')
    a('s_nop 1')
    for k in range(4): a(f'v_permlane32_swap_b32 v{28+k}, v{32+k}')
    a('s_nop 0')
    for k in range(4): a(f'v_add_f32 v{28+k}, v{28+k}, v{32+k}')
    a('v_cvt_pk_bf16_f32 v28, v28, v29\nv_cvt_pk_bf16_f32 v29, v30, v31')
    a('s_mov_b32 exec_lo, -1\ns_mov_b32 exec_hi, 0')
    a(f'global_store_dwordx2 v212, v[28:29], s[{sOut}:{sOut+1}] {outfl}')
    a('s_mov_b64 exec, -1')
    if stamps:
        stamp(6)
        a('L_stamps:')
        a('s_waitcnt lgkmcnt(0)')
        a(f's_lshl_b32 s{sT}, s2, 3\ns_add_u32 s{sT}, s{sT}, s{sWave}\ns_lshl_b32 s{sT}, s{sT}, 6\ns_add_u32 s{sT}, s{sT}, {WS_STAMP}\nv_mov_b32 v3, s{sT}')
        a('s_mov_b32 exec_lo, 1\ns_mov_b32 exec_hi, 0')
        for q in range(3):
            regs = [64+2*(4*q+i) for i in range(4)]
            a('\n'.join(f'v_mov_b32 v{4+i}, s{regs[i]}' for i in range(4)))
            a(f'global_store_dwordx4 v3, v[4:7], s[{sWs}:{sWs+1}] offset:{16*q}\ns_nop 1')
    a('L_end:\ns_endpgm')
    a.raw('.section .rodata,"a"\n.p2align 6')
    a.raw(f'.amdhsa_kernel {K}')
    a.raw('  .amdhsa_next_free_vgpr 256\n  .amdhsa_next_free_sgpr 96\n  .amdhsa_accum_offset 256')
    a.raw('  .amdhsa_group_segment_fixed_size 0\n  .amdhsa_kernarg_size 64\n  .amdhsa_user_sgpr_count 2\n  .amdhsa_user_sgpr_kernarg_segment_ptr 1\n  .amdhsa_system_sgpr_workgroup_id_x 1')
    a.raw('.end_amdhsa_kernel')
    return a.text()

if __name__ == '__main__':
    kw = json.loads(sys.argv[2]) if len(sys.argv) > 2 else {}
    open(sys.argv[1], 'w').write(gen(**kw))
```

```python
import sys, json, struct
K = 'standalone__gqa_block_cached__sampling_kernel'

QBUF = 131072
ACT = 139264
ACT_STRIDE = 544
ML = 147968
CNT = 148992
LDS_BYTES = 149056
WS_QX = 0
WS_MB = 0x400000
TAGK = 0x9E3779B9
WS_STAMP = 0xD00000
WS_QDUMP = 0x1000000
WS_ODUMP = 0x2000000
SPIN_MAX = 200000

C_SCALE = 0.08838834764831845 * 1.4426950408889634
def f2u(f): return struct.unpack('<I', struct.pack('<f', f))[0]

class Asm:
    def __init__(self): self.L = []
    def __call__(self, s):
        for line in s.split('\n'):
            line = line.strip()
            if line: self.L.append(('  ' + line) if not line.endswith(':') else line)
    def ext(self, lst):
        for s in lst: self(s)
    def raw(self, s): self.L.append(s)
    def text(self): return '\n'.join(self.L) + '\n'

def interleave(code, blocks, start=0, end=None):
    if end is None: end = len(code)
    n = len(blocks)
    out = list(code[:start])
    span = end - start
    pos = [start + (span * (i + 1)) // (n + 1) for i in range(n)] if n else []
    bi = 0
    for i in range(start, end):
        while bi < n and pos[bi] == i:
            out.extend(blocks[bi]()); bi += 1
        out.append(code[i])
    while bi < n:
        out.extend(blocks[bi]()); bi += 1
    out.extend(code[end:])
    return out

class VM:
    def __init__(self): self.ops = []; self.done = 0
    def add(self, tag, piece=False): self.ops.append((tag, piece))
    def _wait(self, idx):
        if idx < self.done: return []
        n = len(self.ops) - 1 - idx
        self.done = idx + 1
        assert n <= 63, n
        return [f's_waitcnt vmcnt({n})']
    def window(self, W):
        pcs = [i for i, (t, p) in enumerate(self.ops) if p]
        if len(pcs) < W: return []
        return self._wait(pcs[-W])
    def need(self, tag):
        idx = [i for i, (t, p) in enumerate(self.ops) if t == tag]
        assert idx, tag
        return self._wait(idx[-1])

sX, sKp, sVp, sWq, sWo, sOut, sDbg, sWs = 4, 6, 8, 10, 12, 14, 16, 18
sWave, sH, sB, sNW = 20, 21, 22, 23
sT, sT2, sC = 34, 38, 36
SEL_LO, SEL_HI = 40, 41

def gen(lite=False, W=5, W0=None, layout='p1', flags='nt', debug=False, wqflags='', woflags='', stamps=False, pprio=True,
        PTH=2, QSLEEP=4, RSLEEP=2, AGATE=None, stage=True, QPF=False, QPFSLEEP=0, x_noq=False, x_nopoll=False, x_nost=False, x_noload=False, PWIN=None, xflags='', aprio=False, PDELAY=0, qst='sc1', qld='sc1', tailst=False, LATE12=0, opst=False, P14AT=(3, 5), A13AT=1, x_xcontig=False, x_halfw=False, AFIRST=0, WHI=None, THR0=1350, DTH=455, warmflags=None, wosplit=False, plflags=None, latewarm=None, lateflags='nt', probe=False, PSLEEP=2, QGATE=None, XDMA=True, outfl='', AORD=0, oprio=0, M13=True, loopst=False, WR=16, startst=False, WRMODE=1, PLDELAY=0, WEND=None, WHICNT=None, QACK=True, QPRE=0, RPRE=0, PKADD=True, redst=False):
    NHOLD = 6
    W0 = W0 or W
    a = Asm()
    uid = [0]
    def lab(n):
        uid[0] += 1
        return f'L_{n}_{uid[0]}'
    def lds_spin(off, target, vaddr, vtmp):
        l = lab('spin')
        a(f'{l}:')
        a(f'ds_read_b32 v{vtmp}, v{vaddr} offset:{off}\ns_waitcnt lgkmcnt(0)\nv_readfirstlane_b32 s{sT}, v{vtmp}\ns_cmp_ge_u32 s{sT}, {target}\ns_cbranch_scc0 {l}')
    def lds_inc(off, vaddr, vone):
        a(f's_mov_b32 exec_lo, 1\ns_mov_b32 exec_hi, 0\nds_add_u32 v{vaddr}, v{vone} offset:{off}\ns_mov_b64 exec, -1')
    def get_nonce():
        pass
    def make_granule(g):
        return [f'v_xor_b32 v{g+2}, v{g}, v{g+1}', f'v_xor_b32 v{g+2}, s61, v{g+2}']
    def check_granule(g, bad, tmp, first):
        o = [f'v_xor_b32 v{tmp}, v{g}, v{g+1}', f'v_xor_b32 v{tmp}, v{tmp}, v{g+2}', f'v_xor_b32 v{tmp}, v{tmp}, v{g+3}', f'v_xor_b32 v{tmp}, {hex(TAGK)}, v{tmp}',
             f'v_subrev_u32 v{tmp+1}, s60, v{g+3}', f'v_lshrrev_b32 v{tmp+1}, 12, v{tmp+1}']
        o.append(f'v_or_b32 v{bad}, v{tmp}, v{tmp+1}' if first else f'v_or3_b32 v{bad}, v{bad}, v{tmp}, v{tmp+1}')
        return o
    def stamp(i):
        if stamps: a(f's_memrealtime s[{64+2*i}:{65+2*i}]')
        elif lite and i in (0, 6): a(f's_memrealtime s[{64+2*i}:{65+2*i}]')

    vK = list(range(8, 16)); vV = list(range(16, 20)); vDK = list(range(20, 24)); vDV = 24
    vM, vL, vNM, vAl = 25, 26, 27, 28
    T = list(range(29, 36))
    P0, S0, Q0, KV0, O0, R0 = 36, 44, 60, 92, 124, 188
    vWO = 252; vACT = 253; vIDX = 255
    SRD_K, SRD_V, SRD_WO = 24, 28, 44
    sRing, sG, sCnt = 32, 33, 35
    if layout == 'p1':   Bu = lambda u: 4096 * u;  Cw = 1024
    elif layout == 'p2': Bu = lambda u: 8192 * (u >> 1) + 1024 * (u & 1); Cw = 2048
    elif layout == 'p4': Bu = lambda u: 16384 * (u >> 2) + 1024 * (u & 3); Cw = 4096
    elif layout == 'p8': Bu = lambda u: 1024 * u; Cw = 8192

    a.raw(f'; @launch grid=(256,1,1) block=(512,1,1) lds={LDS_BYTES}')
    a.raw('.amdgcn_target "amdgcn-amd-amdhsa--gfx950"')
    a.raw('.text')
    a.raw(f'.globl {K}\n.p2align 8\n.type {K},@function\n{K}:')
    a('s_cmp_ge_u32 s2, 256\ns_cbranch_scc1 L_end')
    a('s_load_dwordx16 s[4:19], s[0:1], 0')
    a('s_memrealtime s[62:63]')
    stamp(0)
    a(f'v_mov_b32 v2, {CNT}\nv_mov_b32 v3, 0')
    for o in range(0, 32, 4): a(f'ds_write_b32 v2, v3 offset:{o}')
    a('v_lshrrev_b32 v1, 6, v0\nv_and_b32 v0, 63, v0')
    a(f'v_readfirstlane_b32 s{sWave}, v1')
    a(f's_and_b32 s{sH}, s2, 7\ns_lshr_b32 s{sB}, s2, 3')
    a(f's_mov_b32 s{SEL_LO}, 0x05040100\ns_mov_b32 s{SEL_HI}, 0x07060302')
    a(f'v_lshrrev_b32 v2, 4, v0\nv_and_b32 v3, 15, v0\nv_lshlrev_b32 v2, 13, v2\nv_lshlrev_b32 v4, 4, v3\nv_add_u32 v{vWO}, v2, v4')
    a(f'v_and_b32 v2, 15, v0\nv_mul_u32_u24 v2, {ACT_STRIDE}, v2\nv_lshrrev_b32 v3, 4, v0\nv_lshlrev_b32 v3, 4, v3\nv_add_u32 v2, v2, v3\nv_add_u32 v{vACT}, {ACT}, v2')
    a(f's_and_b32 s{sNW}, s{sWave}, 3')
    a('s_waitcnt lgkmcnt(0)')
    a(f's_sub_u32 s60, s62, 2048\ns_xor_b32 s61, s62, {hex(TAGK)}')
    a(f's_lshl_b32 s{sT}, s{sH}, 19\ns_lshl_b32 s{sT2}, s{sNW}, 8\ns_add_u32 s{sT}, s{sT}, s{sT2}')
    a(f's_add_u32 s{SRD_WO}, s{sWo}, s{sT}\ns_addc_u32 s{SRD_WO+1}, s{sWo+1}, 0\ns_and_b32 s{SRD_WO+1}, s{SRD_WO+1}, 0xffff')
    a(f's_sub_u32 s{SRD_WO+2}, 524288, s{sT2}\ns_mov_b32 s{SRD_WO+3}, 0x20000')
    if not AFIRST: a('s_barrier')
    a(f's_cmp_ge_u32 s{sWave}, 4\ns_cbranch_scc1 L_pwave')

    def perms(land, e, tb):
        m = e >> 1; sel = SEL_LO + (e & 1); t = tb[e % 2]
        return [f'v_perm_b32 v{t+p}, v{land+4*(2*p+1)+m}, v{land+4*(2*p)+m}, s{sel}' for p in range(4)]
    def mm_block(land, tb, afs, accs, first=False):
        o = perms(land, 0, tb) + perms(land, 1, tb)
        for e in range(8):
            t = tb[e % 2]
            if e == 7 and len(afs) == 1: o.append('s_nop 0')
            for af, acc in zip(afs, accs):
                c = '0' if first else f'v[{acc+4*e}:{acc+4*e+3}]'
                o.append(f'v_mfma_f32_16x16x32_bf16 v[{acc+4*e}:{acc+4*e+3}], v[{af}:{af+3}], v[{t}:{t+3}], {c}')
            if e + 2 < 8: o += perms(land, e + 2, tb)
        return o
    def smf(acc, af, bop):
        return f'v_smfmac_f32_16x16x64_bf16 v[{acc}:{acc+3}], v[{af}:{af+3}], v[{bop}:{bop+7}], v{vIDX}'
    def mm_pair(landA, landB, tb, af, acc):
        def pp(e):
            m = e >> 1; sel = SEL_LO + (e & 1); t = tb[e % 2]
            return ([f'v_perm_b32 v{t+p}, v{landA+4*(2*p+1)+m}, v{landA+4*(2*p)+m}, s{sel}' for p in range(4)] +
                    [f'v_perm_b32 v{t+4+p}, v{landB+4*(2*p+1)+m}, v{landB+4*(2*p)+m}, s{sel}' for p in range(4)])
        o = pp(0) + pp(1)
        for e in range(8):
            if e == 7: o.append('s_nop 0')
            o.append(smf(acc + 4*e, af, tb[e % 2]))
            if e + 2 < 8: o += pp(e + 2)
        return o
    def transpose_pair_inplace(b, t0, t1):
        o = []
        P_ = lambda d, hi_, lo_, x: f'v_perm_b32 v{d}, v{hi_}, v{lo_}, s{SEL_LO + x}'
        for blk in range(2):
            ix = lambda aa, bb, cc: b + 16*aa + 8*bb + 4*blk + cc
            for p in range(4):
                o += [P_(t0, ix(p,1,p), ix(p,0,p), 0), P_(ix(p,1,p), ix(p,1,p), ix(p,0,p), 1), f'v_mov_b32 v{ix(p,0,p)}, v{t0}']
            for p in range(4):
                for m in range(p + 1, 4):
                    o += [P_(t0, ix(p,1,m), ix(p,0,m), 0), P_(t1, ix(p,1,m), ix(p,0,m), 1),
                          P_(ix(p,0,m), ix(m,1,p), ix(m,0,p), 0), P_(ix(p,1,m), ix(m,1,p), ix(m,0,p), 1),
                          f'v_mov_b32 v{ix(m,0,p)}, v{t0}', f'v_mov_b32 v{ix(m,1,p)}, v{t1}']
        return o
    def transpose_inplace(b, t0, t1):
        o = []
        P_ = lambda d, hi_, lo_, x: f'v_perm_b32 v{d}, v{hi_}, v{lo_}, s{SEL_LO + x}'
        for p in range(4):
            o += [P_(t0, b+8*p+4+p, b+8*p+p, 0), P_(b+8*p+4+p, b+8*p+4+p, b+8*p+p, 1), f'v_mov_b32 v{b+8*p+p}, v{t0}']
        for p in range(4):
            for m in range(p + 1, 4):
                o += [P_(t0, b+8*p+4+m, b+8*p+m, 0), P_(t1, b+8*p+4+m, b+8*p+m, 1),
                      P_(b+8*p+m, b+8*m+4+p, b+8*m+p, 0), P_(b+8*p+4+m, b+8*m+4+p, b+8*m+p, 1),
                      f'v_mov_b32 v{b+8*m+p}, v{t0}', f'v_mov_b32 v{b+8*m+4+p}, v{t1}']
        return o
    vMa, vMb, vMc, vMd = 52, 53, 54, 55
    def merge_addr(offA):
        o = [f's_lshl_b32 s{sT}, s{sWave}, 6', f'v_add_u32 v1, s{sT}, v0', 'v_lshrrev_b32 v2, 4, v1', 'v_and_b32 v3, 15, v1',
             f'v_lshlrev_b32 v{vMa}, 5, v2', f'v_add_u32 v{vMa}, {ML}, v{vMa}',
             'v_and_b32 v5, 7, v2', 'v_xor_b32 v5, v5, v3', 'v_lshlrev_b32 v5, 4, v5', 'v_lshlrev_b32 v6, 9, v2', 'v_add_u32 v5, v5, v6', f'v_add_u32 v{vMb}, {offA}, v5',
             f'v_add_u32 v{vMc}, 65536, v{vMb}',
             'v_and_b32 v4, 7, v2', f'v_mul_u32_u24 v4, {ACT_STRIDE}, v4', 'v_lshrrev_b32 v5, 3, v2', 'v_lshlrev_b32 v5, 7, v5', 'v_add_u32 v4, v4, v5', 'v_lshlrev_b32 v5, 2, v3', 'v_add_u32 v4, v4, v5', f'v_add_u32 v{vMd}, {ACT}, v4']
        return o
    def merge_body(hook=None, zero=None):
        a(f'ds_read_b128 v[8:11], v{vMa}\nds_read_b128 v[12:15], v{vMa} offset:16')
        for w in range(4):
            for half in range(2):
                r = 16 + (w*2 + half)*4
                a(f'ds_read_b128 v[{r}:{r+3}], v{vMb if w < 2 else vMc} offset:{(w&1)*32768 + 256*half}')
        if hook is not None: hook()
        a('s_waitcnt lgkmcnt(8)')
        a('v_max3_f32 v48, v8, v9, v10\nv_max_f32 v48, v48, v11')
        for w in range(4): a(f'v_sub_f32 v{8+w}, v{8+w}, v48')
        for w in range(4): a(f'v_mul_f32 v{8+w}, s{sC}, v{8+w}')
        for w in range(4): a(f'v_exp_f32 v{8+w}, v{8+w}')
        a('s_nop 0')
        a('v_mul_f32 v48, v8, v12\nv_fmac_f32 v48, v9, v13\nv_fmac_f32 v48, v10, v14\nv_fmac_f32 v48, v11, v15')
        a('v_rcp_f32 v48, v48\ns_nop 0')
        for w in range(4): a(f'v_mul_f32 v{8+w}, v{8+w}, v48')
        a('s_waitcnt lgkmcnt(0)')
        for half in range(2):
            for i in range(4): a(f'v_mul_f32 v{16+half*4+i}, v8, v{16+half*4+i}')
        for w in range(1, 4):
            for half in range(2):
                for i in range(4): a(f'v_fmac_f32 v{16+half*4+i}, v{8+w}, v{16+(w*2+half)*4+i}')
        a('v_cvt_pk_bf16_f32 v48, v16, v17\nv_cvt_pk_bf16_f32 v49, v18, v19\nv_cvt_pk_bf16_f32 v50, v20, v21\nv_cvt_pk_bf16_f32 v51, v22, v23')
        a(f'ds_write2_b32 v{vMd}, v48, v50 offset1:16\nv_add_u32 v{vMd}, {8*ACT_STRIDE}, v{vMd}\nds_write2_b32 v{vMd}, v49, v51 offset1:16')
        if zero is not None:
            for r in range(zero, zero + 32): a(f'v_mov_b32 v{r}, 0')
        if debug:
            a(f's_lshl_b32 s{sT}, s{sWave}, 6\nv_add_u32 v1, s{sT}, v0\nv_lshrrev_b32 v2, 4, v1\nv_and_b32 v3, 15, v1')
            a(f'v_and_b32 v4, 7, v2\nv_lshlrev_b32 v4, 13, v4\nv_lshrrev_b32 v5, 3, v2\nv_lshlrev_b32 v5, 8, v5\nv_add_u32 v4, v4, v5\nv_lshlrev_b32 v5, 3, v3\nv_add_u32 v4, v4, v5')
            a(f's_lshl_b32 s{sT}, s{sB}, 16\ns_lshl_b32 s{sT2}, s{sH}, 10\ns_add_u32 s{sT}, s{sT}, s{sT2}\ns_add_u32 s{sT}, s{sT}, {WS_ODUMP}\nv_add_u32 v4, s{sT}, v4')
            a(f'global_store_dwordx2 v4, v[48:49], s[{sWs}:{sWs+1}]\nglobal_store_dwordx2 v4, v[50:51], s[{sWs}:{sWs+1}] offset:128')
            a('s_waitcnt vmcnt(0)')
    def wo_load_list(land, s, regmap=None):
        o = []
        for j in range(8):
            r = land + 4*j if regmap is None else regmap(j)
            o.append([f's_mov_b32 s{sT}, {s*32768 + (j//4)*4096}',
                      f'buffer_load_dwordx4 v[{r}:{r+3}], v{vWO}, s[{SRD_WO}:{SRD_WO+3}], s{sT} offen offset:{(j%4)*1024} {woflags}'])
        return o
    def wo_dma_list(ldsoff, s):
        o = []
        for j in range(8):
            o.append([f's_add_u32 m0, s{sRing}, {ldsoff + j*1024}', f's_mov_b32 s{sT}, {s*32768 + j*1024}',
                      f'buffer_load_dwordx4 v{vWO}, s[{SRD_WO}:{SRD_WO+3}], s{sT} offen {woflags} lds'])
        return o

    a('s_mov_b32 s3, 0')
    if aprio: a('s_setprio 3')
    a(f's_lshl_b32 s{sT}, s2, 19')
    for srd, p in ((SRD_K, sKp), (SRD_V, sVp)):
        a(f's_add_u32 s{srd}, s{p}, s{sT}\ns_addc_u32 s{srd+1}, s{p+1}, 0\ns_and_b32 s{srd+1}, s{srd+1}, 0xffff')
        a(f's_mov_b32 s{srd+2}, 524288\ns_mov_b32 s{srd+3}, 0x20000')
    a(f's_lshl_b32 s{sRing}, s{sWave}, 15')
    a(f's_mul_i32 s{sG}, s{sWave}, {Cw}')
    a(f's_mov_b32 s{sC}, {hex(f2u(C_SCALE))}')
    a('v_lshrrev_b32 v1, 4, v0\nv_and_b32 v2, 15, v0')
    a('v_lshlrev_b32 v3, 8, v1')
    a('v_xor_b32 v4, v2, v1')
    for u in range(4):
        a(f'v_xor_b32 v5, {4*u}, v4\nv_lshlrev_b32 v5, 4, v5\nv_add_u32 v{vDK[u]}, v3, v5')
    a(f'v_lshlrev_b32 v5, 2, v1\nv_xor_b32 v5, v5, v2\nv_lshlrev_b32 v5, 4, v5\nv_add_u32 v{vDV}, v3, v5')

    vm = VM()
    force = [False]
    gbase = [0]
    def issue(kv, hb, u, tile, win, toreg=None):
        o = vm.window(win) if win else []
        if force[0] and not o: o = [f's_waitcnt vmcnt({win-1})']
        if force[0]: assert o == [f's_waitcnt vmcnt({win-1})'], o
        goff = (tile - gbase[0]) * 32768 + Bu(u)
        vd = vDK[u & 3] if kv == 'K' else vDV
        srd = SRD_K if kv == 'K' else SRD_V
        if toreg is None:
            o.append(f's_add_u32 m0, s{sRing}, {hb*16384 + (8192 if kv=="V" else 0) + 1024*u}')
            o.append(f's_add_u32 s{sT}, s{sG}, {goff}')
            o.append(f'buffer_load_dwordx4 v{vd}, s[{srd}:{srd+3}], s{sT} offen {flags} lds')
        else:
            o.append(f's_add_u32 s{sT}, s{sG}, {goff}')
            o.append(f'buffer_load_dwordx4 v[{toreg}:{toreg+3}], v{vd}, s[{srd}:{srd+3}], s{sT} offen {flags}')
        vm.add((kv, tile), True)
        return o
    def other(lst, tag):
        def f():
            vm.add(tag, False)
            return list(lst)
        return f

    npro = [0]
    def pro(kv, hb, tile, toreg=None, us=range(8)):
        for u in us:
            if AGATE is not None and npro[0] == AGATE:
                a(f'v_mov_b32 v6, {CNT}'); lds_spin(24, 4, 6, 7)
            a.ext(issue(kv, hb, u, tile, W0, None if toreg is None else toreg + 4*u)); npro[0] += 1
            if QGATE is not None and npro[0] == QGATE:
                a(f'v_mov_b32 v6, {CNT}\nv_mov_b32 v7, 1'); lds_inc(24, 6, 7)
    if AFIRST:
        for u in range(AFIRST):
            pro('K', 0, 0, us=[u]); pro('V', 0, 0, us=[u])
        a('s_barrier')
        pro('K', 0, 0, us=range(AFIRST, 8))
    else:
        pro('K', 0, 0)
    a('v_and_b32 v1, 31, v0\nv_lshrrev_b32 v2, 5, v0')
    a('v_and_b32 v3, 15, v1\nv_xor_b32 v3, v3, v2')
    a(f'v_lshlrev_b32 v4, 8, v1\nv_add_u32 v4, s{sRing}, v4')
    for s in range(8):
        a(f'v_xor_b32 v5, {2*s}, v3\nv_lshlrev_b32 v5, 4, v5\nv_add_u32 v{vK[s]}, v4, v5')
    a('v_lshrrev_b32 v1, 4, v0')
    a('v_lshrrev_b32 v2, 2, v0\nv_and_b32 v2, 3, v2')
    a('v_and_b32 v3, 3, v0')
    a('v_lshrrev_b32 v4, 1, v1\nv_lshlrev_b32 v4, 2, v4\nv_add_u32 v4, v4, v2\nv_lshlrev_b32 v4, 8, v4')
    a('v_and_b32 v5, 1, v1\nv_lshlrev_b32 v5, 5, v5\nv_add_u32 v4, v4, v5')
    a('v_lshlrev_b32 v5, 3, v3\nv_add_u32 v4, v4, v5')
    a(f'v_add_u32 v4, s{sRing}, v4\nv_add_u32 v4, 8192, v4')
    for blk in range(4):
        a(f'v_xor_b32 v5, {blk}, v2\nv_lshlrev_b32 v5, 6, v5\nv_add_u32 v{vV[blk]}, v4, v5')
    a(f'v_mov_b32 v{vM}, 0xff800000\nv_mov_b32 v{vL}, 0')
    for r in range(64): a(f'v_mov_b32 v{O0+r}, 0')
    vLIN = 254
    a(f'v_lshlrev_b32 v{vLIN}, 4, v0\nv_add_u32 v{vLIN}, s{sRing}, v{vLIN}')
    pro('V', 0, 0, us=range(AFIRST, 8))
    if not (loopst or startst): stamp(8)
    pro('K', 1, 1)
    if not (loopst or startst): stamp(9)
    if stage:
        pro('K', 0, 2, toreg=R0)
        if not (loopst or startst): stamp(10)
        pro('V', 0, 2, toreg=R0 + 32)
        if not (loopst or startst): stamp(11)
    a(f'v_mov_b32 v6, {CNT}')
    if not x_noq: lds_spin(4, 2, 6, 7)
    pro('V', 1, 1)
    if not loopst: stamp(1)
    if aprio: a('s_setprio 0')
    a('s_barrier')
    if not loopst: stamp(2)
    a(f's_sub_u32 s{sT}, {QBUF}, s{sRing}')
    for s in range(8):
        a(f'v_add_u32 v1, s{sT}, v{vK[s]}\nds_read_b128 v[{Q0+4*s}:{Q0+4*s+3}], v1')
    a('s_waitcnt lgkmcnt(0)')

    def tile(hb, tidx, kblocks=(), vblocks=(), after_k=None, after_v=None, after_qk=None, inloop=False, final=False, bump=False, pre_v=None, mid=None, kfront=False):
        c = []
        off = hb * 16384
        if not inloop: c += vm.need(('K', tidx))
        for s in range(8):
            c.append(f'ds_read_b128 v[{KV0+4*s}:{KV0+4*s+3}], v{vK[s]} offset:{off}')
        c.append('s_waitcnt lgkmcnt(4)')
        for s in range(8):
            if s == 4: c.append('s_waitcnt lgkmcnt(0)')
            srcc = '0' if s == 0 else f'v[{S0}:{S0+15}]'
            c.append(f'v_mfma_f32_32x32x16_bf16 v[{S0}:{S0+15}], v[{KV0+4*s}:{KV0+4*s+3}], v[{Q0+4*s}:{Q0+4*s+3}], {srcc}')
        vreads = []
        for s2 in range(2):
            for blk in range(4):
                for half in range(2):
                    r = KV0 + (s2*4 + blk)*4 + 2*half
                    vreads.append(f'ds_read_b64_tr_b16 v[{r}:{r+1}], v{vV[blk]} offset:{off + s2*4096 + half*2048}')
        nw = 0
        if after_k is not None:
            x = after_k(); c += x; nw += len(x)
        if after_qk is not None:
            x = after_qk(); c += x; nw += len(x)
        if not final:
            if not inloop: c += vm.need(('V', tidx))
            c.extend(vreads); nw += 16
        if nw < 12: c.append(f's_nop {min(7, 11 - nw)}'); nw += min(8, 12 - nw)
        if nw < 12: c.append(f's_nop {11 - nw}')
        sm = []
        S = lambda k: S0 + k
        sm.append(f'v_max3_f32 v{T[0]}, v{S(0)}, v{S(1)}, v{S(2)}')
        sm.append(f'v_max3_f32 v{T[1]}, v{S(3)}, v{S(4)}, v{S(5)}')
        sm.append(f'v_max3_f32 v{T[2]}, v{S(6)}, v{S(7)}, v{S(8)}')
        sm.append(f'v_max3_f32 v{T[3]}, v{S(9)}, v{S(10)}, v{S(11)}')
        sm.append(f'v_max3_f32 v{T[4]}, v{S(12)}, v{S(13)}, v{S(14)}')
        sm.append(f'v_max3_f32 v{T[0]}, v{T[0]}, v{T[1]}, v{S(15)}')
        sm.append(f'v_max3_f32 v{T[2]}, v{T[2]}, v{T[3]}, v{T[4]}')
        sm.append(f'v_max_f32 v{T[0]}, v{T[0]}, v{T[2]}')
        sm.append(f'v_mov_b32 v{T[1]}, v{T[0]}')
        sm.append('s_nop 1')
        sm.append(f'v_permlane32_swap_b32 v{T[0]}, v{T[1]}')
        sm.append(f's_nop 1')
        sm.append(f'v_max3_f32 v{T[0]}, v{T[0]}, v{T[1]}, v{vM}')
        sm.append(f'v_mul_f32 v{vNM}, s{sC}, v{T[0]}')
        sm.append(f'v_fma_f32 v{vAl}, v{vM}, s{sC}, -v{vNM}')
        sm.append(f'v_mov_b32 v{vM}, v{T[0]}')
        sm.append(f'v_exp_f32 v{vAl}, v{vAl}')
        for k in range(16): sm.append(f'v_fma_f32 v{S(k)}, v{S(k)}, s{sC}, -v{vNM}')
        for k in range(16): sm.append(f'v_exp_f32 v{S(k)}, v{S(k)}')
        sm.append(f'v_mul_f32 v{vL}, v{vL}, v{vAl}')
        for k in range(4): sm.append(f'v_add_f32 v{T[k]}, v{S(k)}, v{S(k+4)}')
        for k in range(4): sm.append(f'v_add_f32 v{T[k]}, v{T[k]}, v{S(k+8)}')
        for k in range(4): sm.append(f'v_add_f32 v{T[k]}, v{T[k]}, v{S(k+12)}')
        sm.append(f'v_add_f32 v{T[0]}, v{T[0]}, v{T[1]}')
        sm.append(f'v_add_f32 v{T[2]}, v{T[2]}, v{T[3]}')
        for k in range(8): sm.append(f'v_cvt_pk_bf16_f32 v{P0+k}, v{S(2*k)}, v{S(2*k+1)}')
        sm.append(f'v_add_f32 v{vL}, v{vL}, v{T[0]}')
        sm.append(f'v_add_f32 v{vL}, v{vL}, v{T[2]}')
        for r in range(64): sm.append(f'v_mul_f32 v{O0+r}, v{O0+r}, v{vAl}')
        if kfront:
            for b in kblocks: c.extend(b())
            c.extend(sm)
        else:
            c.extend(interleave(sm, list(kblocks)))
        if mid is not None: c += mid()
        if pre_v is not None: c += pre_v()
        if final:
            c += vm.need(('V', tidx))
            c.extend(vreads)
        c.append('s_waitcnt lgkmcnt(0)')
        if after_v is not None: c += after_v()
        pv = []
        for s2 in range(2):
            for blk in range(4):
                r = KV0 + (s2*4 + blk)*4
                pv.append(f'v_mfma_f32_32x32x16_bf16 v[{O0+16*blk}:{O0+16*blk+15}], v[{r}:{r+3}], v[{P0+4*s2}:{P0+4*s2+3}], v[{O0+16*blk}:{O0+16*blk+15}]')
        vb = list(vblocks)
        per = -(-len(vb) // 8) if vb else 0
        for i in range(8):
            c.append(pv[i])
            for b in vb[i*per:(i+1)*per]: c.extend(b())
        if bump:
            c.append(f's_add_u32 s{sG}, s{sG}, 32768'); gbase[0] += 1
        return c
    def iss(kv, hb, tile_): return [(lambda u=u: issue(kv, hb, u, tile_, W)) for u in range(8)]

    if stage:
        def wrK():
            return vm.need(('K', 2)) + [f'ds_write_b128 v{vLIN}, v[{R0+4*u}:{R0+4*u+3}] offset:{16384 + 1024*u}' for u in range(8)]
        def wrV():
            return vm.need(('V', 2)) + [f'ds_write_b128 v{vLIN}, v[{R0+32+4*u}:{R0+32+4*u+3}] offset:{16384 + 8192 + 1024*u}' for u in range(8)]
        if WR:
            issr = lambda kv: [(lambda u=u: issue(kv, 0, u, 3, WR)) for u in range(8)]
            if startst: a('s_memrealtime s[80:81]\ns_waitcnt lgkmcnt(0)')
            if WRMODE == 0:
                a.ext(tile(0, 0, kblocks=issr('K'), vblocks=issr('V'), kfront=True))
            else:
                a.ext(tile(0, 0, kblocks=issr('K'), kfront=True))
            if startst: a('s_memrealtime s[82:83]\ns_waitcnt lgkmcnt(0)')
            if WRMODE == 0:
                a.ext(tile(1, 1, after_k=wrK, after_v=wrV))
            elif WRMODE == 1:
                a.ext(tile(1, 1, kblocks=issr('V'), kfront=True, after_k=wrK, after_v=wrV))
            else:
                a.ext(tile(1, 1, kblocks=issr('V'), after_k=wrK, after_v=wrV))
            if startst: a('s_memrealtime s[84:85]\ns_waitcnt lgkmcnt(0)')
        else:
            a.ext(tile(0, 0, kblocks=iss('K', 0, 3)))
            a.ext(tile(1, 1, kblocks=iss('V', 0, 3), after_k=wrK, after_v=wrV))
        a(f's_add_u32 s{sG}, s{sG}, {4*32768}'); gbase[0] = 4
        first_loop, nit, order = 2, 5, (1, 0)
    else:
        a(f's_add_u32 s{sG}, s{sG}, {2*32768}'); gbase[0] = 2
        first_loop, nit, order = 0, 6, (0, 1)
    a(f's_mov_b32 s{sCnt}, {nit}')
    if WHI: a(f's_mov_b32 s50, {THR0}')
    a('L_loop:')
    if loopst:
        a('s_mov_b32 s86, s84\ns_mov_b32 s84, s82\ns_mov_b32 s82, s80\ns_mov_b32 s80, s66\ns_memrealtime s[66:67]\ns_waitcnt lgkmcnt(0)')
    if WHI:
        if WHICNT is not None:
            a(f's_cmp_le_u32 s{sCnt}, {WHICNT}\ns_cbranch_scc1 L_fast')
        else:
            a('s_memrealtime s[48:49]\ns_waitcnt lgkmcnt(0)\ns_sub_u32 s48, s48, s62\ns_cmp_gt_u32 s48, s50\ns_cbranch_scc1 L_fast')
    force[0] = True
    snap = (list(vm.ops), vm.done, gbase[0])
    for hb in order:
        t = gbase[0]
        a.ext(tile(hb, None, kblocks=iss('K', hb, t), vblocks=iss('V', hb, t), inloop=True, bump=True))
    force[0] = False
    if WHI:
        a('s_branch L_next')
        a('L_fast:')
        after = (list(vm.ops), vm.done, gbase[0])
        vm.ops, vm.done, gbase[0] = list(snap[0]), snap[1], snap[2]
        def issue_hi(kv, hb, u, tile_):
            o = [f's_waitcnt vmcnt({WHI-1})']
            goff = (tile_ - gbase[0]) * 32768 + Bu(u)
            vd = vDK[u & 3] if kv == 'K' else vDV
            srd = SRD_K if kv == 'K' else SRD_V
            o.append(f's_add_u32 m0, s{sRing}, {hb*16384 + (8192 if kv=="V" else 0) + 1024*u}')
            o.append(f's_add_u32 s{sT}, s{sG}, {goff}')
            o.append(f'buffer_load_dwordx4 v{vd}, s[{srd}:{srd+3}], s{sT} offen {flags} lds')
            return o
        for hb in order:
            t = gbase[0]
            a.ext(tile(hb, None, kblocks=[(lambda u=u, hb=hb, t=t: issue_hi('K', hb, u, t)) for u in range(8)],
                       vblocks=[(lambda u=u, hb=hb, t=t: issue_hi('V', hb, u, t)) for u in range(8)], inloop=True, bump=True))
        vm.ops, vm.done, gbase[0] = after
        a('L_next:')
        a(f's_add_u32 s50, s50, {DTH}')
    if latewarm is not None:
        l = lab('noflag')
        a(f's_cmp_eq_u32 s{sCnt}, {latewarm}\ns_cbranch_scc0 {l}')
        a(f'v_mov_b32 v1, {CNT}\nv_mov_b32 v2, 1\nds_write_b32 v1, v2 offset:20')
        a(f'{l}:')
    a(f's_sub_u32 s{sCnt}, s{sCnt}, 1\ns_cmp_lg_u32 s{sCnt}, 0\ns_cbranch_scc1 L_loop')
    if loopst: a('s_memrealtime s[68:69]\ns_waitcnt lgkmcnt(0)')
    for it in range(1, nit):
        for hb in order:
            t = gbase[0]
            for u in range(8): vm.add(('K', t), True)
            for u in range(8): vm.add(('V', t), True)
            gbase[0] += 1
    vm.done = len(vm.ops) - max(W, WHI or 0)
    assert gbase[0] == 14, gbase
    hB, hA = order
    wl = wo_load_list(R0, 6, lambda j: R0 + 16*(j >> 1) + 8*(j & 1)) + wo_load_list(R0, 7, lambda j: R0 + 16*(j >> 1) + 8*(j & 1) + 4)
    kb = []; vb = []
    for u in range(8):
        kb.append(lambda u=u: issue('K', hB, u, 14, WEND or W)); kb.append(other(wl[u], 'wo6'))
    for u in range(8):
        vb.append(lambda u=u: issue('V', hB, u, 14, WEND or W)); vb.append(other(wl[8+u], 'wo7'))
    a.ext(tile(hB, 12, kblocks=kb, vblocks=vb, bump=True))
    isse = lambda kv: [(lambda u=u: issue(kv, hA, u, 15, WEND or W)) for u in range(8)]
    a.ext(tile(hA, 13, kblocks=isse('K'), vblocks=isse('V'), bump=True))
    d8 = wo_dma_list(hB*16384, 8); d9 = wo_dma_list(hB*16384 + 8192, 9)
    def pretr():
        return vm.need('wo7') + transpose_pair_inplace(R0, 1, 2)
    a.ext(tile(hB, 14, kblocks=[other(x, 'wo8') for x in d8], vblocks=[other(x, 'wo9') for x in d9], mid=pretr))
    offA = hA * 16384
    def ld10():
        o = []
        for x in wo_load_list(Q0, 10): vm.add('wo10'); o += x
        return o
    def prepub():
        o = [f'v_mov_b32 v1, v{vL}', 's_nop 1', f'v_permlane32_swap_b32 v1, v{vL}', 's_nop 1', f'v_add_f32 v{vL}, v{vL}, v1',
             'v_and_b32 v2, 31, v0', 'v_lshrrev_b32 v3, 5, v0',
             'v_lshlrev_b32 v4, 5, v2', f's_lshl_b32 s{sT}, s{sWave}, 2', f'v_add_u32 v4, s{sT}, v4', f'v_add_u32 v4, {ML}, v4',
             f'ds_write_b32 v4, v{vM}', f'ds_write_b32 v4, v{vL} offset:16',
             'v_lshlrev_b32 v4, 9, v2', f'v_add_u32 v4, s{sRing}, v4', 'v_and_b32 v5, 7, v2', 'v_xor_b32 v5, v5, v3']
        for j in range(4):
            o += [f'v_xor_b32 v6, {2*j}, v5', 'v_lshlrev_b32 v6, 4, v6', f'v_add_u32 v{T[j]}, v4, v6']
        o += ['v_and_b32 v1, 8, v0', 'v_mov_b32 v2, 0x4444', 'v_mov_b32 v3, 0xeeee', 'v_cmp_ne_u32 vcc, 0, v1', 's_nop 1', f'v_cndmask_b32 v{vIDX}, v2, v3, vcc']
        return o + merge_addr(offA)
    a.ext(tile(hA, 15, after_qk=ld10, final=True, pre_v=prepub))
    stamp(3)
    for x in wo_load_list(KV0, 11): vm.add('wo11'); a.ext(x)
    for blk in range(4):
        for j in range(4):
            r = O0 + 16*blk + 4*j
            a(f'ds_write_b128 v{T[j]}, v[{r}:{r+3}] offset:{offA + 128*blk}')
    a('s_waitcnt lgkmcnt(0)')
    if LATE12 == 0:
        for x in wo_load_list(O0, 12): vm.add('wo12'); a.ext(x)
    if tailst: stamp(8)
    a('s_barrier')
    if tailst: stamp(9)
    def ld13():
        for x in wo_load_list(O0 + 32, 13): vm.add('wo13'); a.ext(x)
    merge_body(ld13 if M13 else None, zero=8)
    a('s_waitcnt lgkmcnt(0)')
    a('s_barrier')
    stamp(4)
    if LATE12 == 1:
        for x in wo_load_list(O0, 12): vm.add('wo12'); a.ext(x)
    aACC, aAF = 8, [40, 44]
    if oprio: a(f's_setprio {oprio}')
    if not M13:
        for x in wo_load_list(O0 + 32, 13): vm.add('wo13'); a.ext(x)
    a(f'ds_read_b128 v[{aAF[0]}:{aAF[0]+3}], v{vACT} offset:{64*3}')
    a(f'ds_read_b128 v[{aAF[1]}:{aAF[1]+3}], v{vACT} offset:{64*5}')
    a('s_waitcnt lgkmcnt(1)')
    for e in range(8): a(smf(aACC + 4*e, aAF[0], R0 + 8*e))
    a.ext(vm.need('wo9'))
    for blk in (8, 9):
        for j in range(8):
            a(f'ds_read_b128 v[{R0+(blk-8)*32+4*j}:{R0+(blk-8)*32+4*j+3}], v{vLIN} offset:{hB*16384 + (blk-8)*8192 + 1024*j}')
    aTB = [48, 0]
    a(f'ds_read_b128 v[{aAF[0]}:{aAF[0]+3}], v{vACT} offset:{64*4}')
    a.ext(vm.need('wo11'))
    a('s_waitcnt lgkmcnt(15)')
    a.ext(mm_pair(Q0, KV0, aTB, aAF[1], aACC))
    a(f'ds_read_b128 v[{aAF[1]}:{aAF[1]+3}], v{vACT} offset:{64*6}')
    a('s_waitcnt lgkmcnt(1)')
    a.ext(mm_pair(R0, R0 + 32, aTB, aAF[0], aACC))
    a.ext(vm.need('wo13'))
    a('s_waitcnt lgkmcnt(0)')
    a.ext(mm_pair(O0, O0 + 32, aTB, aAF[1], aACC))
    a('s_nop 7')
    for e in range(8):
        a(f'ds_write_b128 v{vLIN}, v[{aACC+4*e}:{aACC+4*e+3}] offset:{offA + e*1024}')
    a('s_waitcnt lgkmcnt(0)')
    if tailst: stamp(10)
    a('s_barrier')
    if stamps: a('s_branch L_stamps')
    else: a('s_endpgm')

    a('L_pwave:')
    a('s_mov_b32 s3, 1')
    if AFIRST: a('s_barrier')
    if pprio: a('s_setprio 3')
    if x_noq: a('s_branch L_noq')
    sPW, sGQ, sHQ, sRot = sNW, 42, 43, 39
    a(f's_lshr_b32 s{sGQ}, s{sB}, 2\ns_and_b32 s{sHQ}, s{sB}, 3\ns_and_b32 s{sRot}, s{sGQ}, 3')
    SRD_W, SRD_X = 24, 28
    XF, TB, ACC, LAND = 12, [44, 48], 56, 120
    vW, vX = 8, 9
    a(f's_mov_b32 s{SRD_X}, s{sX}\ns_and_b32 s{SRD_X+1}, s{sX+1}, 0xffff\ns_mov_b32 s{SRD_X+2}, 262144\ns_mov_b32 s{SRD_X+3}, 0x20000')
    a(f'v_and_b32 v2, 15, v0\nv_lshrrev_b32 v3, 4, v0\nv_lshlrev_b32 v4, 10, v2\nv_lshlrev_b32 v5, 4, v3\nv_add_u32 v{vX}, v4, v5')
    if x_xcontig: a(f'v_lshlrev_b32 v{vX}, 4, v0')
    a(f'v_lshlrev_b32 v4, 16, v3\nv_lshlrev_b32 v5, 4, v2\nv_add_u32 v{vW}, v4, v5')
    a(f's_lshl_b32 s{sT}, s{sH}, 2\ns_add_u32 s{sT}, s{sT}, s{sHQ}\ns_lshl_b32 s{sT}, s{sT}, 8')
    a(f's_add_u32 s{SRD_W}, s{sWq}, s{sT}\ns_addc_u32 s{SRD_W+1}, s{sWq+1}, 0\ns_and_b32 s{SRD_W+1}, s{SRD_W+1}, 0xffff')
    a(f's_sub_u32 s{SRD_W+2}, 4194304, s{sT}\ns_mov_b32 s{SRD_W+3}, 0x20000')
    for sg in range(4): a(f's_add_u32 s{48+sg}, s{sRot}, {sg}\ns_and_b32 s{48+sg}, s{48+sg}, 3')
    a(f's_and_b32 s{sT}, s{sPW}, 1')
    a(f's_lshl_b32 s52, s{sGQ}, 15\ns_lshl_b32 s{sT2}, s{sT}, 14\ns_add_u32 s52, s52, s{sT2}\ns_lshl_b32 s{sT2}, s{sPW}, 8\ns_add_u32 s52, s52, s{sT2}')
    a(f's_xor_b32 s53, s52, 16384')
    if QPF:
        a(f'v_lshrrev_b32 v4, 4, v0\nv_lshlrev_b32 v4, 13, v4\nv_and_b32 v5, 15, v0\nv_lshlrev_b32 v5, 4, v5\nv_add_u32 v4, v4, v5')
        a(f's_lshl_b32 s{sT2}, s{sGQ}, 2\ns_add_u32 s{sT2}, s{sT2}, s{sPW}\ns_lshl_b32 s{sT2}, s{sT2}, 17')
        for i in range(4):
            a(f's_add_u32 s{sT}, s{sT2}, {i*4*8192}')
            a(f'buffer_load_dwordx4 v[{LAND+4*i}:{LAND+4*i+3}], v4, s[{SRD_W}:{SRD_W+3}], s{sT} offen {wqflags}')
        a('v_lshlrev_b32 v5, 4, v0')
        a(f's_lshl_b32 s{sT2}, s{sGQ}, 5\ns_lshl_b32 s{sT}, s{sHQ}, 3\ns_add_u32 s{sT2}, s{sT2}, s{sT}\ns_lshl_b32 s{sT}, s{sPW}, 1\ns_add_u32 s{sT2}, s{sT2}, s{sT}\ns_lshl_b32 s{sT2}, s{sT2}, 10')
        for i in range(2):
            a(f'buffer_load_dwordx4 v[{LAND+16+4*i}:{LAND+16+4*i+3}], v5, s[{SRD_X}:{SRD_X+3}], s{sT2} offen offset:{i*1024} {xflags}')
        a('s_waitcnt vmcnt(0)')
        if QPFSLEEP: a(f's_sleep {QPFSLEEP}')
    npl = [0]
    def pthrottle():
        if PWIN and npl[0] >= PWIN: a(f's_waitcnt vmcnt({PWIN-1})')
        npl[0] += 1
    if XDMA:
        a('v_lshrrev_b32 v2, 4, v0\nv_and_b32 v3, 15, v0\nv_xor_b32 v4, v2, v3\nv_lshlrev_b32 v5, 10, v2')
        for t in range(4):
            a(f'v_xor_b32 v6, {4*t}, v4\nv_lshlrev_b32 v6, 4, v6\nv_add_u32 v{248+t}, v5, v6')
        a(f's_lshl_b32 s52, s{sGQ}, 15\ns_lshl_b32 s{sT2}, s{sPW}, 8\ns_add_u32 s52, s52, s{sT2}')
        a(f's_lshl_b32 s53, s{sPW}, 15\ns_add_u32 s53, s53, 24576')
        for t in range(8):
            a(f's_add_u32 m0, s53, {1024*t}\ns_add_u32 s{sT}, s52, {4096*t}')
            a(f'buffer_load_dwordx4 v{248 + (t & 3)}, s[{SRD_X}:{SRD_X+3}], s{sT} offen {xflags} lds')
    else:
        for sg in range(4):
            for rho in range(2):
                r = XF + (rho*4 + sg)*4
                a(f's_lshl_b32 s{sT}, s{48+sg}, 6\ns_add_u32 s{sT}, s{sT}, s{52+rho}')
                pthrottle()
                if not x_noload: a(f'buffer_load_dwordx4 v[{r}:{r+3}], v{vX}, s[{SRD_X}:{SRD_X+3}], s{sT} offen {xflags}')
    prep = []
    class _L:
        def __call__(self, t): prep.extend(x.strip() for x in t.split('\n') if x.strip())
    b = _L()
    tA, tB = 92, 93
    if XDMA:
        b('v_and_b32 v2, 15, v0\nv_lshrrev_b32 v3, 4, v0')
        b('v_and_b32 v4, 3, v2\nv_xor_b32 v4, v4, v3\nv_lshlrev_b32 v4, 4, v4\nv_lshlrev_b32 v5, 8, v2\nv_add_u32 v4, v4, v5')
        b(f's_and_b32 s{tA}, s{sPW}, 1\ns_lshl_b32 s{tA}, s{tA}, 12\ns_add_u32 s{tA}, s{tA}, s53\nv_add_u32 v4, s{tA}, v4')
        b('v_lshrrev_b32 v5, 2, v2')
        for sg in range(4):
            b(f'v_xor_b32 v6, s{48+sg}, v5\nv_lshlrev_b32 v6, 6, v6\nv_add_u32 v{248+sg}, v4, v6')
    def region(dst, sTile, sK):
        b(f's_mul_i32 s{dst}, s{sTile}, 3\ns_add_u32 s{dst}, s{dst}, s{sK}')
        b(f's_lshl_b32 s{tA}, s{dst}, 15\ns_add_u32 s{tA}, s{tA}, 24576')
        b(f's_sub_u32 s{tB}, s{dst}, 4\ns_lshl_b32 s{tB}, s{tB}, 13\ns_add_u32 s{tB}, s{tB}, 131072')
        b(f's_cmp_lt_u32 s{dst}, 4\ns_cselect_b32 s{dst}, s{tA}, s{tB}')
    vS1, vS0, vRd = 52, 53, [54, 55, 254]
    vPay, vTag, vLoc = 9, 255, [1, 2, 3, 4]
    b(f's_sub_u32 s54, s{sPW}, 1\ns_cmp_lt_u32 s{sPW}, 2\ns_cselect_b32 s54, 0, s54')
    b(f's_and_b32 s55, s{sPW}, 1')
    b(f's_xor_b32 s56, s55, 1')
    b('v_lshlrev_b32 v10, 4, v0')
    region(57, 56, 54); b(f'v_add_u32 v{vS1}, s57, v10')
    region(57, 55, 54); b(f'v_add_u32 v{vS0}, s57, v10')
    for k in range(3):
        b(f's_mov_b32 s58, {k}')
        region(57, 55, 58)
        b(f'v_add_u32 v{vRd[k]}, s57, v10')
    b('v_and_b32 v5, 15, v0\nv_lshrrev_b32 v6, 4, v0')
    b('v_lshrrev_b32 v10, 1, v6\nv_lshlrev_b32 v10, 17, v10\nv_and_b32 v11, 1, v6')
    b(f'v_lshlrev_b32 v{vPay}, 10, v11\nv_add_u32 v{vPay}, v{vPay}, v10\nv_lshlrev_b32 v7, 4, v5\nv_add_u32 v{vPay}, v{vPay}, v7')
    b(f'v_lshlrev_b32 v{vTag}, 5, v11\nv_add_u32 v{vTag}, v{vTag}, v10\nv_lshlrev_b32 v7, 3, v5\nv_add_u32 v{vTag}, v{vTag}, v7\nv_add_u32 v{vTag}, 8192, v{vTag}')
    b(f's_lshl_b32 s{tA}, s{sHQ}, 11\nv_add_u32 v{vPay}, s{tA}, v{vPay}\ns_lshl_b32 s{tA}, s{sHQ}, 6\nv_add_u32 v{vTag}, s{tA}, v{vTag}')
    b(f's_lshl_b32 s{tA}, s{sGQ}, 2\ns_lshl_b32 s{tB}, s55, 1\ns_add_u32 s{tA}, s{tA}, s{tB}\ns_lshl_b32 s{tA}, s{tA}, 3\ns_add_u32 s{tA}, s{tA}, s{sH}\ns_lshl_b32 s{tA}, s{tA}, 14')
    b(f's_add_u32 s58, s{sWs}, s{tA}\ns_addc_u32 s59, s{sWs+1}, 0')
    if WS_QX: b(f's_add_u32 s58, s58, {WS_QX}\ns_addc_u32 s59, s59, 0')
    b(f's_lshr_b32 s{tA}, s{sHQ}, 1\ns_and_b32 s{tB}, s{sHQ}, 1')
    b(f's_cmp_eq_u32 s{tB}, 0\ns_cselect_b32 s88, -1, 0\ns_cselect_b32 s89, 0, -1')
    b(f's_cmp_eq_u32 s{tA}, s55\ns_cselect_b32 s88, s88, 0\ns_cselect_b32 s89, s89, 0\ns_not_b64 s[90:91], s[88:89]')
    b(f's_lshl_b32 s{tA}, s{sHQ}, 3\nv_lshlrev_b32 v10, 2, v11\nv_add_u32 v10, s{tA}, v10')
    for r in range(4):
        b(f'v_add_u32 v7, {r}, v10\nv_and_b32 v11, 15, v7\nv_xor_b32 v11, v11, v5\nv_lshlrev_b32 v11, 4, v11\nv_lshlrev_b32 v7, 8, v7\nv_add_u32 v11, v11, v7\nv_add_u32 v{vLoc[r]}, {QBUF}, v11')
    b(f'v_mov_b32 v6, {CNT}\nv_mov_b32 v7, 1')
    chunks = []; cur = []
    for t in prep:
        cur.append(t)
        if not (t.startswith(('s_cmp', 's_add_u32 s58')) or (t.startswith('s_cselect') and False)):
            chunks.append(cur); cur = []
    assert not cur
    merged = []
    for c in chunks:
        if merged and c[0].startswith(('s_cselect', 's_addc')): merged[-1].extend(c)
        else: merged.append(c)
    nld = 0; PSTART = 6
    per = -(-len(merged) // (32 - PSTART))
    for sg in range(4):
        a(f's_lshl_b32 s{sT2}, s{sPW}, 2\ns_add_u32 s{sT2}, s{sT2}, s{48+sg}\ns_lshl_b32 s{sT2}, s{sT2}, 18')
        for j in range(8):
            r = LAND + sg*32 + 4*j
            a(f's_add_u32 s{sT}, s{sT2}, {j*8192}')
            pthrottle()
            if not x_noload: a(f'buffer_load_dwordx4 v[{r}:{r+3}], v{vW}, s[{SRD_W}:{SRD_W+3}], s{sT} offen {wqflags}')
            nld += 1
            if nld > PSTART:
                for c in merged[:per]: a.ext(c)
                merged = merged[per:]
    for c in merged: a.ext(c)
    if AGATE is not None:
        a(f'v_mov_b32 v6, {CNT}\nv_mov_b32 v7, 1'); lds_inc(24, 6, 7)
    if stamps and not redst: a('s_memrealtime s[80:81]')
    if XDMA:
        a('s_waitcnt vmcnt(32)')
        for sg in range(4):
            r0 = XF + sg*4; r1 = XF + (4 + sg)*4
            a(f'ds_read_b128 v[{r0}:{r0+3}], v{248+sg}')
            a(f'v_xor_b32 v5, 4096, v{248+sg}\nds_read_b128 v[{r1}:{r1+3}], v5')
        a('s_waitcnt lgkmcnt(0)')
        lds_inc(28, 6, 7)
    for sg in range(4):
        a(f's_waitcnt vmcnt({24 - 8*sg})')
        if sg == 3 and XDMA:
            lds_spin(28, 4, 6, 5)
        a.ext(mm_block(LAND + sg*32, TB, [XF + sg*4, XF + (4+sg)*4], [ACC, ACC + 32], first=(sg == 0)))
    if stamps: a('s_memrealtime s[82:83]')
    lown = lab('owner')
    a(f's_cmp_lt_u32 s{sPW}, 2\ns_cbranch_scc1 {lown}')
    a('s_nop 5')
    for e in range(8):
        r = ACC + 4*e
        a(f'ds_write_b128 v{vS0}, v[{r}:{r+3}] offset:{e*1024}')
    a(f'{lown}:')
    a('s_nop 5')
    for e in range(8):
        r = ACC + 32 + 4*e
        a(f'ds_write_b128 v{vS1}, v[{r}:{r+3}] offset:{e*1024}')
    a(f's_waitcnt lgkmcnt(0)')
    lds_inc(0, 6, 7)
    if redst: a('s_memrealtime s[80:81]')
    lqwait = lab('qwait')
    a(f's_cmp_ge_u32 s{sPW}, 2\ns_cbranch_scc1 {lqwait}')
    RD = LAND
    lds_spin(0, 4, 6, 5)
    if redst: a('s_memrealtime s[68:69]')
    for k in range(3):
        for e in range(8):
            r = RD + k*32 + 4*e
            a(f'ds_read_b128 v[{r}:{r+3}], v{vRd[k]} offset:{e*1024}')
    pk = lambda d, x, y: f'v_pk_add_f32 v[{d}:{d+1}], v[{x}:{x+1}], v[{y}:{y+1}]'
    for k in range(3):
        for hh in range(2):
            left = 24 - (k*8 + hh*4 + 4)
            a(f's_waitcnt lgkmcnt({min(15, left)})')
            if left == 0: lds_inc(4, 6, 7)
            for i in range(hh*16, hh*16 + 16, 2):
                a(pk(ACC + i, ACC + i, RD + k*32 + i) if PKADD else f'v_add_f32 v{ACC+i}, v{ACC+i}, v{RD+k*32+i}\nv_add_f32 v{ACC+i+1}, v{ACC+i+1}, v{RD+k*32+i+1}')
    if redst: a('s_memrealtime s[70:71]')
    X = RD + 16
    for r in range(4):
        d = RD + 4*r
        for p in range(4):
            a(f'v_cvt_pk_bf16_f32 v{d+p}, v{ACC+4*(2*p)+r}, v{ACC+4*(2*p+1)+r}')
    a('s_mov_b64 exec, s[90:91]')
    if not x_nost:
        for r in range(4):
            a(f'global_store_dwordx4 v{vPay}, v[{RD+4*r}:{RD+4*r+3}], s[58:59] offset:{256*r} {qst}')
    a('s_mov_b64 exec, -1')
    for r in range(4):
        d = RD + 4*r
        a(f'v_xor_b32 v{X+r}, v{d}, v{d+1}\nv_xor_b32 v{X+4+r}, v{d+2}, v{d+3}')
    for r in range(4): a(f'v_xor_b32 v{X+r}, v{X+r}, v{X+4+r}')
    for step in (8, 4, 2, 1):
        for r in range(4): a(f'v_xor_b32_dpp v{X+r}, v{X+r}, v{X+r} row_ror:{step} row_mask:0xf bank_mask:0xf')
    for r in range(1, 4):
        m = 0x00010001 << r
        a(f's_mov_b32 s56, {hex(m)}\ns_mov_b32 s57, {hex(m)}\nv_cndmask_b32 v{X}, v{X}, v{X+r}, s[56:57]')
    a(f'v_mov_b32 v{X+8}, s62\nv_xor_b32 v{X+9}, s61, v{X}')
    a('s_mov_b32 s56, 0x000f000f\ns_mov_b32 s57, 0x000f000f\ns_and_b64 exec, s[56:57], s[90:91]')
    if not x_nost: a(f'global_store_dwordx2 v{vTag}, v[{X+8}:{X+9}], s[58:59] {qst}')
    a('s_mov_b64 exec, -1')
    lnl = lab('nolocal')
    a(f's_cmp_eq_u64 s[88:89], 0\ns_cbranch_scc1 {lnl}')
    lds_spin(4, 2, 6, 5)
    a('s_mov_b64 exec, s[88:89]')
    for r in range(4): a(f'ds_write_b128 v{vLoc[r]}, v[{RD+4*r}:{RD+4*r+3}]')
    a('s_mov_b64 exec, -1')
    if debug:
        a(f's_lshl_b32 s{sT}, s2, 13\ns_add_u32 s{sT}, s{sT}, {WS_QDUMP}')
        a(f'v_lshrrev_b32 v10, 4, v0\nv_and_b32 v10, 1, v10\nv_lshlrev_b32 v10, 2, v10\ns_lshl_b32 s{sT2}, s{sHQ}, 3\nv_add_u32 v12, s{sT2}, v10')
        a('v_and_b32 v5, 15, v0\ns_mov_b64 exec, s[88:89]')
        for r in range(4):
            a(f'v_add_u32 v11, {r}, v12\nv_lshlrev_b32 v11, 8, v11\nv_lshlrev_b32 v10, 4, v5\nv_add_u32 v11, v11, v10\nv_add_u32 v11, s{sT}, v11')
            a(f'global_store_dwordx4 v11, v[{RD+4*r}:{RD+4*r+3}], s[{sWs}:{sWs+1}]')
        a('s_mov_b64 exec, -1')
    a(f'{lnl}:')
    if stamps: a('s_memrealtime s[86:87]')
    if QACK:
        a('s_waitcnt vmcnt(0)')
        a(f'v_mov_b32 v6, {CNT}\nv_mov_b32 v7, 1')
        lds_inc(8, 6, 7)
    a(f'{lqwait}:')
    if stamps: a('s_memrealtime s[84:85]')
    lq = lab('qpoll'); lqd = lab('qdone'); lqs = lab('qskip')
    a(f's_cmp_eq_u32 s{sPW}, s{sHQ}\ns_cbranch_scc1 {lqs}')
    a(f's_lshl_b32 s{sT}, s2, 14')
    a(f's_add_u32 s58, s{sWs}, s{sT}\ns_addc_u32 s59, s{sWs+1}, 0')
    if WS_QX: a(f's_add_u32 s58, s58, {WS_QX}\ns_addc_u32 s59, s59, 0')
    a(f's_lshl_b32 s{sT}, s{sPW}, 11\nv_lshlrev_b32 v1, 4, v0\nv_add_u32 v1, s{sT}, v1')
    a(f'v_lshrrev_b32 v2, 4, v0\nv_and_b32 v3, 15, v0\ns_lshl_b32 s{sT}, s{sPW}, 3\nv_add_u32 v2, s{sT}, v2')
    a('v_lshlrev_b32 v4, 3, v2\nv_add_u32 v4, 8192, v4')
    for u in range(2):
        a(f'v_add_u32 v5, {4*u}, v2\nv_and_b32 v6, 15, v5\nv_xor_b32 v6, v6, v3\nv_lshlrev_b32 v6, 4, v6\nv_lshlrev_b32 v5, 8, v5\nv_add_u32 v5, v5, v6\nv_add_u32 v{32+u}, {QBUF}, v5')
    a(f'v_mov_b32 v6, {CNT}')
    if QACK:
        lds_spin(8, 2, 6, 5)
        if QPRE: a(f's_sleep {QPRE}')
    else:
        lds_spin(4, 2, 6, 5)
        if QPRE: a(f's_sleep {QPRE}')
    if QGATE is not None: lds_spin(24, 4, 6, 5)
    a(f's_mov_b32 s57, {SPIN_MAX}')
    if x_nopoll: a(f's_branch {lqd}')
    a(f'{lq}:')
    for u in range(2): a(f'global_load_dwordx4 v[{12+4*u}:{15+4*u}], v1, s[58:59] offset:{1024*u} {qld}')
    for u in range(2): a(f'global_load_dwordx2 v[{20+2*u}:{21+2*u}], v4, s[58:59] offset:{32*u} {qld}')
    a('s_waitcnt vmcnt(0)')
    for u in range(2): a(f'v_xor_b32 v{24+u}, v{12+4*u}, v{13+4*u}\nv_xor_b32 v{26+u}, v{14+4*u}, v{15+4*u}')
    for u in range(2): a(f'v_xor_b32 v{24+u}, v{24+u}, v{26+u}')
    for u in range(2): a(f'v_subrev_u32 v{26+u}, s60, v{20+2*u}\nv_lshrrev_b32 v{26+u}, 12, v{26+u}')
    for step in (8, 4, 2, 1):
        for u in range(2): a(f'v_xor_b32_dpp v{24+u}, v{24+u}, v{24+u} row_ror:{step} row_mask:0xf bank_mask:0xf')
        a('s_nop 0')
    for u in range(2): a(f'v_xor_b32 v{24+u}, v{24+u}, v{20+2*u}\nv_xor_b32 v{24+u}, v{24+u}, v{21+2*u}\nv_xor_b32 v{24+u}, {hex(TAGK)}, v{24+u}')
    a('v_or3_b32 v28, v24, v25, v26\nv_or_b32 v28, v28, v27')
    a(f'v_cmp_ne_u32 vcc, 0, v28\ns_cbranch_vccz {lqd}')
    a(f's_sub_u32 s57, s57, 1\ns_cmp_eq_u32 s57, 0\ns_cbranch_scc1 {lqd}\ns_sleep {QSLEEP}\ns_branch {lq}')
    a(f'{lqd}:')
    for u in range(2): a(f'ds_write_b128 v{32+u}, v[{12+4*u}:{15+4*u}]')
    if debug:
        a(f's_lshl_b32 s{sT}, s2, 13\ns_add_u32 s{sT}, s{sT}, {WS_QDUMP}\nv_add_u32 v1, s{sT}, v1')
        for u in range(2): a(f'global_store_dwordx4 v1, v[{12+4*u}:{15+4*u}], s[{sWs}:{sWs+1}] offset:{1024*u}')
    a(f'{lqs}:')
    a('s_waitcnt lgkmcnt(0)')
    if x_noq: a('L_noq:')
    if pprio: a('s_setprio 0')
    stamp(1)
    a('s_barrier')
    if not redst: stamp(2)
    for _ in range(PLDELAY): a('s_sleep 32')
    HOLD = 56; PL = 12
    a(f's_lshl_b32 s{sT}, s{sH}, 19')
    a(f's_add_u32 s48, s{sWo}, s{sT}\ns_addc_u32 s49, s{sWo+1}, 0\ns_and_b32 s49, s49, 0xffff\ns_mov_b32 s50, 524288\ns_mov_b32 s51, 0x20000')
    a(f's_lshl_b32 s{sT2}, s{sB}, 4\ns_lshl_b32 s52, s{sPW}, 2\ns_add_u32 s{sT2}, s{sT2}, s52\ns_lshl_b32 s{sT2}, s{sT2}, 10')
    a('v_lshlrev_b32 v1, 4, v0')
    if latewarm is not None:
        l2 = lab('wdone')
        a(f's_cmp_ge_u32 s{sB}, {2*NHOLD}\ns_cbranch_scc1 {l2}')
        for i in range(4): a(f'buffer_load_dwordx4 v[{PL+4*i}:{PL+4*i+3}], v1, s[48:51], s{sT2} offen offset:{i*1024} nt')
        a(f'{l2}:')
    elif wosplit:
        l1 = lab('wdef'); l2 = lab('wdone')
        a(f's_cmp_ge_u32 s{sB}, {2*NHOLD}\ns_cbranch_scc1 {l1}')
        for i in range(4): a(f'buffer_load_dwordx4 v[{PL+4*i}:{PL+4*i+3}], v1, s[48:51], s{sT2} offen offset:{i*1024} nt')
        a(f's_branch {l2}\n{l1}:')
        for i in range(4): a(f'buffer_load_dwordx4 v[{PL+4*i}:{PL+4*i+3}], v1, s[48:51], s{sT2} offen offset:{i*1024}')
        a(f'{l2}:')
    else:
        for i in range(4):
            a(f'buffer_load_dwordx4 v[{PL+4*i}:{PL+4*i+3}], v1, s[48:51], s{sT2} offen offset:{i*1024} {woflags if warmflags is None else warmflags}')
    a('s_waitcnt vmcnt(0)')
    for s in range(NHOLD):
        for j, x in enumerate(wo_load_list(PL, s)):
            if plflags is not None: x = [y + ' ' + plflags if y.startswith('buffer_load') else y for y in x]
            a.ext(x)
            if (j + 1) % PTH == 0: a('s_waitcnt vmcnt(0)')
        a('s_waitcnt vmcnt(0)')
        for e in range(8):
            m = e >> 1; sel = SEL_LO + (e & 1)
            for p in range(4):
                a(f'v_perm_b32 v{HOLD+(s>>1)*64+8*e+4*(s&1)+p}, v{PL+4*(2*p+1)+m}, v{PL+4*(2*p)+m}, s{sel}')
    if latewarm is not None:
        a(f'v_mov_b32 v6, {CNT}')
        lw = lab('wwait')
        a(f'{lw}:\ns_sleep 8\nds_read_b32 v5, v6 offset:20\ns_waitcnt lgkmcnt(0)\nv_readfirstlane_b32 s{sT}, v5\ns_cmp_ge_u32 s{sT}, 1\ns_cbranch_scc0 {lw}')
        a('v_lshlrev_b32 v1, 4, v0')
        a(f's_mul_i32 s52, s{sB}, 10\ns_mul_i32 s53, s{sPW}, 3')
        for i in range(3):
            a(f's_add_u32 s54, s53, {i}\ns_add_u32 s{sT}, s52, s54\ns_add_u32 s{sT}, s{sT}, {32*NHOLD}\ns_lshl_b32 s{sT}, s{sT}, 10\ns_cmp_lt_u32 s54, 10\ns_cselect_b32 s{sT}, s{sT}, 0x400000')
            a(f'buffer_load_dwordx4 v[{PL+4*i}:{PL+4*i+3}], v1, s[48:51], s{sT} offen {lateflags}')
        a('s_waitcnt vmcnt(0)')
    a(f'v_and_b32 v1, 8, v0\nv_mov_b32 v2, 0x4444\nv_mov_b32 v3, 0xeeee\nv_cmp_ne_u32 vcc, 0, v1\ns_nop 1\nv_cndmask_b32 v{vIDX}, v2, v3, vcc')
    a.ext(merge_addr(hA * 16384))
    offA = hA * 16384
    a(f's_mov_b32 s{sC}, {hex(f2u(C_SCALE))}')
    if not redst: stamp(3)
    a('s_barrier')
    if tailst: stamp(8)
    merge_body(zero=12)
    a('s_waitcnt lgkmcnt(0)')
    if tailst: stamp(9)
    a('s_barrier')
    stamp(4)
    pACC = 12; pAF = [44, 48]
    if debug: a('s_waitcnt vmcnt(0)')
    a(f'ds_read_b128 v[{pAF[0]}:{pAF[0]+3}], v{vACT}')
    a(f'ds_read_b128 v[{pAF[1]}:{pAF[1]+3}], v{vACT} offset:64')
    a('s_waitcnt lgkmcnt(1)')
    for e in range(8): a(smf(pACC + 4*e, pAF[0], HOLD + 8*e))
    for k in range(2):
        for x in wo_load_list(HOLD + k*32, 14 + k): a.ext(x)
    a(f'ds_read_b128 v[{pAF[0]}:{pAF[0]+3}], v{vACT} offset:128')
    a('s_waitcnt lgkmcnt(1)')
    for e in range(8): a(smf(pACC + 4*e, pAF[1], HOLD + 64 + 8*e))
    a(f'ds_read_b128 v[{pAF[1]}:{pAF[1]+3}], v{vACT} offset:{64*7}')
    a('s_waitcnt lgkmcnt(1)')
    for e in range(8): a(smf(pACC + 4*e, pAF[0], HOLD + 128 + 8*e))
    a('s_waitcnt vmcnt(0) lgkmcnt(0)')
    a.ext(mm_pair(HOLD, HOLD + 32, [HOLD + 64, HOLD + 72], pAF[1], pACC))
    a('v_and_b32 v2, 15, v0\nv_lshrrev_b32 v3, 4, v0\nv_and_b32 v3, 1, v3\nv_lshrrev_b32 v5, 5, v0')
    a('v_lshrrev_b32 v4, 3, v2\nv_lshlrev_b32 v4, 14, v4\nv_lshlrev_b32 v6, 9, v3\nv_add_u32 v4, v4, v6\nv_lshlrev_b32 v6, 8, v5\nv_add_u32 v4, v4, v6\nv_and_b32 v6, 7, v2\nv_lshlrev_b32 v6, 4, v6\nv_add_u32 v4, v4, v6')
    a(f's_lshl_b32 s{sT}, s{sB}, 3\ns_lshl_b32 s{sT2}, s{sNW}, 1\ns_add_u32 s{sT}, s{sT}, s{sT2}\ns_lshl_b32 s{sT}, s{sT}, 14\ns_lshl_b32 s{sT2}, s{sH}, 11\ns_add_u32 s{sT}, s{sT}, s{sT2}\ns_add_u32 s{sT}, s{sT}, {WS_MB}')
    a(f's_add_u32 s58, s{sWs}, s{sT}\ns_addc_u32 s59, s{sWs+1}, 0')
    a(f's_lshl_b32 s{sT}, s{sNW}, 15\nv_lshlrev_b32 v1, 4, v0\nv_add_u32 v1, s{sT}, v1')
    RA = 120; SM = 152; GR = 184; HH = 200
    for g in range(4): a(f'v_mov_b32 v{GR+4*g+3}, s62')
    a('v_lshrrev_b32 v8, 4, v0\nv_and_b32 v8, 1, v8\nv_lshrrev_b32 v9, 3, v0\nv_and_b32 v9, 1, v9\nv_and_b32 v10, 7, v0\nv_lshrrev_b32 v7, 5, v0')
    a('v_lshlrev_b32 v11, 10, v8\nv_lshlrev_b32 v6, 7, v9\nv_add_u32 v11, v11, v6\nv_lshlrev_b32 v6, 4, v10\nv_add_u32 v11, v11, v6\nv_lshlrev_b32 v6, 11, v7\nv_add_u32 v11, v11, v6')
    for t in range(1, 4): a(f'v_add_u32 v{208+t}, {4096*t}, v11')
    a(f's_lshl_b32 s{sT}, s2, 14\ns_lshl_b32 s{sT2}, s{sNW}, 8\ns_add_u32 s{sT}, s{sT}, s{sT2}\ns_add_u32 s{sT}, s{sT}, {WS_MB}')
    a(f's_add_u32 s56, s{sWs}, s{sT}\ns_addc_u32 s57, s{sWs+1}, 0')
    a(f's_lshl_b32 s{sT}, s{sB}, 3\ns_lshl_b32 s{sT2}, s{sNW}, 1\ns_add_u32 s{sT}, s{sT}, s{sT2}\ns_lshl_b32 s{sT}, s{sT}, 10\ns_lshl_b32 s{sT2}, s{sH}, 7\ns_add_u32 s{sT}, s{sT}, s{sT2}')
    a(f'v_lshlrev_b32 v212, 10, v9\nv_lshlrev_b32 v6, 4, v10\nv_add_u32 v212, v212, v6\nv_lshlrev_b32 v6, 3, v8\nv_add_u32 v212, v212, v6\nv_add_u32 v212, s{sT}, v212')
    a('s_mov_b32 s54, 0xffff0000')
    if tailst: stamp(10)
    a('s_barrier')
    stamp(5)
    for e in range(8): a(f'ds_read_b128 v[{RA+4*e}:{RA+4*e+3}], v1 offset:{offA + e*1024}')
    for hfw, wait in ((0, 4), (1, 0)):
        a(f's_waitcnt lgkmcnt({wait})')
        for e in range(4*hfw, 4*hfw + 4):
            for r in range(4):
                a(f'v_add_f32 v{SM+8*r+e}, v{pACC+4*e+r}, v{RA+4*e+r}')
        a('s_nop 0')
        for rs in range(2):
            for e in range(4*hfw, 4*hfw + 4):
                a(f'v_permlane32_swap_b32 v{SM+8*rs+e}, v{SM+8*(rs+2)+e}')
        for rs in range(2):
            for e in range(4*hfw, 4*hfw + 4):
                a(f'v_add_f32 v{SM+8*rs+e}, v{SM+8*rs+e}, v{SM+8*(rs+2)+e}')
        p = hfw
        for rs in range(2):
            g = GR + 4*(2*rs + p)
            for x in range(2):
                a(f'v_cvt_pk_bf16_f32 v{g+x}, v{SM+8*rs+4*p+2*x}, v{SM+8*rs+4*p+2*x+1}')
    for rs in range(2):
        for p in range(2):
            g = GR + 4*(2*rs + p)
            a.ext(make_granule(g))
            a(f'global_store_dwordx4 v4, v[{g}:{g+3}], s[58:59] offset:{p*1024 + rs*128} sc1')
    if tailst: stamp(11)
    a(f's_mov_b32 s55, {SPIN_MAX}')
    if RPRE: a(f's_sleep {RPRE}')
    lp = lab('rpoll'); ld = lab('rdone')
    a(f'{lp}:')
    for t in range(4):
        va = 11 if t == 0 else 208 + t
        a(f'global_load_dwordx4 v[{12+4*t}:{15+4*t}], v{va}, s[56:57] sc1')
    a('s_waitcnt vmcnt(0)')
    for t in range(4): a.ext(check_granule(12+4*t, 44, 45, t == 0))
    a(f'v_cmp_ne_u32 vcc, 0, v44\ns_cbranch_vccz {ld}')
    a(f's_sub_u32 s55, s55, 1\ns_cmp_eq_u32 s55, 0\ns_cbranch_scc1 {ld}\n' + (f's_sleep {RSLEEP}\n' if RSLEEP else '') + f's_branch {lp}')
    a(f'{ld}:')
    if tailst: a(f's_sub_u32 s78, {SPIN_MAX}, s55')
    for t in range(4):
        g = 12 + 4*t
        d = 28 if t == 0 else 32
        a(f'v_lshlrev_b32 v{d}, 16, v{g}\nv_and_b32 v{d+1}, s54, v{g}\nv_lshlrev_b32 v{d+2}, 16, v{g+1}\nv_and_b32 v{d+3}, s54, v{g+1}')
        if t:
            for k in range(4): a(f'v_add_f32 v{28+k}, v{28+k}, v{32+k}')
    for k in range(4): a(f'v_mov_b32 v{32+k}, v{28+k}')
    a('s_nop 1')
    for k in range(4): a(f'v_permlane32_swap_b32 v{28+k}, v{32+k}')
    a('s_nop 0')
    for k in range(4): a(f'v_add_f32 v{28+k}, v{28+k}, v{32+k}')
    a('v_cvt_pk_bf16_f32 v28, v28, v29\nv_cvt_pk_bf16_f32 v29, v30, v31')
    a('s_mov_b32 exec_lo, -1\ns_mov_b32 exec_hi, 0')
    a(f'global_store_dwordx2 v212, v[28:29], s[{sOut}:{sOut+1}] {outfl}')
    a('s_mov_b64 exec, -1')
    if lite and not stamps:
        stamp(6)
        a('s_waitcnt lgkmcnt(0)')
        a(f's_lshl_b32 s{sT}, s2, 3\ns_add_u32 s{sT}, s{sT}, s{sWave}\ns_lshl_b32 s{sT}, s{sT}, 6\ns_add_u32 s{sT}, s{sT}, {WS_STAMP}\nv_mov_b32 v3, s{sT}')
        a('s_mov_b32 exec_lo, 1\ns_mov_b32 exec_hi, 0\nv_mov_b32 v4, s64\nv_mov_b32 v5, s76')
        a(f'global_store_dwordx2 v3, v[4:5], s[{sWs}:{sWs+1}]')
    if stamps:
        stamp(6)
        a('L_stamps:')
        a('s_waitcnt lgkmcnt(0)')
        a(f's_lshl_b32 s{sT}, s2, 3\ns_add_u32 s{sT}, s{sT}, s{sWave}\ns_lshl_b32 s{sT}, s{sT}, 6\ns_add_u32 s{sT}, s{sT}, {WS_STAMP}\nv_mov_b32 v3, s{sT}')
        a('s_mov_b32 exec_lo, 1\ns_mov_b32 exec_hi, 0')
        for q in range(3):
            regs = [64+2*(4*q+i) for i in range(4)]
            a('\n'.join(f'v_mov_b32 v{4+i}, s{regs[i]}' for i in range(4)))
            a(f'global_store_dwordx4 v3, v[4:7], s[{sWs}:{sWs+1}] offset:{16*q}\ns_nop 1')
    a('L_end:\ns_endpgm')
    a.raw('.section .rodata,"a"\n.p2align 6')
    a.raw(f'.amdhsa_kernel {K}')
    a.raw('  .amdhsa_next_free_vgpr 256\n  .amdhsa_next_free_sgpr 96\n  .amdhsa_accum_offset 256')
    a.raw('  .amdhsa_group_segment_fixed_size 0\n  .amdhsa_kernarg_size 64\n  .amdhsa_user_sgpr_count 2\n  .amdhsa_user_sgpr_kernarg_segment_ptr 1\n  .amdhsa_system_sgpr_workgroup_id_x 1')
    a.raw('.end_amdhsa_kernel')
    return a.text()

if __name__ == '__main__':
    kw = json.loads(sys.argv[2]) if len(sys.argv) > 2 else {}
    open(sys.argv[1], 'w').write(gen(**kw))
```

```python
import sys, json, struct
K = 'standalone__gqa_block_cached__sampling_kernel'

QBUF = 131072
ACT = 139264
ACT_STRIDE = 544
ML = 147968
CNT = 148992
LDS_BYTES = 149056
WS_QX = 0
WS_MB = 0x400000
TAGK = 0x9E3779B9
WS_STAMP = 0xD00000
WS_QDUMP = 0x1000000
WS_ODUMP = 0x2000000
SPIN_MAX = 200000

C_SCALE = 0.08838834764831845 * 1.4426950408889634
def f2u(f): return struct.unpack('<I', struct.pack('<f', f))[0]

class Asm:
    def __init__(self): self.L = []
    def __call__(self, s):
        for line in s.split('\n'):
            line = line.strip()
            if line: self.L.append(('  ' + line) if not line.endswith(':') else line)
    def ext(self, lst):
        for s in lst: self(s)
    def raw(self, s): self.L.append(s)
    def text(self): return '\n'.join(self.L) + '\n'

def interleave(code, blocks, start=0, end=None):
    if end is None: end = len(code)
    n = len(blocks)
    out = list(code[:start])
    span = end - start
    pos = [start + (span * (i + 1)) // (n + 1) for i in range(n)] if n else []
    bi = 0
    for i in range(start, end):
        while bi < n and pos[bi] == i:
            out.extend(blocks[bi]()); bi += 1
        out.append(code[i])
    while bi < n:
        out.extend(blocks[bi]()); bi += 1
    out.extend(code[end:])
    return out

class VM:
    def __init__(self): self.ops = []; self.done = 0
    def add(self, tag, piece=False): self.ops.append((tag, piece))
    def _wait(self, idx):
        if idx < self.done: return []
        n = len(self.ops) - 1 - idx
        self.done = idx + 1
        assert n <= 63, n
        return [f's_waitcnt vmcnt({n})']
    def window(self, W):
        pcs = [i for i, (t, p) in enumerate(self.ops) if p]
        if len(pcs) < W: return []
        return self._wait(pcs[-W])
    def need(self, tag):
        idx = [i for i, (t, p) in enumerate(self.ops) if t == tag]
        assert idx, tag
        return self._wait(idx[-1])

sX, sKp, sVp, sWq, sWo, sOut, sDbg, sWs = 4, 6, 8, 10, 12, 14, 16, 18
sWave, sH, sB, sNW = 20, 21, 22, 23
sT, sT2, sC = 34, 38, 36
SEL_LO, SEL_HI = 40, 41

def gen(lite=False, W=5, W0=None, layout='p1', flags='nt', debug=False, wqflags='', woflags='', stamps=False, pprio=True,
        PTH=2, QSLEEP=4, RSLEEP=2, AGATE=None, stage=True, QPF=False, QPFSLEEP=0, x_noq=False, x_nopoll=False, x_nost=False, x_noload=False, PWIN=None, xflags='', aprio=False, PDELAY=0, qst='sc1', qld='sc1', tailst=False, LATE12=0, opst=False, P14AT=(3, 5), A13AT=1, x_xcontig=False, x_halfw=False, AFIRST=0, WHI=None, THR0=1350, DTH=455, warmflags=None, wosplit=False, plflags=None, latewarm=None, lateflags='nt', probe=False, PSLEEP=2, QGATE=None, XDMA=True, outfl='', AORD=0, oprio=0, M13=True, loopst=False, WR=16, startst=False, WRMODE=1, PLDELAY=0, WEND=None, WHICNT=None, QACK=True, QPRE=0, RPRE=0, PKADD=True, redst=False, hstage=False, HS_N=8, endmix=0):
    NHOLD = 6
    W0 = W0 or W
    a = Asm()
    uid = [0]
    def lab(n):
        uid[0] += 1
        return f'L_{n}_{uid[0]}'
    def lds_spin(off, target, vaddr, vtmp):
        l = lab('spin')
        a(f'{l}:')
        a(f'ds_read_b32 v{vtmp}, v{vaddr} offset:{off}\ns_waitcnt lgkmcnt(0)\nv_readfirstlane_b32 s{sT}, v{vtmp}\ns_cmp_ge_u32 s{sT}, {target}\ns_cbranch_scc0 {l}')
    def lds_inc(off, vaddr, vone):
        a(f's_mov_b32 exec_lo, 1\ns_mov_b32 exec_hi, 0\nds_add_u32 v{vaddr}, v{vone} offset:{off}\ns_mov_b64 exec, -1')
    def get_nonce():
        pass
    def make_granule(g):
        return [f'v_xor_b32 v{g+2}, v{g}, v{g+1}', f'v_xor_b32 v{g+2}, s61, v{g+2}']
    def check_granule(g, bad, tmp, first):
        o = [f'v_xor_b32 v{tmp}, v{g}, v{g+1}', f'v_xor_b32 v{tmp}, v{tmp}, v{g+2}', f'v_xor_b32 v{tmp}, v{tmp}, v{g+3}', f'v_xor_b32 v{tmp}, {hex(TAGK)}, v{tmp}',
             f'v_subrev_u32 v{tmp+1}, s60, v{g+3}', f'v_lshrrev_b32 v{tmp+1}, 12, v{tmp+1}']
        o.append(f'v_or_b32 v{bad}, v{tmp}, v{tmp+1}' if first else f'v_or3_b32 v{bad}, v{bad}, v{tmp}, v{tmp+1}')
        return o
    def stamp(i):
        if stamps: a(f's_memrealtime s[{64+2*i}:{65+2*i}]')
        elif lite and i in (0, 6): a(f's_memrealtime s[{64+2*i}:{65+2*i}]')

    vK = list(range(8, 16)); vV = list(range(16, 20)); vDK = list(range(20, 24)); vDV = 24
    vM, vL, vNM, vAl = 25, 26, 27, 28
    T = list(range(29, 36))
    P0, S0, Q0, KV0, O0, R0 = 36, 44, 60, 92, 124, 188
    vWO = 252; vACT = 253; vIDX = 255
    SRD_K, SRD_V, SRD_WO = 24, 28, 44
    sRing, sG, sCnt = 32, 33, 35
    if layout == 'p1':   Bu = lambda u: 4096 * u;  Cw = 1024
    elif layout == 'p2': Bu = lambda u: 8192 * (u >> 1) + 1024 * (u & 1); Cw = 2048
    elif layout == 'p4': Bu = lambda u: 16384 * (u >> 2) + 1024 * (u & 3); Cw = 4096
    elif layout == 'p8': Bu = lambda u: 1024 * u; Cw = 8192

    a.raw(f'; @launch grid=(256,1,1) block=(512,1,1) lds={LDS_BYTES}')
    a.raw('.amdgcn_target "amdgcn-amd-amdhsa--gfx950"')
    a.raw('.text')
    a.raw(f'.globl {K}\n.p2align 8\n.type {K},@function\n{K}:')
    a('s_cmp_ge_u32 s2, 256\ns_cbranch_scc1 L_end')
    a('s_load_dwordx16 s[4:19], s[0:1], 0')
    a('s_memrealtime s[62:63]')
    stamp(0)
    a(f'v_mov_b32 v2, {CNT}\nv_mov_b32 v3, 0')
    for o in range(0, 32, 4): a(f'ds_write_b32 v2, v3 offset:{o}')
    a('v_lshrrev_b32 v1, 6, v0\nv_and_b32 v0, 63, v0')
    a(f'v_readfirstlane_b32 s{sWave}, v1')
    a(f's_and_b32 s{sH}, s2, 7\ns_lshr_b32 s{sB}, s2, 3')
    a(f's_mov_b32 s{SEL_LO}, 0x05040100\ns_mov_b32 s{SEL_HI}, 0x07060302')
    a(f'v_lshrrev_b32 v2, 4, v0\nv_and_b32 v3, 15, v0\nv_lshlrev_b32 v2, 13, v2\nv_lshlrev_b32 v4, 4, v3\nv_add_u32 v{vWO}, v2, v4')
    a(f'v_and_b32 v2, 15, v0\nv_mul_u32_u24 v2, {ACT_STRIDE}, v2\nv_lshrrev_b32 v3, 4, v0\nv_lshlrev_b32 v3, 4, v3\nv_add_u32 v2, v2, v3\nv_add_u32 v{vACT}, {ACT}, v2')
    a(f's_and_b32 s{sNW}, s{sWave}, 3')
    a('s_waitcnt lgkmcnt(0)')
    a(f's_sub_u32 s60, s62, 2048\ns_xor_b32 s61, s62, {hex(TAGK)}')
    a(f's_lshl_b32 s{sT}, s{sH}, 19\ns_lshl_b32 s{sT2}, s{sNW}, 8\ns_add_u32 s{sT}, s{sT}, s{sT2}')
    a(f's_add_u32 s{SRD_WO}, s{sWo}, s{sT}\ns_addc_u32 s{SRD_WO+1}, s{sWo+1}, 0\ns_and_b32 s{SRD_WO+1}, s{SRD_WO+1}, 0xffff')
    a(f's_sub_u32 s{SRD_WO+2}, 524288, s{sT2}\ns_mov_b32 s{SRD_WO+3}, 0x20000')
    if not AFIRST: a('s_barrier')
    a(f's_cmp_ge_u32 s{sWave}, 4\ns_cbranch_scc1 L_pwave')

    def perms(land, e, tb):
        m = e >> 1; sel = SEL_LO + (e & 1); t = tb[e % 2]
        return [f'v_perm_b32 v{t+p}, v{land+4*(2*p+1)+m}, v{land+4*(2*p)+m}, s{sel}' for p in range(4)]
    def mm_block(land, tb, afs, accs, first=False):
        o = perms(land, 0, tb) + perms(land, 1, tb)
        for e in range(8):
            t = tb[e % 2]
            if e == 7 and len(afs) == 1: o.append('s_nop 0')
            for af, acc in zip(afs, accs):
                c = '0' if first else f'v[{acc+4*e}:{acc+4*e+3}]'
                o.append(f'v_mfma_f32_16x16x32_bf16 v[{acc+4*e}:{acc+4*e+3}], v[{af}:{af+3}], v[{t}:{t+3}], {c}')
            if e + 2 < 8: o += perms(land, e + 2, tb)
        return o
    def smf(acc, af, bop):
        return f'v_smfmac_f32_16x16x64_bf16 v[{acc}:{acc+3}], v[{af}:{af+3}], v[{bop}:{bop+7}], v{vIDX}'
    def mm_pair(landA, landB, tb, af, acc):
        def pp(e):
            m = e >> 1; sel = SEL_LO + (e & 1); t = tb[e % 2]
            return ([f'v_perm_b32 v{t+p}, v{landA+4*(2*p+1)+m}, v{landA+4*(2*p)+m}, s{sel}' for p in range(4)] +
                    [f'v_perm_b32 v{t+4+p}, v{landB+4*(2*p+1)+m}, v{landB+4*(2*p)+m}, s{sel}' for p in range(4)])
        o = pp(0) + pp(1)
        for e in range(8):
            if e == 7: o.append('s_nop 0')
            o.append(smf(acc + 4*e, af, tb[e % 2]))
            if e + 2 < 8: o += pp(e + 2)
        return o
    def transpose_pair_inplace(b, t0, t1):
        o = []
        P_ = lambda d, hi_, lo_, x: f'v_perm_b32 v{d}, v{hi_}, v{lo_}, s{SEL_LO + x}'
        for blk in range(2):
            ix = lambda aa, bb, cc: b + 16*aa + 8*bb + 4*blk + cc
            for p in range(4):
                o += [P_(t0, ix(p,1,p), ix(p,0,p), 0), P_(ix(p,1,p), ix(p,1,p), ix(p,0,p), 1), f'v_mov_b32 v{ix(p,0,p)}, v{t0}']
            for p in range(4):
                for m in range(p + 1, 4):
                    o += [P_(t0, ix(p,1,m), ix(p,0,m), 0), P_(t1, ix(p,1,m), ix(p,0,m), 1),
                          P_(ix(p,0,m), ix(m,1,p), ix(m,0,p), 0), P_(ix(p,1,m), ix(m,1,p), ix(m,0,p), 1),
                          f'v_mov_b32 v{ix(m,0,p)}, v{t0}', f'v_mov_b32 v{ix(m,1,p)}, v{t1}']
        return o
    def transpose_inplace(b, t0, t1):
        o = []
        P_ = lambda d, hi_, lo_, x: f'v_perm_b32 v{d}, v{hi_}, v{lo_}, s{SEL_LO + x}'
        for p in range(4):
            o += [P_(t0, b+8*p+4+p, b+8*p+p, 0), P_(b+8*p+4+p, b+8*p+4+p, b+8*p+p, 1), f'v_mov_b32 v{b+8*p+p}, v{t0}']
        for p in range(4):
            for m in range(p + 1, 4):
                o += [P_(t0, b+8*p+4+m, b+8*p+m, 0), P_(t1, b+8*p+4+m, b+8*p+m, 1),
                      P_(b+8*p+m, b+8*m+4+p, b+8*m+p, 0), P_(b+8*p+4+m, b+8*m+4+p, b+8*m+p, 1),
                      f'v_mov_b32 v{b+8*m+p}, v{t0}', f'v_mov_b32 v{b+8*m+4+p}, v{t1}']
        return o
    vMa, vMb, vMc, vMd = 52, 53, 54, 55
    def merge_addr(offA):
        o = [f's_lshl_b32 s{sT}, s{sWave}, 6', f'v_add_u32 v1, s{sT}, v0', 'v_lshrrev_b32 v2, 4, v1', 'v_and_b32 v3, 15, v1',
             f'v_lshlrev_b32 v{vMa}, 5, v2', f'v_add_u32 v{vMa}, {ML}, v{vMa}',
             'v_and_b32 v5, 7, v2', 'v_xor_b32 v5, v5, v3', 'v_lshlrev_b32 v5, 4, v5', 'v_lshlrev_b32 v6, 9, v2', 'v_add_u32 v5, v5, v6', f'v_add_u32 v{vMb}, {offA}, v5',
             f'v_add_u32 v{vMc}, 65536, v{vMb}',
             'v_and_b32 v4, 7, v2', f'v_mul_u32_u24 v4, {ACT_STRIDE}, v4', 'v_lshrrev_b32 v5, 3, v2', 'v_lshlrev_b32 v5, 7, v5', 'v_add_u32 v4, v4, v5', 'v_lshlrev_b32 v5, 2, v3', 'v_add_u32 v4, v4, v5', f'v_add_u32 v{vMd}, {ACT}, v4']
        return o
    def merge_body(hook=None, zero=None):
        a(f'ds_read_b128 v[8:11], v{vMa}\nds_read_b128 v[12:15], v{vMa} offset:16')
        for w in range(4):
            for half in range(2):
                r = 16 + (w*2 + half)*4
                a(f'ds_read_b128 v[{r}:{r+3}], v{vMb if w < 2 else vMc} offset:{(w&1)*32768 + 256*half}')
        if hook is not None: hook()
        a('s_waitcnt lgkmcnt(8)')
        a('v_max3_f32 v48, v8, v9, v10\nv_max_f32 v48, v48, v11')
        for w in range(4): a(f'v_sub_f32 v{8+w}, v{8+w}, v48')
        for w in range(4): a(f'v_mul_f32 v{8+w}, s{sC}, v{8+w}')
        for w in range(4): a(f'v_exp_f32 v{8+w}, v{8+w}')
        a('s_nop 0')
        a('v_mul_f32 v48, v8, v12\nv_fmac_f32 v48, v9, v13\nv_fmac_f32 v48, v10, v14\nv_fmac_f32 v48, v11, v15')
        a('v_rcp_f32 v48, v48\ns_nop 0')
        for w in range(4): a(f'v_mul_f32 v{8+w}, v{8+w}, v48')
        a('s_waitcnt lgkmcnt(0)')
        for half in range(2):
            for i in range(4): a(f'v_mul_f32 v{16+half*4+i}, v8, v{16+half*4+i}')
        for w in range(1, 4):
            for half in range(2):
                for i in range(4): a(f'v_fmac_f32 v{16+half*4+i}, v{8+w}, v{16+(w*2+half)*4+i}')
        a('v_cvt_pk_bf16_f32 v48, v16, v17\nv_cvt_pk_bf16_f32 v49, v18, v19\nv_cvt_pk_bf16_f32 v50, v20, v21\nv_cvt_pk_bf16_f32 v51, v22, v23')
        a(f'ds_write2_b32 v{vMd}, v48, v50 offset1:16\nv_add_u32 v{vMd}, {8*ACT_STRIDE}, v{vMd}\nds_write2_b32 v{vMd}, v49, v51 offset1:16')
        if zero is not None:
            for r in range(zero, zero + 32): a(f'v_mov_b32 v{r}, 0')
        if debug:
            a(f's_lshl_b32 s{sT}, s{sWave}, 6\nv_add_u32 v1, s{sT}, v0\nv_lshrrev_b32 v2, 4, v1\nv_and_b32 v3, 15, v1')
            a(f'v_and_b32 v4, 7, v2\nv_lshlrev_b32 v4, 13, v4\nv_lshrrev_b32 v5, 3, v2\nv_lshlrev_b32 v5, 8, v5\nv_add_u32 v4, v4, v5\nv_lshlrev_b32 v5, 3, v3\nv_add_u32 v4, v4, v5')
            a(f's_lshl_b32 s{sT}, s{sB}, 16\ns_lshl_b32 s{sT2}, s{sH}, 10\ns_add_u32 s{sT}, s{sT}, s{sT2}\ns_add_u32 s{sT}, s{sT}, {WS_ODUMP}\nv_add_u32 v4, s{sT}, v4')
            a(f'global_store_dwordx2 v4, v[48:49], s[{sWs}:{sWs+1}]\nglobal_store_dwordx2 v4, v[50:51], s[{sWs}:{sWs+1}] offset:128')
            a('s_waitcnt vmcnt(0)')
    def wo_load_list(land, s, regmap=None):
        o = []
        for j in range(8):
            r = land + 4*j if regmap is None else regmap(j)
            o.append([f's_mov_b32 s{sT}, {s*32768 + (j//4)*4096}',
                      f'buffer_load_dwordx4 v[{r}:{r+3}], v{vWO}, s[{SRD_WO}:{SRD_WO+3}], s{sT} offen offset:{(j%4)*1024} {woflags}'])
        return o
    def wo_dma_list(ldsoff, s):
        o = []
        for j in range(8):
            o.append([f's_add_u32 m0, s{sRing}, {ldsoff + j*1024}', f's_mov_b32 s{sT}, {s*32768 + j*1024}',
                      f'buffer_load_dwordx4 v{vWO}, s[{SRD_WO}:{SRD_WO+3}], s{sT} offen {woflags} lds'])
        return o

    a('s_mov_b32 s3, 0')
    if aprio: a('s_setprio 3')
    a(f's_lshl_b32 s{sT}, s2, 19')
    for srd, p in ((SRD_K, sKp), (SRD_V, sVp)):
        a(f's_add_u32 s{srd}, s{p}, s{sT}\ns_addc_u32 s{srd+1}, s{p+1}, 0\ns_and_b32 s{srd+1}, s{srd+1}, 0xffff')
        a(f's_mov_b32 s{srd+2}, 524288\ns_mov_b32 s{srd+3}, 0x20000')
    a(f's_lshl_b32 s{sRing}, s{sWave}, 15')
    a(f's_mul_i32 s{sG}, s{sWave}, {Cw}')
    a(f's_mov_b32 s{sC}, {hex(f2u(C_SCALE))}')
    a('v_lshrrev_b32 v1, 4, v0\nv_and_b32 v2, 15, v0')
    a('v_lshlrev_b32 v3, 8, v1')
    a('v_xor_b32 v4, v2, v1')
    for u in range(4):
        a(f'v_xor_b32 v5, {4*u}, v4\nv_lshlrev_b32 v5, 4, v5\nv_add_u32 v{vDK[u]}, v3, v5')
    a(f'v_lshlrev_b32 v5, 2, v1\nv_xor_b32 v5, v5, v2\nv_lshlrev_b32 v5, 4, v5\nv_add_u32 v{vDV}, v3, v5')

    vm = VM()
    force = [False]
    gbase = [0]
    def issue(kv, hb, u, tile, win, toreg=None):
        o = vm.window(win) if win else []
        if force[0] and not o: o = [f's_waitcnt vmcnt({win-1})']
        if force[0]: assert o == [f's_waitcnt vmcnt({win-1})'], o
        goff = (tile - gbase[0]) * 32768 + Bu(u)
        vd = vDK[u & 3] if kv == 'K' else vDV
        srd = SRD_K if kv == 'K' else SRD_V
        if toreg is None:
            o.append(f's_add_u32 m0, s{sRing}, {hb*16384 + (8192 if kv=="V" else 0) + 1024*u}')
            o.append(f's_add_u32 s{sT}, s{sG}, {goff}')
            o.append(f'buffer_load_dwordx4 v{vd}, s[{srd}:{srd+3}], s{sT} offen {flags} lds')
        else:
            o.append(f's_add_u32 s{sT}, s{sG}, {goff}')
            o.append(f'buffer_load_dwordx4 v[{toreg}:{toreg+3}], v{vd}, s[{srd}:{srd+3}], s{sT} offen {flags}')
        vm.add((kv, tile), True)
        return o
    def other(lst, tag):
        def f():
            vm.add(tag, False)
            return list(lst)
        return f

    npro = [0]
    def pro(kv, hb, tile, toreg=None, us=range(8)):
        for u in us:
            if AGATE is not None and npro[0] == AGATE:
                a(f'v_mov_b32 v6, {CNT}'); lds_spin(24, 4, 6, 7)
            a.ext(issue(kv, hb, u, tile, W0, None if toreg is None else toreg + 4*u)); npro[0] += 1
            if QGATE is not None and npro[0] == QGATE:
                a(f'v_mov_b32 v6, {CNT}\nv_mov_b32 v7, 1'); lds_inc(24, 6, 7)
    if AFIRST:
        for u in range(AFIRST):
            pro('K', 0, 0, us=[u]); pro('V', 0, 0, us=[u])
        a('s_barrier')
        pro('K', 0, 0, us=range(AFIRST, 8))
    else:
        pro('K', 0, 0)
    a('v_and_b32 v1, 31, v0\nv_lshrrev_b32 v2, 5, v0')
    a('v_and_b32 v3, 15, v1\nv_xor_b32 v3, v3, v2')
    a(f'v_lshlrev_b32 v4, 8, v1\nv_add_u32 v4, s{sRing}, v4')
    for s in range(8):
        a(f'v_xor_b32 v5, {2*s}, v3\nv_lshlrev_b32 v5, 4, v5\nv_add_u32 v{vK[s]}, v4, v5')
    a('v_lshrrev_b32 v1, 4, v0')
    a('v_lshrrev_b32 v2, 2, v0\nv_and_b32 v2, 3, v2')
    a('v_and_b32 v3, 3, v0')
    a('v_lshrrev_b32 v4, 1, v1\nv_lshlrev_b32 v4, 2, v4\nv_add_u32 v4, v4, v2\nv_lshlrev_b32 v4, 8, v4')
    a('v_and_b32 v5, 1, v1\nv_lshlrev_b32 v5, 5, v5\nv_add_u32 v4, v4, v5')
    a('v_lshlrev_b32 v5, 3, v3\nv_add_u32 v4, v4, v5')
    a(f'v_add_u32 v4, s{sRing}, v4\nv_add_u32 v4, 8192, v4')
    for blk in range(4):
        a(f'v_xor_b32 v5, {blk}, v2\nv_lshlrev_b32 v5, 6, v5\nv_add_u32 v{vV[blk]}, v4, v5')
    a(f'v_mov_b32 v{vM}, 0xff800000\nv_mov_b32 v{vL}, 0')
    for r in range(64): a(f'v_mov_b32 v{O0+r}, 0')
    vLIN = 254
    a(f'v_lshlrev_b32 v{vLIN}, 4, v0\nv_add_u32 v{vLIN}, s{sRing}, v{vLIN}')
    pro('V', 0, 0, us=range(AFIRST, 8))
    if not (loopst or startst): stamp(8)
    pro('K', 1, 1)
    if not (loopst or startst): stamp(9)
    if stage:
        pro('K', 0, 2, toreg=R0)
        if not (loopst or startst): stamp(10)
        pro('V', 0, 2, toreg=R0 + 32)
        if not (loopst or startst): stamp(11)
    a(f'v_mov_b32 v6, {CNT}')
    if not x_noq: lds_spin(4, 2, 6, 7)
    pro('V', 1, 1)
    if hstage:
        pro('K', 0, 2, toreg=R0, us=range(HS_N))
    if not loopst: stamp(1)
    if aprio: a('s_setprio 0')
    a('s_barrier')
    if not loopst: stamp(2)
    a(f's_sub_u32 s{sT}, {QBUF}, s{sRing}')
    for s in range(8):
        a(f'v_add_u32 v1, s{sT}, v{vK[s]}\nds_read_b128 v[{Q0+4*s}:{Q0+4*s+3}], v1')
    a('s_waitcnt lgkmcnt(0)')

    def tile(hb, tidx, kblocks=(), vblocks=(), after_k=None, after_v=None, after_qk=None, inloop=False, final=False, bump=False, pre_v=None, mid=None, kfront=False):
        c = []
        off = hb * 16384
        if not inloop: c += vm.need(('K', tidx))
        for s in range(8):
            c.append(f'ds_read_b128 v[{KV0+4*s}:{KV0+4*s+3}], v{vK[s]} offset:{off}')
        c.append('s_waitcnt lgkmcnt(4)')
        for s in range(8):
            if s == 4: c.append('s_waitcnt lgkmcnt(0)')
            srcc = '0' if s == 0 else f'v[{S0}:{S0+15}]'
            c.append(f'v_mfma_f32_32x32x16_bf16 v[{S0}:{S0+15}], v[{KV0+4*s}:{KV0+4*s+3}], v[{Q0+4*s}:{Q0+4*s+3}], {srcc}')
        vreads = []
        for s2 in range(2):
            for blk in range(4):
                for half in range(2):
                    r = KV0 + (s2*4 + blk)*4 + 2*half
                    vreads.append(f'ds_read_b64_tr_b16 v[{r}:{r+1}], v{vV[blk]} offset:{off + s2*4096 + half*2048}')
        nw = 0
        if after_k is not None:
            x = after_k(); c += x; nw += len(x)
        if after_qk is not None:
            x = after_qk(); c += x; nw += len(x)
        if not final:
            if not inloop: c += vm.need(('V', tidx))
            c.extend(vreads); nw += 16
        if nw < 12: c.append(f's_nop {min(7, 11 - nw)}'); nw += min(8, 12 - nw)
        if nw < 12: c.append(f's_nop {11 - nw}')
        sm = []
        S = lambda k: S0 + k
        sm.append(f'v_max3_f32 v{T[0]}, v{S(0)}, v{S(1)}, v{S(2)}')
        sm.append(f'v_max3_f32 v{T[1]}, v{S(3)}, v{S(4)}, v{S(5)}')
        sm.append(f'v_max3_f32 v{T[2]}, v{S(6)}, v{S(7)}, v{S(8)}')
        sm.append(f'v_max3_f32 v{T[3]}, v{S(9)}, v{S(10)}, v{S(11)}')
        sm.append(f'v_max3_f32 v{T[4]}, v{S(12)}, v{S(13)}, v{S(14)}')
        sm.append(f'v_max3_f32 v{T[0]}, v{T[0]}, v{T[1]}, v{S(15)}')
        sm.append(f'v_max3_f32 v{T[2]}, v{T[2]}, v{T[3]}, v{T[4]}')
        sm.append(f'v_max_f32 v{T[0]}, v{T[0]}, v{T[2]}')
        sm.append(f'v_mov_b32 v{T[1]}, v{T[0]}')
        sm.append('s_nop 1')
        sm.append(f'v_permlane32_swap_b32 v{T[0]}, v{T[1]}')
        sm.append(f's_nop 1')
        sm.append(f'v_max3_f32 v{T[0]}, v{T[0]}, v{T[1]}, v{vM}')
        sm.append(f'v_mul_f32 v{vNM}, s{sC}, v{T[0]}')
        sm.append(f'v_fma_f32 v{vAl}, v{vM}, s{sC}, -v{vNM}')
        sm.append(f'v_mov_b32 v{vM}, v{T[0]}')
        sm.append(f'v_exp_f32 v{vAl}, v{vAl}')
        for k in range(16): sm.append(f'v_fma_f32 v{S(k)}, v{S(k)}, s{sC}, -v{vNM}')
        for k in range(16): sm.append(f'v_exp_f32 v{S(k)}, v{S(k)}')
        sm.append(f'v_mul_f32 v{vL}, v{vL}, v{vAl}')
        for k in range(4): sm.append(f'v_add_f32 v{T[k]}, v{S(k)}, v{S(k+4)}')
        for k in range(4): sm.append(f'v_add_f32 v{T[k]}, v{T[k]}, v{S(k+8)}')
        for k in range(4): sm.append(f'v_add_f32 v{T[k]}, v{T[k]}, v{S(k+12)}')
        sm.append(f'v_add_f32 v{T[0]}, v{T[0]}, v{T[1]}')
        sm.append(f'v_add_f32 v{T[2]}, v{T[2]}, v{T[3]}')
        for k in range(8): sm.append(f'v_cvt_pk_bf16_f32 v{P0+k}, v{S(2*k)}, v{S(2*k+1)}')
        sm.append(f'v_add_f32 v{vL}, v{vL}, v{T[0]}')
        sm.append(f'v_add_f32 v{vL}, v{vL}, v{T[2]}')
        for r in range(64): sm.append(f'v_mul_f32 v{O0+r}, v{O0+r}, v{vAl}')
        if kfront:
            for b in kblocks: c.extend(b())
            c.extend(sm)
        else:
            c.extend(interleave(sm, list(kblocks)))
        if mid is not None: c += mid()
        if pre_v is not None: c += pre_v()
        if final:
            c += vm.need(('V', tidx))
            c.extend(vreads)
        c.append('s_waitcnt lgkmcnt(0)')
        if after_v is not None: c += after_v()
        pv = []
        for s2 in range(2):
            for blk in range(4):
                r = KV0 + (s2*4 + blk)*4
                pv.append(f'v_mfma_f32_32x32x16_bf16 v[{O0+16*blk}:{O0+16*blk+15}], v[{r}:{r+3}], v[{P0+4*s2}:{P0+4*s2+3}], v[{O0+16*blk}:{O0+16*blk+15}]')
        vb = list(vblocks)
        per = -(-len(vb) // 8) if vb else 0
        for i in range(8):
            c.append(pv[i])
            for b in vb[i*per:(i+1)*per]: c.extend(b())
        if bump:
            c.append(f's_add_u32 s{sG}, s{sG}, 32768'); gbase[0] += 1
        return c
    def iss(kv, hb, tile_): return [(lambda u=u: issue(kv, hb, u, tile_, W)) for u in range(8)]

    if stage:
        def wrK():
            return vm.need(('K', 2)) + [f'ds_write_b128 v{vLIN}, v[{R0+4*u}:{R0+4*u+3}] offset:{16384 + 1024*u}' for u in range(8)]
        def wrV():
            return vm.need(('V', 2)) + [f'ds_write_b128 v{vLIN}, v[{R0+32+4*u}:{R0+32+4*u+3}] offset:{16384 + 8192 + 1024*u}' for u in range(8)]
        if WR:
            issr = lambda kv: [(lambda u=u: issue(kv, 0, u, 3, WR)) for u in range(8)]
            if startst: a('s_memrealtime s[80:81]\ns_waitcnt lgkmcnt(0)')
            if WRMODE == 0:
                a.ext(tile(0, 0, kblocks=issr('K'), vblocks=issr('V'), kfront=True))
            else:
                a.ext(tile(0, 0, kblocks=issr('K'), kfront=True))
            if startst: a('s_memrealtime s[82:83]\ns_waitcnt lgkmcnt(0)')
            if WRMODE == 0:
                a.ext(tile(1, 1, after_k=wrK, after_v=wrV))
            elif WRMODE == 1:
                a.ext(tile(1, 1, kblocks=issr('V'), kfront=True, after_k=wrK, after_v=wrV))
            else:
                a.ext(tile(1, 1, kblocks=issr('V'), after_k=wrK, after_v=wrV))
            if startst: a('s_memrealtime s[84:85]\ns_waitcnt lgkmcnt(0)')
        else:
            a.ext(tile(0, 0, kblocks=iss('K', 0, 3)))
            a.ext(tile(1, 1, kblocks=iss('V', 0, 3), after_k=wrK, after_v=wrV))
        a(f's_add_u32 s{sG}, s{sG}, {4*32768}'); gbase[0] = 4
        first_loop, nit, order = 2, 5, (1, 0)
    elif hstage:
        def wrK2():
            return vm.need(('K', 2)) + [f'ds_write_b128 v{vLIN}, v[{R0+4*u}:{R0+4*u+3}] offset:{1024*u}' for u in range(HS_N)]
        kb0 = [(lambda u=u: issue('K', 0, u, 2, W)) for u in range(HS_N, 8)]
        vb0 = [(lambda u=u: (['s_waitcnt lgkmcnt(0)'] if u == 0 else []) + issue('V', 0, u, 2, W)) for u in range(8)]
        a.ext(tile(0, 0, kblocks=kb0 + vb0, after_v=wrK2))
        a.ext(tile(1, 1, kblocks=iss('K', 1, 3), vblocks=iss('V', 1, 3)))
        a(f's_add_u32 s{sG}, s{sG}, {4*32768}'); gbase[0] = 4
        first_loop, nit, order = 2, 5, (0, 1)
    else:
        a(f's_add_u32 s{sG}, s{sG}, {2*32768}'); gbase[0] = 2
        first_loop, nit, order = 0, 6, (0, 1)
    a(f's_mov_b32 s{sCnt}, {nit}')
    if WHI: a(f's_mov_b32 s50, {THR0}')
    a('L_loop:')
    if loopst:
        a('s_mov_b32 s86, s84\ns_mov_b32 s84, s82\ns_mov_b32 s82, s80\ns_mov_b32 s80, s66\ns_memrealtime s[66:67]\ns_waitcnt lgkmcnt(0)')
    if WHI:
        if WHICNT is not None:
            a(f's_cmp_le_u32 s{sCnt}, {WHICNT}\ns_cbranch_scc1 L_fast')
        else:
            a('s_memrealtime s[48:49]\ns_waitcnt lgkmcnt(0)\ns_sub_u32 s48, s48, s62\ns_cmp_gt_u32 s48, s50\ns_cbranch_scc1 L_fast')
    force[0] = True
    snap = (list(vm.ops), vm.done, gbase[0])
    for hb in order:
        t = gbase[0]
        a.ext(tile(hb, None, kblocks=iss('K', hb, t), vblocks=iss('V', hb, t), inloop=True, bump=True))
    force[0] = False
    if WHI:
        a('s_branch L_next')
        a('L_fast:')
        after = (list(vm.ops), vm.done, gbase[0])
        vm.ops, vm.done, gbase[0] = list(snap[0]), snap[1], snap[2]
        def issue_hi(kv, hb, u, tile_):
            o = [f's_waitcnt vmcnt({WHI-1})']
            goff = (tile_ - gbase[0]) * 32768 + Bu(u)
            vd = vDK[u & 3] if kv == 'K' else vDV
            srd = SRD_K if kv == 'K' else SRD_V
            o.append(f's_add_u32 m0, s{sRing}, {hb*16384 + (8192 if kv=="V" else 0) + 1024*u}')
            o.append(f's_add_u32 s{sT}, s{sG}, {goff}')
            o.append(f'buffer_load_dwordx4 v{vd}, s[{srd}:{srd+3}], s{sT} offen {flags} lds')
            return o
        for hb in order:
            t = gbase[0]
            a.ext(tile(hb, None, kblocks=[(lambda u=u, hb=hb, t=t: issue_hi('K', hb, u, t)) for u in range(8)],
                       vblocks=[(lambda u=u, hb=hb, t=t: issue_hi('V', hb, u, t)) for u in range(8)], inloop=True, bump=True))
        vm.ops, vm.done, gbase[0] = after
        a('L_next:')
        a(f's_add_u32 s50, s50, {DTH}')
    if latewarm is not None:
        l = lab('noflag')
        a(f's_cmp_eq_u32 s{sCnt}, {latewarm}\ns_cbranch_scc0 {l}')
        a(f'v_mov_b32 v1, {CNT}\nv_mov_b32 v2, 1\nds_write_b32 v1, v2 offset:20')
        a(f'{l}:')
    a(f's_sub_u32 s{sCnt}, s{sCnt}, 1\ns_cmp_lg_u32 s{sCnt}, 0\ns_cbranch_scc1 L_loop')
    if loopst: a('s_memrealtime s[68:69]\ns_waitcnt lgkmcnt(0)')
    for it in range(1, nit):
        for hb in order:
            t = gbase[0]
            for u in range(8): vm.add(('K', t), True)
            for u in range(8): vm.add(('V', t), True)
            gbase[0] += 1
    vm.done = len(vm.ops) - max(W, WHI or 0)
    assert gbase[0] == 14, gbase
    hB, hA = order
    wl = wo_load_list(R0, 6, lambda j: R0 + 16*(j >> 1) + 8*(j & 1)) + wo_load_list(R0, 7, lambda j: R0 + 16*(j >> 1) + 8*(j & 1) + 4)
    kb = []; vb = []
    for u in range(8):
        kb.append(lambda u=u: issue('K', hB, u, 14, WEND or W)); kb.append(other(wl[u], 'wo6'))
    for u in range(8):
        vb.append(lambda u=u: issue('V', hB, u, 14, WEND or W)); vb.append(other(wl[8+u], 'wo7'))
    a.ext(tile(hB, 12, kblocks=kb, vblocks=vb, bump=True))
    isse = lambda kv: [(lambda u=u: issue(kv, hA, u, 15, WEND or W)) for u in range(8)]
    v15 = isse('V')
    a.ext(tile(hA, 13, kblocks=isse('K'), vblocks=v15[:8 - endmix], bump=True))
    gbase_save = gbase[0]
    d8 = wo_dma_list(hB*16384, 8); d9 = wo_dma_list(hB*16384 + 8192, 9)
    def pretr():
        return vm.need('wo7') + transpose_pair_inplace(R0, 1, 2)
    late15 = [(lambda u=u: issue('V', hA, u, 15, WEND or W)) for u in range(8 - endmix, 8)]
    kb14 = []
    for i in range(8):
        if i < len(late15): kb14.append(late15[i])
        kb14.append(other(d8[i], 'wo8'))
    a.ext(tile(hB, 14, kblocks=kb14, vblocks=[other(x, 'wo9') for x in d9], mid=pretr))
    offA = hA * 16384
    def ld10():
        o = []
        for x in wo_load_list(Q0, 10): vm.add('wo10'); o += x
        return o
    def prepub():
        o = [f'v_mov_b32 v1, v{vL}', 's_nop 1', f'v_permlane32_swap_b32 v1, v{vL}', 's_nop 1', f'v_add_f32 v{vL}, v{vL}, v1',
             'v_and_b32 v2, 31, v0', 'v_lshrrev_b32 v3, 5, v0',
             'v_lshlrev_b32 v4, 5, v2', f's_lshl_b32 s{sT}, s{sWave}, 2', f'v_add_u32 v4, s{sT}, v4', f'v_add_u32 v4, {ML}, v4',
             f'ds_write_b32 v4, v{vM}', f'ds_write_b32 v4, v{vL} offset:16',
             'v_lshlrev_b32 v4, 9, v2', f'v_add_u32 v4, s{sRing}, v4', 'v_and_b32 v5, 7, v2', 'v_xor_b32 v5, v5, v3']
        for j in range(4):
            o += [f'v_xor_b32 v6, {2*j}, v5', 'v_lshlrev_b32 v6, 4, v6', f'v_add_u32 v{T[j]}, v4, v6']
        o += ['v_and_b32 v1, 8, v0', 'v_mov_b32 v2, 0x4444', 'v_mov_b32 v3, 0xeeee', 'v_cmp_ne_u32 vcc, 0, v1', 's_nop 1', f'v_cndmask_b32 v{vIDX}, v2, v3, vcc']
        return o + merge_addr(offA)
    a.ext(tile(hA, 15, after_qk=ld10, final=True, pre_v=prepub))
    stamp(3)
    for x in wo_load_list(KV0, 11): vm.add('wo11'); a.ext(x)
    for blk in range(4):
        for j in range(4):
            r = O0 + 16*blk + 4*j
            a(f'ds_write_b128 v{T[j]}, v[{r}:{r+3}] offset:{offA + 128*blk}')
    a('s_waitcnt lgkmcnt(0)')
    if LATE12 == 0:
        for x in wo_load_list(O0, 12): vm.add('wo12'); a.ext(x)
    if tailst: stamp(8)
    a('s_barrier')
    if tailst: stamp(9)
    def ld13():
        for x in wo_load_list(O0 + 32, 13): vm.add('wo13'); a.ext(x)
    merge_body(ld13 if M13 else None, zero=8)
    a('s_waitcnt lgkmcnt(0)')
    a('s_barrier')
    stamp(4)
    if LATE12 == 1:
        for x in wo_load_list(O0, 12): vm.add('wo12'); a.ext(x)
    aACC, aAF = 8, [40, 44]
    if oprio: a(f's_setprio {oprio}')
    if not M13:
        for x in wo_load_list(O0 + 32, 13): vm.add('wo13'); a.ext(x)
    a(f'ds_read_b128 v[{aAF[0]}:{aAF[0]+3}], v{vACT} offset:{64*3}')
    a(f'ds_read_b128 v[{aAF[1]}:{aAF[1]+3}], v{vACT} offset:{64*5}')
    a('s_waitcnt lgkmcnt(1)')
    for e in range(8): a(smf(aACC + 4*e, aAF[0], R0 + 8*e))
    a.ext(vm.need('wo9'))
    for blk in (8, 9):
        for j in range(8):
            a(f'ds_read_b128 v[{R0+(blk-8)*32+4*j}:{R0+(blk-8)*32+4*j+3}], v{vLIN} offset:{hB*16384 + (blk-8)*8192 + 1024*j}')
    aTB = [48, 0]
    a(f'ds_read_b128 v[{aAF[0]}:{aAF[0]+3}], v{vACT} offset:{64*4}')
    a.ext(vm.need('wo11'))
    a('s_waitcnt lgkmcnt(15)')
    a.ext(mm_pair(Q0, KV0, aTB, aAF[1], aACC))
    a(f'ds_read_b128 v[{aAF[1]}:{aAF[1]+3}], v{vACT} offset:{64*6}')
    a('s_waitcnt lgkmcnt(1)')
    a.ext(mm_pair(R0, R0 + 32, aTB, aAF[0], aACC))
    a.ext(vm.need('wo13'))
    a('s_waitcnt lgkmcnt(0)')
    a.ext(mm_pair(O0, O0 + 32, aTB, aAF[1], aACC))
    a('s_nop 7')
    for e in range(8):
        a(f'ds_write_b128 v{vLIN}, v[{aACC+4*e}:{aACC+4*e+3}] offset:{offA + e*1024}')
    a('s_waitcnt lgkmcnt(0)')
    if tailst: stamp(10)
    a('s_barrier')
    if stamps: a('s_branch L_stamps')
    else: a('s_endpgm')

    a('L_pwave:')
    a('s_mov_b32 s3, 1')
    if AFIRST: a('s_barrier')
    if pprio: a('s_setprio 3')
    if x_noq: a('s_branch L_noq')
    sPW, sGQ, sHQ, sRot = sNW, 42, 43, 39
    a(f's_lshr_b32 s{sGQ}, s{sB}, 2\ns_and_b32 s{sHQ}, s{sB}, 3\ns_and_b32 s{sRot}, s{sGQ}, 3')
    SRD_W, SRD_X = 24, 28
    XF, TB, ACC, LAND = 12, [44, 48], 56, 120
    vW, vX = 8, 9
    a(f's_mov_b32 s{SRD_X}, s{sX}\ns_and_b32 s{SRD_X+1}, s{sX+1}, 0xffff\ns_mov_b32 s{SRD_X+2}, 262144\ns_mov_b32 s{SRD_X+3}, 0x20000')
    a(f'v_and_b32 v2, 15, v0\nv_lshrrev_b32 v3, 4, v0\nv_lshlrev_b32 v4, 10, v2\nv_lshlrev_b32 v5, 4, v3\nv_add_u32 v{vX}, v4, v5')
    if x_xcontig: a(f'v_lshlrev_b32 v{vX}, 4, v0')
    a(f'v_lshlrev_b32 v4, 16, v3\nv_lshlrev_b32 v5, 4, v2\nv_add_u32 v{vW}, v4, v5')
    a(f's_lshl_b32 s{sT}, s{sH}, 2\ns_add_u32 s{sT}, s{sT}, s{sHQ}\ns_lshl_b32 s{sT}, s{sT}, 8')
    a(f's_add_u32 s{SRD_W}, s{sWq}, s{sT}\ns_addc_u32 s{SRD_W+1}, s{sWq+1}, 0\ns_and_b32 s{SRD_W+1}, s{SRD_W+1}, 0xffff')
    a(f's_sub_u32 s{SRD_W+2}, 4194304, s{sT}\ns_mov_b32 s{SRD_W+3}, 0x20000')
    for sg in range(4): a(f's_add_u32 s{48+sg}, s{sRot}, {sg}\ns_and_b32 s{48+sg}, s{48+sg}, 3')
    a(f's_and_b32 s{sT}, s{sPW}, 1')
    a(f's_lshl_b32 s52, s{sGQ}, 15\ns_lshl_b32 s{sT2}, s{sT}, 14\ns_add_u32 s52, s52, s{sT2}\ns_lshl_b32 s{sT2}, s{sPW}, 8\ns_add_u32 s52, s52, s{sT2}')
    a(f's_xor_b32 s53, s52, 16384')
    if QPF:
        a(f'v_lshrrev_b32 v4, 4, v0\nv_lshlrev_b32 v4, 13, v4\nv_and_b32 v5, 15, v0\nv_lshlrev_b32 v5, 4, v5\nv_add_u32 v4, v4, v5')
        a(f's_lshl_b32 s{sT2}, s{sGQ}, 2\ns_add_u32 s{sT2}, s{sT2}, s{sPW}\ns_lshl_b32 s{sT2}, s{sT2}, 17')
        for i in range(4):
            a(f's_add_u32 s{sT}, s{sT2}, {i*4*8192}')
            a(f'buffer_load_dwordx4 v[{LAND+4*i}:{LAND+4*i+3}], v4, s[{SRD_W}:{SRD_W+3}], s{sT} offen {wqflags}')
        a('v_lshlrev_b32 v5, 4, v0')
        a(f's_lshl_b32 s{sT2}, s{sGQ}, 5\ns_lshl_b32 s{sT}, s{sHQ}, 3\ns_add_u32 s{sT2}, s{sT2}, s{sT}\ns_lshl_b32 s{sT}, s{sPW}, 1\ns_add_u32 s{sT2}, s{sT2}, s{sT}\ns_lshl_b32 s{sT2}, s{sT2}, 10')
        for i in range(2):
            a(f'buffer_load_dwordx4 v[{LAND+16+4*i}:{LAND+16+4*i+3}], v5, s[{SRD_X}:{SRD_X+3}], s{sT2} offen offset:{i*1024} {xflags}')
        a('s_waitcnt vmcnt(0)')
        if QPFSLEEP: a(f's_sleep {QPFSLEEP}')
    npl = [0]
    def pthrottle():
        if PWIN and npl[0] >= PWIN: a(f's_waitcnt vmcnt({PWIN-1})')
        npl[0] += 1
    if XDMA:
        a('v_lshrrev_b32 v2, 4, v0\nv_and_b32 v3, 15, v0\nv_xor_b32 v4, v2, v3\nv_lshlrev_b32 v5, 10, v2')
        for t in range(4):
            a(f'v_xor_b32 v6, {4*t}, v4\nv_lshlrev_b32 v6, 4, v6\nv_add_u32 v{248+t}, v5, v6')
        a(f's_lshl_b32 s52, s{sGQ}, 15\ns_lshl_b32 s{sT2}, s{sPW}, 8\ns_add_u32 s52, s52, s{sT2}')
        a(f's_lshl_b32 s53, s{sPW}, 15\ns_add_u32 s53, s53, 24576')
        for t in range(8):
            a(f's_add_u32 m0, s53, {1024*t}\ns_add_u32 s{sT}, s52, {4096*t}')
            a(f'buffer_load_dwordx4 v{248 + (t & 3)}, s[{SRD_X}:{SRD_X+3}], s{sT} offen {xflags} lds')
    else:
        for sg in range(4):
            for rho in range(2):
                r = XF + (rho*4 + sg)*4
                a(f's_lshl_b32 s{sT}, s{48+sg}, 6\ns_add_u32 s{sT}, s{sT}, s{52+rho}')
                pthrottle()
                if not x_noload: a(f'buffer_load_dwordx4 v[{r}:{r+3}], v{vX}, s[{SRD_X}:{SRD_X+3}], s{sT} offen {xflags}')
    prep = []
    class _L:
        def __call__(self, t): prep.extend(x.strip() for x in t.split('\n') if x.strip())
    b = _L()
    tA, tB = 92, 93
    if XDMA:
        b('v_and_b32 v2, 15, v0\nv_lshrrev_b32 v3, 4, v0')
        b('v_and_b32 v4, 3, v2\nv_xor_b32 v4, v4, v3\nv_lshlrev_b32 v4, 4, v4\nv_lshlrev_b32 v5, 8, v2\nv_add_u32 v4, v4, v5')
        b(f's_and_b32 s{tA}, s{sPW}, 1\ns_lshl_b32 s{tA}, s{tA}, 12\ns_add_u32 s{tA}, s{tA}, s53\nv_add_u32 v4, s{tA}, v4')
        b('v_lshrrev_b32 v5, 2, v2')
        for sg in range(4):
            b(f'v_xor_b32 v6, s{48+sg}, v5\nv_lshlrev_b32 v6, 6, v6\nv_add_u32 v{248+sg}, v4, v6')
    def region(dst, sTile, sK):
        b(f's_mul_i32 s{dst}, s{sTile}, 3\ns_add_u32 s{dst}, s{dst}, s{sK}')
        b(f's_lshl_b32 s{tA}, s{dst}, 15\ns_add_u32 s{tA}, s{tA}, 24576')
        b(f's_sub_u32 s{tB}, s{dst}, 4\ns_lshl_b32 s{tB}, s{tB}, 13\ns_add_u32 s{tB}, s{tB}, 131072')
        b(f's_cmp_lt_u32 s{dst}, 4\ns_cselect_b32 s{dst}, s{tA}, s{tB}')
    vS1, vS0, vRd = 52, 53, [54, 55, 254]
    vPay, vTag, vLoc = 9, 255, [1, 2, 3, 4]
    b(f's_sub_u32 s54, s{sPW}, 1\ns_cmp_lt_u32 s{sPW}, 2\ns_cselect_b32 s54, 0, s54')
    b(f's_and_b32 s55, s{sPW}, 1')
    b(f's_xor_b32 s56, s55, 1')
    b('v_lshlrev_b32 v10, 4, v0')
    region(57, 56, 54); b(f'v_add_u32 v{vS1}, s57, v10')
    region(57, 55, 54); b(f'v_add_u32 v{vS0}, s57, v10')
    for k in range(3):
        b(f's_mov_b32 s58, {k}')
        region(57, 55, 58)
        b(f'v_add_u32 v{vRd[k]}, s57, v10')
    b('v_and_b32 v5, 15, v0\nv_lshrrev_b32 v6, 4, v0')
    b('v_lshrrev_b32 v10, 1, v6\nv_lshlrev_b32 v10, 17, v10\nv_and_b32 v11, 1, v6')
    b(f'v_lshlrev_b32 v{vPay}, 10, v11\nv_add_u32 v{vPay}, v{vPay}, v10\nv_lshlrev_b32 v7, 4, v5\nv_add_u32 v{vPay}, v{vPay}, v7')
    b(f'v_lshlrev_b32 v{vTag}, 5, v11\nv_add_u32 v{vTag}, v{vTag}, v10\nv_lshlrev_b32 v7, 3, v5\nv_add_u32 v{vTag}, v{vTag}, v7\nv_add_u32 v{vTag}, 8192, v{vTag}')
    b(f's_lshl_b32 s{tA}, s{sHQ}, 11\nv_add_u32 v{vPay}, s{tA}, v{vPay}\ns_lshl_b32 s{tA}, s{sHQ}, 6\nv_add_u32 v{vTag}, s{tA}, v{vTag}')
    b(f's_lshl_b32 s{tA}, s{sGQ}, 2\ns_lshl_b32 s{tB}, s55, 1\ns_add_u32 s{tA}, s{tA}, s{tB}\ns_lshl_b32 s{tA}, s{tA}, 3\ns_add_u32 s{tA}, s{tA}, s{sH}\ns_lshl_b32 s{tA}, s{tA}, 14')
    b(f's_add_u32 s58, s{sWs}, s{tA}\ns_addc_u32 s59, s{sWs+1}, 0')
    if WS_QX: b(f's_add_u32 s58, s58, {WS_QX}\ns_addc_u32 s59, s59, 0')
    b(f's_lshr_b32 s{tA}, s{sHQ}, 1\ns_and_b32 s{tB}, s{sHQ}, 1')
    b(f's_cmp_eq_u32 s{tB}, 0\ns_cselect_b32 s88, -1, 0\ns_cselect_b32 s89, 0, -1')
    b(f's_cmp_eq_u32 s{tA}, s55\ns_cselect_b32 s88, s88, 0\ns_cselect_b32 s89, s89, 0\ns_not_b64 s[90:91], s[88:89]')
    b(f's_lshl_b32 s{tA}, s{sHQ}, 3\nv_lshlrev_b32 v10, 2, v11\nv_add_u32 v10, s{tA}, v10')
    for r in range(4):
        b(f'v_add_u32 v7, {r}, v10\nv_and_b32 v11, 15, v7\nv_xor_b32 v11, v11, v5\nv_lshlrev_b32 v11, 4, v11\nv_lshlrev_b32 v7, 8, v7\nv_add_u32 v11, v11, v7\nv_add_u32 v{vLoc[r]}, {QBUF}, v11')
    b(f'v_mov_b32 v6, {CNT}\nv_mov_b32 v7, 1')
    chunks = []; cur = []
    for t in prep:
        cur.append(t)
        if not (t.startswith(('s_cmp', 's_add_u32 s58')) or (t.startswith('s_cselect') and False)):
            chunks.append(cur); cur = []
    assert not cur
    merged = []
    for c in chunks:
        if merged and c[0].startswith(('s_cselect', 's_addc')): merged[-1].extend(c)
        else: merged.append(c)
    nld = 0; PSTART = 6
    per = -(-len(merged) // (32 - PSTART))
    for sg in range(4):
        a(f's_lshl_b32 s{sT2}, s{sPW}, 2\ns_add_u32 s{sT2}, s{sT2}, s{48+sg}\ns_lshl_b32 s{sT2}, s{sT2}, 18')
        for j in range(8):
            r = LAND + sg*32 + 4*j
            a(f's_add_u32 s{sT}, s{sT2}, {j*8192}')
            pthrottle()
            if not x_noload: a(f'buffer_load_dwordx4 v[{r}:{r+3}], v{vW}, s[{SRD_W}:{SRD_W+3}], s{sT} offen {wqflags}')
            nld += 1
            if nld > PSTART:
                for c in merged[:per]: a.ext(c)
                merged = merged[per:]
    for c in merged: a.ext(c)
    if AGATE is not None:
        a(f'v_mov_b32 v6, {CNT}\nv_mov_b32 v7, 1'); lds_inc(24, 6, 7)
    if stamps and not redst: a('s_memrealtime s[80:81]')
    if XDMA:
        a('s_waitcnt vmcnt(32)')
        for sg in range(4):
            r0 = XF + sg*4; r1 = XF + (4 + sg)*4
            a(f'ds_read_b128 v[{r0}:{r0+3}], v{248+sg}')
            a(f'v_xor_b32 v5, 4096, v{248+sg}\nds_read_b128 v[{r1}:{r1+3}], v5')
        a('s_waitcnt lgkmcnt(0)')
        lds_inc(28, 6, 7)
    for sg in range(4):
        a(f's_waitcnt vmcnt({24 - 8*sg})')
        if sg == 3 and XDMA:
            lds_spin(28, 4, 6, 5)
        a.ext(mm_block(LAND + sg*32, TB, [XF + sg*4, XF + (4+sg)*4], [ACC, ACC + 32], first=(sg == 0)))
    if stamps: a('s_memrealtime s[82:83]')
    lown = lab('owner')
    a(f's_cmp_lt_u32 s{sPW}, 2\ns_cbranch_scc1 {lown}')
    a('s_nop 5')
    for e in range(8):
        r = ACC + 4*e
        a(f'ds_write_b128 v{vS0}, v[{r}:{r+3}] offset:{e*1024}')
    a(f'{lown}:')
    a('s_nop 5')
    for e in range(8):
        r = ACC + 32 + 4*e
        a(f'ds_write_b128 v{vS1}, v[{r}:{r+3}] offset:{e*1024}')
    a(f's_waitcnt lgkmcnt(0)')
    lds_inc(0, 6, 7)
    if redst: a('s_memrealtime s[80:81]')
    lqwait = lab('qwait')
    a(f's_cmp_ge_u32 s{sPW}, 2\ns_cbranch_scc1 {lqwait}')
    RD = LAND
    lds_spin(0, 4, 6, 5)
    if redst: a('s_memrealtime s[68:69]')
    for k in range(3):
        for e in range(8):
            r = RD + k*32 + 4*e
            a(f'ds_read_b128 v[{r}:{r+3}], v{vRd[k]} offset:{e*1024}')
    pk = lambda d, x, y: f'v_pk_add_f32 v[{d}:{d+1}], v[{x}:{x+1}], v[{y}:{y+1}]'
    for k in range(3):
        for hh in range(2):
            left = 24 - (k*8 + hh*4 + 4)
            a(f's_waitcnt lgkmcnt({min(15, left)})')
            if left == 0: lds_inc(4, 6, 7)
            for i in range(hh*16, hh*16 + 16, 2):
                a(pk(ACC + i, ACC + i, RD + k*32 + i) if PKADD else f'v_add_f32 v{ACC+i}, v{ACC+i}, v{RD+k*32+i}\nv_add_f32 v{ACC+i+1}, v{ACC+i+1}, v{RD+k*32+i+1}')
    if redst: a('s_memrealtime s[70:71]')
    X = RD + 16
    for r in range(4):
        d = RD + 4*r
        for p in range(4):
            a(f'v_cvt_pk_bf16_f32 v{d+p}, v{ACC+4*(2*p)+r}, v{ACC+4*(2*p+1)+r}')
    a('s_mov_b64 exec, s[90:91]')
    if not x_nost:
        for r in range(4):
            a(f'global_store_dwordx4 v{vPay}, v[{RD+4*r}:{RD+4*r+3}], s[58:59] offset:{256*r} {qst}')
    a('s_mov_b64 exec, -1')
    for r in range(4):
        d = RD + 4*r
        a(f'v_xor_b32 v{X+r}, v{d}, v{d+1}\nv_xor_b32 v{X+4+r}, v{d+2}, v{d+3}')
    for r in range(4): a(f'v_xor_b32 v{X+r}, v{X+r}, v{X+4+r}')
    for step in (8, 4, 2, 1):
        for r in range(4): a(f'v_xor_b32_dpp v{X+r}, v{X+r}, v{X+r} row_ror:{step} row_mask:0xf bank_mask:0xf')
    for r in range(1, 4):
        m = 0x00010001 << r
        a(f's_mov_b32 s56, {hex(m)}\ns_mov_b32 s57, {hex(m)}\nv_cndmask_b32 v{X}, v{X}, v{X+r}, s[56:57]')
    a(f'v_mov_b32 v{X+8}, s62\nv_xor_b32 v{X+9}, s61, v{X}')
    a('s_mov_b32 s56, 0x000f000f\ns_mov_b32 s57, 0x000f000f\ns_and_b64 exec, s[56:57], s[90:91]')
    if not x_nost: a(f'global_store_dwordx2 v{vTag}, v[{X+8}:{X+9}], s[58:59] {qst}')
    a('s_mov_b64 exec, -1')
    lnl = lab('nolocal')
    a(f's_cmp_eq_u64 s[88:89], 0\ns_cbranch_scc1 {lnl}')
    lds_spin(4, 2, 6, 5)
    a('s_mov_b64 exec, s[88:89]')
    for r in range(4): a(f'ds_write_b128 v{vLoc[r]}, v[{RD+4*r}:{RD+4*r+3}]')
    a('s_mov_b64 exec, -1')
    if debug:
        a(f's_lshl_b32 s{sT}, s2, 13\ns_add_u32 s{sT}, s{sT}, {WS_QDUMP}')
        a(f'v_lshrrev_b32 v10, 4, v0\nv_and_b32 v10, 1, v10\nv_lshlrev_b32 v10, 2, v10\ns_lshl_b32 s{sT2}, s{sHQ}, 3\nv_add_u32 v12, s{sT2}, v10')
        a('v_and_b32 v5, 15, v0\ns_mov_b64 exec, s[88:89]')
        for r in range(4):
            a(f'v_add_u32 v11, {r}, v12\nv_lshlrev_b32 v11, 8, v11\nv_lshlrev_b32 v10, 4, v5\nv_add_u32 v11, v11, v10\nv_add_u32 v11, s{sT}, v11')
            a(f'global_store_dwordx4 v11, v[{RD+4*r}:{RD+4*r+3}], s[{sWs}:{sWs+1}]')
        a('s_mov_b64 exec, -1')
    a(f'{lnl}:')
    if stamps: a('s_memrealtime s[86:87]')
    if QACK:
        a('s_waitcnt vmcnt(0)')
        a(f'v_mov_b32 v6, {CNT}\nv_mov_b32 v7, 1')
        lds_inc(8, 6, 7)
    a(f'{lqwait}:')
    if stamps: a('s_memrealtime s[84:85]')
    lq = lab('qpoll'); lqd = lab('qdone'); lqs = lab('qskip')
    a(f's_cmp_eq_u32 s{sPW}, s{sHQ}\ns_cbranch_scc1 {lqs}')
    a(f's_lshl_b32 s{sT}, s2, 14')
    a(f's_add_u32 s58, s{sWs}, s{sT}\ns_addc_u32 s59, s{sWs+1}, 0')
    if WS_QX: a(f's_add_u32 s58, s58, {WS_QX}\ns_addc_u32 s59, s59, 0')
    a(f's_lshl_b32 s{sT}, s{sPW}, 11\nv_lshlrev_b32 v1, 4, v0\nv_add_u32 v1, s{sT}, v1')
    a(f'v_lshrrev_b32 v2, 4, v0\nv_and_b32 v3, 15, v0\ns_lshl_b32 s{sT}, s{sPW}, 3\nv_add_u32 v2, s{sT}, v2')
    a('v_lshlrev_b32 v4, 3, v2\nv_add_u32 v4, 8192, v4')
    for u in range(2):
        a(f'v_add_u32 v5, {4*u}, v2\nv_and_b32 v6, 15, v5\nv_xor_b32 v6, v6, v3\nv_lshlrev_b32 v6, 4, v6\nv_lshlrev_b32 v5, 8, v5\nv_add_u32 v5, v5, v6\nv_add_u32 v{32+u}, {QBUF}, v5')
    a(f'v_mov_b32 v6, {CNT}')
    if QACK:
        lds_spin(8, 2, 6, 5)
        if QPRE: a(f's_sleep {QPRE}')
    else:
        lds_spin(4, 2, 6, 5)
        if QPRE: a(f's_sleep {QPRE}')
    if QGATE is not None: lds_spin(24, 4, 6, 5)
    a(f's_mov_b32 s57, {SPIN_MAX}')
    if x_nopoll: a(f's_branch {lqd}')
    a(f'{lq}:')
    for u in range(2): a(f'global_load_dwordx4 v[{12+4*u}:{15+4*u}], v1, s[58:59] offset:{1024*u} {qld}')
    for u in range(2): a(f'global_load_dwordx2 v[{20+2*u}:{21+2*u}], v4, s[58:59] offset:{32*u} {qld}')
    a('s_waitcnt vmcnt(0)')
    for u in range(2): a(f'v_xor_b32 v{24+u}, v{12+4*u}, v{13+4*u}\nv_xor_b32 v{26+u}, v{14+4*u}, v{15+4*u}')
    for u in range(2): a(f'v_xor_b32 v{24+u}, v{24+u}, v{26+u}')
    for u in range(2): a(f'v_subrev_u32 v{26+u}, s60, v{20+2*u}\nv_lshrrev_b32 v{26+u}, 12, v{26+u}')
    for step in (8, 4, 2, 1):
        for u in range(2): a(f'v_xor_b32_dpp v{24+u}, v{24+u}, v{24+u} row_ror:{step} row_mask:0xf bank_mask:0xf')
        a('s_nop 0')
    for u in range(2): a(f'v_xor_b32 v{24+u}, v{24+u}, v{20+2*u}\nv_xor_b32 v{24+u}, v{24+u}, v{21+2*u}\nv_xor_b32 v{24+u}, {hex(TAGK)}, v{24+u}')
    a('v_or3_b32 v28, v24, v25, v26\nv_or_b32 v28, v28, v27')
    a(f'v_cmp_ne_u32 vcc, 0, v28\ns_cbranch_vccz {lqd}')
    a(f's_sub_u32 s57, s57, 1\ns_cmp_eq_u32 s57, 0\ns_cbranch_scc1 {lqd}\ns_sleep {QSLEEP}\ns_branch {lq}')
    a(f'{lqd}:')
    for u in range(2): a(f'ds_write_b128 v{32+u}, v[{12+4*u}:{15+4*u}]')
    if debug:
        a(f's_lshl_b32 s{sT}, s2, 13\ns_add_u32 s{sT}, s{sT}, {WS_QDUMP}\nv_add_u32 v1, s{sT}, v1')
        for u in range(2): a(f'global_store_dwordx4 v1, v[{12+4*u}:{15+4*u}], s[{sWs}:{sWs+1}] offset:{1024*u}')
    a(f'{lqs}:')
    a('s_waitcnt lgkmcnt(0)')
    if x_noq: a('L_noq:')
    if pprio: a('s_setprio 0')
    stamp(1)
    a('s_barrier')
    if not redst: stamp(2)
    for _ in range(PLDELAY): a('s_sleep 32')
    HOLD = 56; PL = 12
    a(f's_lshl_b32 s{sT}, s{sH}, 19')
    a(f's_add_u32 s48, s{sWo}, s{sT}\ns_addc_u32 s49, s{sWo+1}, 0\ns_and_b32 s49, s49, 0xffff\ns_mov_b32 s50, 524288\ns_mov_b32 s51, 0x20000')
    a(f's_lshl_b32 s{sT2}, s{sB}, 4\ns_lshl_b32 s52, s{sPW}, 2\ns_add_u32 s{sT2}, s{sT2}, s52\ns_lshl_b32 s{sT2}, s{sT2}, 10')
    a('v_lshlrev_b32 v1, 4, v0')
    if latewarm is not None:
        l2 = lab('wdone')
        a(f's_cmp_ge_u32 s{sB}, {2*NHOLD}\ns_cbranch_scc1 {l2}')
        for i in range(4): a(f'buffer_load_dwordx4 v[{PL+4*i}:{PL+4*i+3}], v1, s[48:51], s{sT2} offen offset:{i*1024} nt')
        a(f'{l2}:')
    elif wosplit:
        l1 = lab('wdef'); l2 = lab('wdone')
        a(f's_cmp_ge_u32 s{sB}, {2*NHOLD}\ns_cbranch_scc1 {l1}')
        for i in range(4): a(f'buffer_load_dwordx4 v[{PL+4*i}:{PL+4*i+3}], v1, s[48:51], s{sT2} offen offset:{i*1024} nt')
        a(f's_branch {l2}\n{l1}:')
        for i in range(4): a(f'buffer_load_dwordx4 v[{PL+4*i}:{PL+4*i+3}], v1, s[48:51], s{sT2} offen offset:{i*1024}')
        a(f'{l2}:')
    else:
        for i in range(4):
            a(f'buffer_load_dwordx4 v[{PL+4*i}:{PL+4*i+3}], v1, s[48:51], s{sT2} offen offset:{i*1024} {woflags if warmflags is None else warmflags}')
    a('s_waitcnt vmcnt(0)')
    for s in range(NHOLD):
        for j, x in enumerate(wo_load_list(PL, s)):
            if plflags is not None: x = [y + ' ' + plflags if y.startswith('buffer_load') else y for y in x]
            a.ext(x)
            if (j + 1) % PTH == 0: a('s_waitcnt vmcnt(0)')
        a('s_waitcnt vmcnt(0)')
        for e in range(8):
            m = e >> 1; sel = SEL_LO + (e & 1)
            for p in range(4):
                a(f'v_perm_b32 v{HOLD+(s>>1)*64+8*e+4*(s&1)+p}, v{PL+4*(2*p+1)+m}, v{PL+4*(2*p)+m}, s{sel}')
    if latewarm is not None:
        a(f'v_mov_b32 v6, {CNT}')
        lw = lab('wwait')
        a(f'{lw}:\ns_sleep 8\nds_read_b32 v5, v6 offset:20\ns_waitcnt lgkmcnt(0)\nv_readfirstlane_b32 s{sT}, v5\ns_cmp_ge_u32 s{sT}, 1\ns_cbranch_scc0 {lw}')
        a('v_lshlrev_b32 v1, 4, v0')
        a(f's_mul_i32 s52, s{sB}, 10\ns_mul_i32 s53, s{sPW}, 3')
        for i in range(3):
            a(f's_add_u32 s54, s53, {i}\ns_add_u32 s{sT}, s52, s54\ns_add_u32 s{sT}, s{sT}, {32*NHOLD}\ns_lshl_b32 s{sT}, s{sT}, 10\ns_cmp_lt_u32 s54, 10\ns_cselect_b32 s{sT}, s{sT}, 0x400000')
            a(f'buffer_load_dwordx4 v[{PL+4*i}:{PL+4*i+3}], v1, s[48:51], s{sT} offen {lateflags}')
        a('s_waitcnt vmcnt(0)')
    a(f'v_and_b32 v1, 8, v0\nv_mov_b32 v2, 0x4444\nv_mov_b32 v3, 0xeeee\nv_cmp_ne_u32 vcc, 0, v1\ns_nop 1\nv_cndmask_b32 v{vIDX}, v2, v3, vcc')
    a.ext(merge_addr(hA * 16384))
    offA = hA * 16384
    a(f's_mov_b32 s{sC}, {hex(f2u(C_SCALE))}')
    if not redst: stamp(3)
    a('s_barrier')
    if tailst: stamp(8)
    merge_body(zero=12)
    a('s_waitcnt lgkmcnt(0)')
    if tailst: stamp(9)
    a('s_barrier')
    stamp(4)
    pACC = 12; pAF = [44, 48]
    if debug: a('s_waitcnt vmcnt(0)')
    a(f'ds_read_b128 v[{pAF[0]}:{pAF[0]+3}], v{vACT}')
    a(f'ds_read_b128 v[{pAF[1]}:{pAF[1]+3}], v{vACT} offset:64')
    a('s_waitcnt lgkmcnt(1)')
    for e in range(8): a(smf(pACC + 4*e, pAF[0], HOLD + 8*e))
    for k in range(2):
        for x in wo_load_list(HOLD + k*32, 14 + k): a.ext(x)
    a(f'ds_read_b128 v[{pAF[0]}:{pAF[0]+3}], v{vACT} offset:128')
    a('s_waitcnt lgkmcnt(1)')
    for e in range(8): a(smf(pACC + 4*e, pAF[1], HOLD + 64 + 8*e))
    a(f'ds_read_b128 v[{pAF[1]}:{pAF[1]+3}], v{vACT} offset:{64*7}')
    a('s_waitcnt lgkmcnt(1)')
    for e in range(8): a(smf(pACC + 4*e, pAF[0], HOLD + 128 + 8*e))
    a('s_waitcnt vmcnt(0) lgkmcnt(0)')
    a.ext(mm_pair(HOLD, HOLD + 32, [HOLD + 64, HOLD + 72], pAF[1], pACC))
    a('v_and_b32 v2, 15, v0\nv_lshrrev_b32 v3, 4, v0\nv_and_b32 v3, 1, v3\nv_lshrrev_b32 v5, 5, v0')
    a('v_lshrrev_b32 v4, 3, v2\nv_lshlrev_b32 v4, 14, v4\nv_lshlrev_b32 v6, 9, v3\nv_add_u32 v4, v4, v6\nv_lshlrev_b32 v6, 8, v5\nv_add_u32 v4, v4, v6\nv_and_b32 v6, 7, v2\nv_lshlrev_b32 v6, 4, v6\nv_add_u32 v4, v4, v6')
    a(f's_lshl_b32 s{sT}, s{sB}, 3\ns_lshl_b32 s{sT2}, s{sNW}, 1\ns_add_u32 s{sT}, s{sT}, s{sT2}\ns_lshl_b32 s{sT}, s{sT}, 14\ns_lshl_b32 s{sT2}, s{sH}, 11\ns_add_u32 s{sT}, s{sT}, s{sT2}\ns_add_u32 s{sT}, s{sT}, {WS_MB}')
    a(f's_add_u32 s58, s{sWs}, s{sT}\ns_addc_u32 s59, s{sWs+1}, 0')
    a(f's_lshl_b32 s{sT}, s{sNW}, 15\nv_lshlrev_b32 v1, 4, v0\nv_add_u32 v1, s{sT}, v1')
    RA = 120; SM = 152; GR = 184; HH = 200
    for g in range(4): a(f'v_mov_b32 v{GR+4*g+3}, s62')
    a('v_lshrrev_b32 v8, 4, v0\nv_and_b32 v8, 1, v8\nv_lshrrev_b32 v9, 3, v0\nv_and_b32 v9, 1, v9\nv_and_b32 v10, 7, v0\nv_lshrrev_b32 v7, 5, v0')
    a('v_lshlrev_b32 v11, 10, v8\nv_lshlrev_b32 v6, 7, v9\nv_add_u32 v11, v11, v6\nv_lshlrev_b32 v6, 4, v10\nv_add_u32 v11, v11, v6\nv_lshlrev_b32 v6, 11, v7\nv_add_u32 v11, v11, v6')
    for t in range(1, 4): a(f'v_add_u32 v{208+t}, {4096*t}, v11')
    a(f's_lshl_b32 s{sT}, s2, 14\ns_lshl_b32 s{sT2}, s{sNW}, 8\ns_add_u32 s{sT}, s{sT}, s{sT2}\ns_add_u32 s{sT}, s{sT}, {WS_MB}')
    a(f's_add_u32 s56, s{sWs}, s{sT}\ns_addc_u32 s57, s{sWs+1}, 0')
    a(f's_lshl_b32 s{sT}, s{sB}, 3\ns_lshl_b32 s{sT2}, s{sNW}, 1\ns_add_u32 s{sT}, s{sT}, s{sT2}\ns_lshl_b32 s{sT}, s{sT}, 10\ns_lshl_b32 s{sT2}, s{sH}, 7\ns_add_u32 s{sT}, s{sT}, s{sT2}')
    a(f'v_lshlrev_b32 v212, 10, v9\nv_lshlrev_b32 v6, 4, v10\nv_add_u32 v212, v212, v6\nv_lshlrev_b32 v6, 3, v8\nv_add_u32 v212, v212, v6\nv_add_u32 v212, s{sT}, v212')
    a('s_mov_b32 s54, 0xffff0000')
    if tailst: stamp(10)
    a('s_barrier')
    stamp(5)
    for e in range(8): a(f'ds_read_b128 v[{RA+4*e}:{RA+4*e+3}], v1 offset:{offA + e*1024}')
    for hfw, wait in ((0, 4), (1, 0)):
        a(f's_waitcnt lgkmcnt({wait})')
        for e in range(4*hfw, 4*hfw + 4):
            for r in range(4):
                a(f'v_add_f32 v{SM+8*r+e}, v{pACC+4*e+r}, v{RA+4*e+r}')
        a('s_nop 0')
        for rs in range(2):
            for e in range(4*hfw, 4*hfw + 4):
                a(f'v_permlane32_swap_b32 v{SM+8*rs+e}, v{SM+8*(rs+2)+e}')
        for rs in range(2):
            for e in range(4*hfw, 4*hfw + 4):
                a(f'v_add_f32 v{SM+8*rs+e}, v{SM+8*rs+e}, v{SM+8*(rs+2)+e}')
        p = hfw
        for rs in range(2):
            g = GR + 4*(2*rs + p)
            for x in range(2):
                a(f'v_cvt_pk_bf16_f32 v{g+x}, v{SM+8*rs+4*p+2*x}, v{SM+8*rs+4*p+2*x+1}')
    for rs in range(2):
        for p in range(2):
            g = GR + 4*(2*rs + p)
            a.ext(make_granule(g))
            a(f'global_store_dwordx4 v4, v[{g}:{g+3}], s[58:59] offset:{p*1024 + rs*128} sc1')
    if tailst: stamp(11)
    a(f's_mov_b32 s55, {SPIN_MAX}')
    if RPRE: a(f's_sleep {RPRE}')
    lp = lab('rpoll'); ld = lab('rdone')
    a(f'{lp}:')
    for t in range(4):
        va = 11 if t == 0 else 208 + t
        a(f'global_load_dwordx4 v[{12+4*t}:{15+4*t}], v{va}, s[56:57] sc1')
    a('s_waitcnt vmcnt(0)')
    for t in range(4): a.ext(check_granule(12+4*t, 44, 45, t == 0))
    a(f'v_cmp_ne_u32 vcc, 0, v44\ns_cbranch_vccz {ld}')
    a(f's_sub_u32 s55, s55, 1\ns_cmp_eq_u32 s55, 0\ns_cbranch_scc1 {ld}\n' + (f's_sleep {RSLEEP}\n' if RSLEEP else '') + f's_branch {lp}')
    a(f'{ld}:')
    if tailst: a(f's_sub_u32 s78, {SPIN_MAX}, s55')
    for t in range(4):
        g = 12 + 4*t
        d = 28 if t == 0 else 32
        a(f'v_lshlrev_b32 v{d}, 16, v{g}\nv_and_b32 v{d+1}, s54, v{g}\nv_lshlrev_b32 v{d+2}, 16, v{g+1}\nv_and_b32 v{d+3}, s54, v{g+1}')
        if t:
            for k in range(4): a(f'v_add_f32 v{28+k}, v{28+k}, v{32+k}')
    for k in range(4): a(f'v_mov_b32 v{32+k}, v{28+k}')
    a('s_nop 1')
    for k in range(4): a(f'v_permlane32_swap_b32 v{28+k}, v{32+k}')
    a('s_nop 0')
    for k in range(4): a(f'v_add_f32 v{28+k}, v{28+k}, v{32+k}')
    a('v_cvt_pk_bf16_f32 v28, v28, v29\nv_cvt_pk_bf16_f32 v29, v30, v31')
    a('s_mov_b32 exec_lo, -1\ns_mov_b32 exec_hi, 0')
    a(f'global_store_dwordx2 v212, v[28:29], s[{sOut}:{sOut+1}] {outfl}')
    a('s_mov_b64 exec, -1')
    if lite and not stamps:
        stamp(6)
        a('s_waitcnt lgkmcnt(0)')
        a(f's_lshl_b32 s{sT}, s2, 3\ns_add_u32 s{sT}, s{sT}, s{sWave}\ns_lshl_b32 s{sT}, s{sT}, 6\ns_add_u32 s{sT}, s{sT}, {WS_STAMP}\nv_mov_b32 v3, s{sT}')
        a('s_mov_b32 exec_lo, 1\ns_mov_b32 exec_hi, 0\nv_mov_b32 v4, s64\nv_mov_b32 v5, s76')
        a(f'global_store_dwordx2 v3, v[4:5], s[{sWs}:{sWs+1}]')
    if stamps:
        stamp(6)
        a('L_stamps:')
        a('s_waitcnt lgkmcnt(0)')
        a(f's_lshl_b32 s{sT}, s2, 3\ns_add_u32 s{sT}, s{sT}, s{sWave}\ns_lshl_b32 s{sT}, s{sT}, 6\ns_add_u32 s{sT}, s{sT}, {WS_STAMP}\nv_mov_b32 v3, s{sT}')
        a('s_mov_b32 exec_lo, 1\ns_mov_b32 exec_hi, 0')
        for q in range(3):
            regs = [64+2*(4*q+i) for i in range(4)]
            a('\n'.join(f'v_mov_b32 v{4+i}, s{regs[i]}' for i in range(4)))
            a(f'global_store_dwordx4 v3, v[4:7], s[{sWs}:{sWs+1}] offset:{16*q}\ns_nop 1')
    a('L_end:\ns_endpgm')
    a.raw('.section .rodata,"a"\n.p2align 6')
    a.raw(f'.amdhsa_kernel {K}')
    a.raw('  .amdhsa_next_free_vgpr 256\n  .amdhsa_next_free_sgpr 96\n  .amdhsa_accum_offset 256')
    a.raw('  .amdhsa_group_segment_fixed_size 0\n  .amdhsa_kernarg_size 64\n  .amdhsa_user_sgpr_count 2\n  .amdhsa_user_sgpr_kernarg_segment_ptr 1\n  .amdhsa_system_sgpr_workgroup_id_x 1')
    a.raw('.end_amdhsa_kernel')
    return a.text()

if __name__ == '__main__':
    kw = json.loads(sys.argv[2]) if len(sys.argv) > 2 else {}
    open(sys.argv[1], 'w').write(gen(**kw))
```

```python
import sys, json, struct
K = 'standalone__gqa_block_cached__sampling_kernel'

QBUF = 131072
ACT = 139264
ACT_STRIDE = 544
ML = 147968
CNT = 148992
LDS_BYTES = 149056
WS_QX = 0
WS_MB = 0x400000
TAGK = 0x9E3779B9
WS_STAMP = 0xD00000
WS_QDUMP = 0x1000000
WS_ODUMP = 0x2000000
SPIN_MAX = 200000

C_SCALE = 0.08838834764831845 * 1.4426950408889634
def f2u(f): return struct.unpack('<I', struct.pack('<f', f))[0]

class Asm:
    def __init__(self): self.L = []
    def __call__(self, s):
        for line in s.split('\n'):
            line = line.strip()
            if line: self.L.append(('  ' + line) if not line.endswith(':') else line)
    def ext(self, lst):
        for s in lst: self(s)
    def raw(self, s): self.L.append(s)
    def text(self): return '\n'.join(self.L) + '\n'

def interleave(code, blocks, start=0, end=None):
    if end is None: end = len(code)
    n = len(blocks)
    out = list(code[:start])
    span = end - start
    pos = [start + (span * (i + 1)) // (n + 1) for i in range(n)] if n else []
    bi = 0
    for i in range(start, end):
        while bi < n and pos[bi] == i:
            out.extend(blocks[bi]()); bi += 1
        out.append(code[i])
    while bi < n:
        out.extend(blocks[bi]()); bi += 1
    out.extend(code[end:])
    return out

class VM:
    def __init__(self): self.ops = []; self.done = 0
    def add(self, tag, piece=False): self.ops.append((tag, piece))
    def _wait(self, idx):
        if idx < self.done: return []
        n = len(self.ops) - 1 - idx
        self.done = idx + 1
        assert n <= 63, n
        return [f's_waitcnt vmcnt({n})']
    def window(self, W):
        pcs = [i for i, (t, p) in enumerate(self.ops) if p]
        if len(pcs) < W: return []
        return self._wait(pcs[-W])
    def need(self, tag):
        idx = [i for i, (t, p) in enumerate(self.ops) if t == tag]
        assert idx, tag
        return self._wait(idx[-1])

sX, sKp, sVp, sWq, sWo, sOut, sDbg, sWs = 4, 6, 8, 10, 12, 14, 16, 18
sWave, sH, sB, sNW = 20, 21, 22, 23
sT, sT2, sC = 34, 38, 36
SEL_LO, SEL_HI = 40, 41

def gen(lite=False, W=5, W0=None, layout='p1', flags='nt', debug=False, wqflags='', woflags='', stamps=False, pprio=True,
        PTH=2, QSLEEP=4, RSLEEP=2, AGATE=None, stage=True, QPF=False, QPFSLEEP=0, x_noq=False, x_nopoll=False, x_nost=False, x_noload=False, PWIN=None, xflags='', aprio=False, PDELAY=0, qst='sc1', qld='sc1', tailst=False, LATE12=0, opst=False, P14AT=(3, 5), A13AT=1, x_xcontig=False, x_halfw=False, AFIRST=0, WHI=None, THR0=1350, DTH=455, warmflags=None, wosplit=False, plflags=None, latewarm=None, lateflags='nt', probe=False, PSLEEP=2, QGATE=None, XDMA=True, outfl='', AORD=0, oprio=0, M13=True, loopst=False, WR=16, startst=False, WRMODE=1, PLDELAY=0, WEND=None, WHICNT=None, QACK=True, QPRE=0, RPRE=0, PKADD=True, redst=False, hstage=False, HS_N=8, endmix=0, RPIPE=0, LALIGN=None, LPAD=0, PALIGN=None):
    NHOLD = 6
    W0 = W0 or W
    a = Asm()
    uid = [0]
    def lab(n):
        uid[0] += 1
        return f'L_{n}_{uid[0]}'
    def lds_spin(off, target, vaddr, vtmp):
        l = lab('spin')
        a(f'{l}:')
        a(f'ds_read_b32 v{vtmp}, v{vaddr} offset:{off}\ns_waitcnt lgkmcnt(0)\nv_readfirstlane_b32 s{sT}, v{vtmp}\ns_cmp_ge_u32 s{sT}, {target}\ns_cbranch_scc0 {l}')
    def lds_inc(off, vaddr, vone):
        a(f's_mov_b32 exec_lo, 1\ns_mov_b32 exec_hi, 0\nds_add_u32 v{vaddr}, v{vone} offset:{off}\ns_mov_b64 exec, -1')
    def get_nonce():
        pass
    def make_granule(g):
        return [f'v_xor_b32 v{g+2}, v{g}, v{g+1}', f'v_xor_b32 v{g+2}, s61, v{g+2}']
    def check_granule(g, bad, tmp, first):
        o = [f'v_xor_b32 v{tmp}, v{g}, v{g+1}', f'v_xor_b32 v{tmp}, v{tmp}, v{g+2}', f'v_xor_b32 v{tmp}, v{tmp}, v{g+3}', f'v_xor_b32 v{tmp}, {hex(TAGK)}, v{tmp}',
             f'v_subrev_u32 v{tmp+1}, s60, v{g+3}', f'v_lshrrev_b32 v{tmp+1}, 12, v{tmp+1}']
        o.append(f'v_or_b32 v{bad}, v{tmp}, v{tmp+1}' if first else f'v_or3_b32 v{bad}, v{bad}, v{tmp}, v{tmp+1}')
        return o
    def stamp(i):
        if stamps: a(f's_memrealtime s[{64+2*i}:{65+2*i}]')
        elif lite and i in (0, 6): a(f's_memrealtime s[{64+2*i}:{65+2*i}]')

    vK = list(range(8, 16)); vV = list(range(16, 20)); vDK = list(range(20, 24)); vDV = 24
    vM, vL, vNM, vAl = 25, 26, 27, 28
    T = list(range(29, 36))
    P0, S0, Q0, KV0, O0, R0 = 36, 44, 60, 92, 124, 188
    vWO = 252; vACT = 253; vIDX = 255
    SRD_K, SRD_V, SRD_WO = 24, 28, 44
    sRing, sG, sCnt = 32, 33, 35
    if layout == 'p1':   Bu = lambda u: 4096 * u;  Cw = 1024
    elif layout == 'p2': Bu = lambda u: 8192 * (u >> 1) + 1024 * (u & 1); Cw = 2048
    elif layout == 'p4': Bu = lambda u: 16384 * (u >> 2) + 1024 * (u & 3); Cw = 4096
    elif layout == 'p8': Bu = lambda u: 1024 * u; Cw = 8192

    a.raw(f'; @launch grid=(256,1,1) block=(512,1,1) lds={LDS_BYTES}')
    a.raw('.amdgcn_target "amdgcn-amd-amdhsa--gfx950"')
    a.raw('.text')
    a.raw(f'.globl {K}\n.p2align 8\n.type {K},@function\n{K}:')
    a('s_cmp_ge_u32 s2, 256\ns_cbranch_scc1 L_end')
    a('s_load_dwordx16 s[4:19], s[0:1], 0')
    a('s_memrealtime s[62:63]')
    stamp(0)
    a(f'v_mov_b32 v2, {CNT}\nv_mov_b32 v3, 0')
    for o in range(0, 32, 4): a(f'ds_write_b32 v2, v3 offset:{o}')
    a('v_lshrrev_b32 v1, 6, v0\nv_and_b32 v0, 63, v0')
    a(f'v_readfirstlane_b32 s{sWave}, v1')
    a(f's_and_b32 s{sH}, s2, 7\ns_lshr_b32 s{sB}, s2, 3')
    a(f's_mov_b32 s{SEL_LO}, 0x05040100\ns_mov_b32 s{SEL_HI}, 0x07060302')
    a(f'v_lshrrev_b32 v2, 4, v0\nv_and_b32 v3, 15, v0\nv_lshlrev_b32 v2, 13, v2\nv_lshlrev_b32 v4, 4, v3\nv_add_u32 v{vWO}, v2, v4')
    a(f'v_and_b32 v2, 15, v0\nv_mul_u32_u24 v2, {ACT_STRIDE}, v2\nv_lshrrev_b32 v3, 4, v0\nv_lshlrev_b32 v3, 4, v3\nv_add_u32 v2, v2, v3\nv_add_u32 v{vACT}, {ACT}, v2')
    a(f's_and_b32 s{sNW}, s{sWave}, 3')
    a('s_waitcnt lgkmcnt(0)')
    a(f's_sub_u32 s60, s62, 2048\ns_xor_b32 s61, s62, {hex(TAGK)}')
    a(f's_lshl_b32 s{sT}, s{sH}, 19\ns_lshl_b32 s{sT2}, s{sNW}, 8\ns_add_u32 s{sT}, s{sT}, s{sT2}')
    a(f's_add_u32 s{SRD_WO}, s{sWo}, s{sT}\ns_addc_u32 s{SRD_WO+1}, s{sWo+1}, 0\ns_and_b32 s{SRD_WO+1}, s{SRD_WO+1}, 0xffff')
    a(f's_sub_u32 s{SRD_WO+2}, 524288, s{sT2}\ns_mov_b32 s{SRD_WO+3}, 0x20000')
    if not AFIRST: a('s_barrier')
    a(f's_cmp_ge_u32 s{sWave}, 4\ns_cbranch_scc1 L_pwave')

    def perms(land, e, tb):
        m = e >> 1; sel = SEL_LO + (e & 1); t = tb[e % 2]
        return [f'v_perm_b32 v{t+p}, v{land+4*(2*p+1)+m}, v{land+4*(2*p)+m}, s{sel}' for p in range(4)]
    def mm_block(land, tb, afs, accs, first=False):
        o = perms(land, 0, tb) + perms(land, 1, tb)
        for e in range(8):
            t = tb[e % 2]
            if e == 7 and len(afs) == 1: o.append('s_nop 0')
            for af, acc in zip(afs, accs):
                c = '0' if first else f'v[{acc+4*e}:{acc+4*e+3}]'
                o.append(f'v_mfma_f32_16x16x32_bf16 v[{acc+4*e}:{acc+4*e+3}], v[{af}:{af+3}], v[{t}:{t+3}], {c}')
            if e + 2 < 8: o += perms(land, e + 2, tb)
        return o
    def smf(acc, af, bop):
        return f'v_smfmac_f32_16x16x64_bf16 v[{acc}:{acc+3}], v[{af}:{af+3}], v[{bop}:{bop+7}], v{vIDX}'
    def mm_pair(landA, landB, tb, af, acc):
        def pp(e):
            m = e >> 1; sel = SEL_LO + (e & 1); t = tb[e % 2]
            return ([f'v_perm_b32 v{t+p}, v{landA+4*(2*p+1)+m}, v{landA+4*(2*p)+m}, s{sel}' for p in range(4)] +
                    [f'v_perm_b32 v{t+4+p}, v{landB+4*(2*p+1)+m}, v{landB+4*(2*p)+m}, s{sel}' for p in range(4)])
        o = pp(0) + pp(1)
        for e in range(8):
            if e == 7: o.append('s_nop 0')
            o.append(smf(acc + 4*e, af, tb[e % 2]))
            if e + 2 < 8: o += pp(e + 2)
        return o
    def transpose_pair_inplace(b, t0, t1):
        o = []
        P_ = lambda d, hi_, lo_, x: f'v_perm_b32 v{d}, v{hi_}, v{lo_}, s{SEL_LO + x}'
        for blk in range(2):
            ix = lambda aa, bb, cc: b + 16*aa + 8*bb + 4*blk + cc
            for p in range(4):
                o += [P_(t0, ix(p,1,p), ix(p,0,p), 0), P_(ix(p,1,p), ix(p,1,p), ix(p,0,p), 1), f'v_mov_b32 v{ix(p,0,p)}, v{t0}']
            for p in range(4):
                for m in range(p + 1, 4):
                    o += [P_(t0, ix(p,1,m), ix(p,0,m), 0), P_(t1, ix(p,1,m), ix(p,0,m), 1),
                          P_(ix(p,0,m), ix(m,1,p), ix(m,0,p), 0), P_(ix(p,1,m), ix(m,1,p), ix(m,0,p), 1),
                          f'v_mov_b32 v{ix(m,0,p)}, v{t0}', f'v_mov_b32 v{ix(m,1,p)}, v{t1}']
        return o
    def transpose_inplace(b, t0, t1):
        o = []
        P_ = lambda d, hi_, lo_, x: f'v_perm_b32 v{d}, v{hi_}, v{lo_}, s{SEL_LO + x}'
        for p in range(4):
            o += [P_(t0, b+8*p+4+p, b+8*p+p, 0), P_(b+8*p+4+p, b+8*p+4+p, b+8*p+p, 1), f'v_mov_b32 v{b+8*p+p}, v{t0}']
        for p in range(4):
            for m in range(p + 1, 4):
                o += [P_(t0, b+8*p+4+m, b+8*p+m, 0), P_(t1, b+8*p+4+m, b+8*p+m, 1),
                      P_(b+8*p+m, b+8*m+4+p, b+8*m+p, 0), P_(b+8*p+4+m, b+8*m+4+p, b+8*m+p, 1),
                      f'v_mov_b32 v{b+8*m+p}, v{t0}', f'v_mov_b32 v{b+8*m+4+p}, v{t1}']
        return o
    vMa, vMb, vMc, vMd = 52, 53, 54, 55
    def merge_addr(offA):
        o = [f's_lshl_b32 s{sT}, s{sWave}, 6', f'v_add_u32 v1, s{sT}, v0', 'v_lshrrev_b32 v2, 4, v1', 'v_and_b32 v3, 15, v1',
             f'v_lshlrev_b32 v{vMa}, 5, v2', f'v_add_u32 v{vMa}, {ML}, v{vMa}',
             'v_and_b32 v5, 7, v2', 'v_xor_b32 v5, v5, v3', 'v_lshlrev_b32 v5, 4, v5', 'v_lshlrev_b32 v6, 9, v2', 'v_add_u32 v5, v5, v6', f'v_add_u32 v{vMb}, {offA}, v5',
             f'v_add_u32 v{vMc}, 65536, v{vMb}',
             'v_and_b32 v4, 7, v2', f'v_mul_u32_u24 v4, {ACT_STRIDE}, v4', 'v_lshrrev_b32 v5, 3, v2', 'v_lshlrev_b32 v5, 7, v5', 'v_add_u32 v4, v4, v5', 'v_lshlrev_b32 v5, 2, v3', 'v_add_u32 v4, v4, v5', f'v_add_u32 v{vMd}, {ACT}, v4']
        return o
    def merge_body(hook=None, zero=None):
        a(f'ds_read_b128 v[8:11], v{vMa}\nds_read_b128 v[12:15], v{vMa} offset:16')
        for w in range(4):
            for half in range(2):
                r = 16 + (w*2 + half)*4
                a(f'ds_read_b128 v[{r}:{r+3}], v{vMb if w < 2 else vMc} offset:{(w&1)*32768 + 256*half}')
        if hook is not None: hook()
        a('s_waitcnt lgkmcnt(8)')
        a('v_max3_f32 v48, v8, v9, v10\nv_max_f32 v48, v48, v11')
        for w in range(4): a(f'v_sub_f32 v{8+w}, v{8+w}, v48')
        for w in range(4): a(f'v_mul_f32 v{8+w}, s{sC}, v{8+w}')
        for w in range(4): a(f'v_exp_f32 v{8+w}, v{8+w}')
        a('s_nop 0')
        a('v_mul_f32 v48, v8, v12\nv_fmac_f32 v48, v9, v13\nv_fmac_f32 v48, v10, v14\nv_fmac_f32 v48, v11, v15')
        a('v_rcp_f32 v48, v48\ns_nop 0')
        for w in range(4): a(f'v_mul_f32 v{8+w}, v{8+w}, v48')
        a('s_waitcnt lgkmcnt(0)')
        for half in range(2):
            for i in range(4): a(f'v_mul_f32 v{16+half*4+i}, v8, v{16+half*4+i}')
        for w in range(1, 4):
            for half in range(2):
                for i in range(4): a(f'v_fmac_f32 v{16+half*4+i}, v{8+w}, v{16+(w*2+half)*4+i}')
        a('v_cvt_pk_bf16_f32 v48, v16, v17\nv_cvt_pk_bf16_f32 v49, v18, v19\nv_cvt_pk_bf16_f32 v50, v20, v21\nv_cvt_pk_bf16_f32 v51, v22, v23')
        a(f'ds_write2_b32 v{vMd}, v48, v50 offset1:16\nv_add_u32 v{vMd}, {8*ACT_STRIDE}, v{vMd}\nds_write2_b32 v{vMd}, v49, v51 offset1:16')
        if zero is not None:
            for r in range(zero, zero + 32): a(f'v_mov_b32 v{r}, 0')
        if debug:
            a(f's_lshl_b32 s{sT}, s{sWave}, 6\nv_add_u32 v1, s{sT}, v0\nv_lshrrev_b32 v2, 4, v1\nv_and_b32 v3, 15, v1')
            a(f'v_and_b32 v4, 7, v2\nv_lshlrev_b32 v4, 13, v4\nv_lshrrev_b32 v5, 3, v2\nv_lshlrev_b32 v5, 8, v5\nv_add_u32 v4, v4, v5\nv_lshlrev_b32 v5, 3, v3\nv_add_u32 v4, v4, v5')
            a(f's_lshl_b32 s{sT}, s{sB}, 16\ns_lshl_b32 s{sT2}, s{sH}, 10\ns_add_u32 s{sT}, s{sT}, s{sT2}\ns_add_u32 s{sT}, s{sT}, {WS_ODUMP}\nv_add_u32 v4, s{sT}, v4')
            a(f'global_store_dwordx2 v4, v[48:49], s[{sWs}:{sWs+1}]\nglobal_store_dwordx2 v4, v[50:51], s[{sWs}:{sWs+1}] offset:128')
            a('s_waitcnt vmcnt(0)')
    def wo_load_list(land, s, regmap=None):
        o = []
        for j in range(8):
            r = land + 4*j if regmap is None else regmap(j)
            o.append([f's_mov_b32 s{sT}, {s*32768 + (j//4)*4096}',
                      f'buffer_load_dwordx4 v[{r}:{r+3}], v{vWO}, s[{SRD_WO}:{SRD_WO+3}], s{sT} offen offset:{(j%4)*1024} {woflags}'])
        return o
    def wo_dma_list(ldsoff, s):
        o = []
        for j in range(8):
            o.append([f's_add_u32 m0, s{sRing}, {ldsoff + j*1024}', f's_mov_b32 s{sT}, {s*32768 + j*1024}',
                      f'buffer_load_dwordx4 v{vWO}, s[{SRD_WO}:{SRD_WO+3}], s{sT} offen {woflags} lds'])
        return o

    a('s_mov_b32 s3, 0')
    if aprio: a('s_setprio 3')
    a(f's_lshl_b32 s{sT}, s2, 19')
    for srd, p in ((SRD_K, sKp), (SRD_V, sVp)):
        a(f's_add_u32 s{srd}, s{p}, s{sT}\ns_addc_u32 s{srd+1}, s{p+1}, 0\ns_and_b32 s{srd+1}, s{srd+1}, 0xffff')
        a(f's_mov_b32 s{srd+2}, 524288\ns_mov_b32 s{srd+3}, 0x20000')
    a(f's_lshl_b32 s{sRing}, s{sWave}, 15')
    a(f's_mul_i32 s{sG}, s{sWave}, {Cw}')
    a(f's_mov_b32 s{sC}, {hex(f2u(C_SCALE))}')
    a('v_lshrrev_b32 v1, 4, v0\nv_and_b32 v2, 15, v0')
    a('v_lshlrev_b32 v3, 8, v1')
    a('v_xor_b32 v4, v2, v1')
    for u in range(4):
        a(f'v_xor_b32 v5, {4*u}, v4\nv_lshlrev_b32 v5, 4, v5\nv_add_u32 v{vDK[u]}, v3, v5')
    a(f'v_lshlrev_b32 v5, 2, v1\nv_xor_b32 v5, v5, v2\nv_lshlrev_b32 v5, 4, v5\nv_add_u32 v{vDV}, v3, v5')

    vm = VM()
    force = [False]
    gbase = [0]
    def issue(kv, hb, u, tile, win, toreg=None):
        o = vm.window(win) if win else []
        if force[0] and not o: o = [f's_waitcnt vmcnt({win-1})']
        if force[0]: assert o == [f's_waitcnt vmcnt({win-1})'], o
        goff = (tile - gbase[0]) * 32768 + Bu(u)
        vd = vDK[u & 3] if kv == 'K' else vDV
        srd = SRD_K if kv == 'K' else SRD_V
        if toreg is None:
            o.append(f's_add_u32 m0, s{sRing}, {hb*16384 + (8192 if kv=="V" else 0) + 1024*u}')
            o.append(f's_add_u32 s{sT}, s{sG}, {goff}')
            o.append(f'buffer_load_dwordx4 v{vd}, s[{srd}:{srd+3}], s{sT} offen {flags} lds')
        else:
            o.append(f's_add_u32 s{sT}, s{sG}, {goff}')
            o.append(f'buffer_load_dwordx4 v[{toreg}:{toreg+3}], v{vd}, s[{srd}:{srd+3}], s{sT} offen {flags}')
        vm.add((kv, tile), True)
        return o
    def other(lst, tag):
        def f():
            vm.add(tag, False)
            return list(lst)
        return f

    npro = [0]
    def pro(kv, hb, tile, toreg=None, us=range(8)):
        for u in us:
            if AGATE is not None and npro[0] == AGATE:
                a(f'v_mov_b32 v6, {CNT}'); lds_spin(24, 4, 6, 7)
            a.ext(issue(kv, hb, u, tile, W0, None if toreg is None else toreg + 4*u)); npro[0] += 1
            if QGATE is not None and npro[0] == QGATE:
                a(f'v_mov_b32 v6, {CNT}\nv_mov_b32 v7, 1'); lds_inc(24, 6, 7)
    if AFIRST:
        for u in range(AFIRST):
            pro('K', 0, 0, us=[u]); pro('V', 0, 0, us=[u])
        a('s_barrier')
        pro('K', 0, 0, us=range(AFIRST, 8))
    else:
        pro('K', 0, 0)
    a('v_and_b32 v1, 31, v0\nv_lshrrev_b32 v2, 5, v0')
    a('v_and_b32 v3, 15, v1\nv_xor_b32 v3, v3, v2')
    a(f'v_lshlrev_b32 v4, 8, v1\nv_add_u32 v4, s{sRing}, v4')
    for s in range(8):
        a(f'v_xor_b32 v5, {2*s}, v3\nv_lshlrev_b32 v5, 4, v5\nv_add_u32 v{vK[s]}, v4, v5')
    a('v_lshrrev_b32 v1, 4, v0')
    a('v_lshrrev_b32 v2, 2, v0\nv_and_b32 v2, 3, v2')
    a('v_and_b32 v3, 3, v0')
    a('v_lshrrev_b32 v4, 1, v1\nv_lshlrev_b32 v4, 2, v4\nv_add_u32 v4, v4, v2\nv_lshlrev_b32 v4, 8, v4')
    a('v_and_b32 v5, 1, v1\nv_lshlrev_b32 v5, 5, v5\nv_add_u32 v4, v4, v5')
    a('v_lshlrev_b32 v5, 3, v3\nv_add_u32 v4, v4, v5')
    a(f'v_add_u32 v4, s{sRing}, v4\nv_add_u32 v4, 8192, v4')
    for blk in range(4):
        a(f'v_xor_b32 v5, {blk}, v2\nv_lshlrev_b32 v5, 6, v5\nv_add_u32 v{vV[blk]}, v4, v5')
    a(f'v_mov_b32 v{vM}, 0xff800000\nv_mov_b32 v{vL}, 0')
    for r in range(64): a(f'v_mov_b32 v{O0+r}, 0')
    vLIN = 254
    a(f'v_lshlrev_b32 v{vLIN}, 4, v0\nv_add_u32 v{vLIN}, s{sRing}, v{vLIN}')
    pro('V', 0, 0, us=range(AFIRST, 8))
    if not (loopst or startst): stamp(8)
    pro('K', 1, 1)
    if not (loopst or startst): stamp(9)
    if stage:
        pro('K', 0, 2, toreg=R0)
        if not (loopst or startst): stamp(10)
        pro('V', 0, 2, toreg=R0 + 32)
        if not (loopst or startst): stamp(11)
    a(f'v_mov_b32 v6, {CNT}')
    if not x_noq: lds_spin(4, 2, 6, 7)
    pro('V', 1, 1)
    if hstage:
        pro('K', 0, 2, toreg=R0, us=range(HS_N))
    if not loopst: stamp(1)
    if aprio: a('s_setprio 0')
    a('s_barrier')
    if not loopst: stamp(2)
    a(f's_sub_u32 s{sT}, {QBUF}, s{sRing}')
    for s in range(8):
        a(f'v_add_u32 v1, s{sT}, v{vK[s]}\nds_read_b128 v[{Q0+4*s}:{Q0+4*s+3}], v1')
    a('s_waitcnt lgkmcnt(0)')

    def tile(hb, tidx, kblocks=(), vblocks=(), after_k=None, after_v=None, after_qk=None, inloop=False, final=False, bump=False, pre_v=None, mid=None, kfront=False):
        c = []
        off = hb * 16384
        if not inloop: c += vm.need(('K', tidx))
        for s in range(8):
            c.append(f'ds_read_b128 v[{KV0+4*s}:{KV0+4*s+3}], v{vK[s]} offset:{off}')
        c.append('s_waitcnt lgkmcnt(4)')
        for s in range(8):
            if s == 4: c.append('s_waitcnt lgkmcnt(0)')
            srcc = '0' if s == 0 else f'v[{S0}:{S0+15}]'
            c.append(f'v_mfma_f32_32x32x16_bf16 v[{S0}:{S0+15}], v[{KV0+4*s}:{KV0+4*s+3}], v[{Q0+4*s}:{Q0+4*s+3}], {srcc}')
        vreads = []
        for s2 in range(2):
            for blk in range(4):
                for half in range(2):
                    r = KV0 + (s2*4 + blk)*4 + 2*half
                    vreads.append(f'ds_read_b64_tr_b16 v[{r}:{r+1}], v{vV[blk]} offset:{off + s2*4096 + half*2048}')
        nw = 0
        if after_k is not None:
            x = after_k(); c += x; nw += len(x)
        if after_qk is not None:
            x = after_qk(); c += x; nw += len(x)
        if not final:
            if not inloop: c += vm.need(('V', tidx))
            c.extend(vreads); nw += 16
        if nw < 12: c.append(f's_nop {min(7, 11 - nw)}'); nw += min(8, 12 - nw)
        if nw < 12: c.append(f's_nop {11 - nw}')
        sm = []
        S = lambda k: S0 + k
        sm.append(f'v_max3_f32 v{T[0]}, v{S(0)}, v{S(1)}, v{S(2)}')
        sm.append(f'v_max3_f32 v{T[1]}, v{S(3)}, v{S(4)}, v{S(5)}')
        sm.append(f'v_max3_f32 v{T[2]}, v{S(6)}, v{S(7)}, v{S(8)}')
        sm.append(f'v_max3_f32 v{T[3]}, v{S(9)}, v{S(10)}, v{S(11)}')
        sm.append(f'v_max3_f32 v{T[4]}, v{S(12)}, v{S(13)}, v{S(14)}')
        sm.append(f'v_max3_f32 v{T[0]}, v{T[0]}, v{T[1]}, v{S(15)}')
        sm.append(f'v_max3_f32 v{T[2]}, v{T[2]}, v{T[3]}, v{T[4]}')
        sm.append(f'v_max_f32 v{T[0]}, v{T[0]}, v{T[2]}')
        sm.append(f'v_mov_b32 v{T[1]}, v{T[0]}')
        sm.append('s_nop 1')
        sm.append(f'v_permlane32_swap_b32 v{T[0]}, v{T[1]}')
        sm.append(f's_nop 1')
        sm.append(f'v_max3_f32 v{T[0]}, v{T[0]}, v{T[1]}, v{vM}')
        sm.append(f'v_mul_f32 v{vNM}, s{sC}, v{T[0]}')
        sm.append(f'v_fma_f32 v{vAl}, v{vM}, s{sC}, -v{vNM}')
        sm.append(f'v_mov_b32 v{vM}, v{T[0]}')
        sm.append(f'v_exp_f32 v{vAl}, v{vAl}')
        for k in range(16): sm.append(f'v_fma_f32 v{S(k)}, v{S(k)}, s{sC}, -v{vNM}')
        for k in range(16): sm.append(f'v_exp_f32 v{S(k)}, v{S(k)}')
        sm.append(f'v_mul_f32 v{vL}, v{vL}, v{vAl}')
        for k in range(4): sm.append(f'v_add_f32 v{T[k]}, v{S(k)}, v{S(k+4)}')
        for k in range(4): sm.append(f'v_add_f32 v{T[k]}, v{T[k]}, v{S(k+8)}')
        for k in range(4): sm.append(f'v_add_f32 v{T[k]}, v{T[k]}, v{S(k+12)}')
        sm.append(f'v_add_f32 v{T[0]}, v{T[0]}, v{T[1]}')
        sm.append(f'v_add_f32 v{T[2]}, v{T[2]}, v{T[3]}')
        for k in range(8): sm.append(f'v_cvt_pk_bf16_f32 v{P0+k}, v{S(2*k)}, v{S(2*k+1)}')
        sm.append(f'v_add_f32 v{vL}, v{vL}, v{T[0]}')
        sm.append(f'v_add_f32 v{vL}, v{vL}, v{T[2]}')
        for r in range(64): sm.append(f'v_mul_f32 v{O0+r}, v{O0+r}, v{vAl}')
        if kfront:
            for b in kblocks: c.extend(b())
            c.extend(sm)
        else:
            c.extend(interleave(sm, list(kblocks)))
        if mid is not None: c += mid()
        if pre_v is not None: c += pre_v()
        if final:
            c += vm.need(('V', tidx))
            c.extend(vreads)
        c.append('s_waitcnt lgkmcnt(0)')
        if after_v is not None: c += after_v()
        pv = []
        for s2 in range(2):
            for blk in range(4):
                r = KV0 + (s2*4 + blk)*4
                pv.append(f'v_mfma_f32_32x32x16_bf16 v[{O0+16*blk}:{O0+16*blk+15}], v[{r}:{r+3}], v[{P0+4*s2}:{P0+4*s2+3}], v[{O0+16*blk}:{O0+16*blk+15}]')
        vb = list(vblocks)
        per = -(-len(vb) // 8) if vb else 0
        for i in range(8):
            c.append(pv[i])
            for b in vb[i*per:(i+1)*per]: c.extend(b())
        if bump:
            c.append(f's_add_u32 s{sG}, s{sG}, 32768'); gbase[0] += 1
        return c
    def iss(kv, hb, tile_): return [(lambda u=u: issue(kv, hb, u, tile_, W)) for u in range(8)]

    if stage:
        def wrK():
            return vm.need(('K', 2)) + [f'ds_write_b128 v{vLIN}, v[{R0+4*u}:{R0+4*u+3}] offset:{16384 + 1024*u}' for u in range(8)]
        def wrV():
            return vm.need(('V', 2)) + [f'ds_write_b128 v{vLIN}, v[{R0+32+4*u}:{R0+32+4*u+3}] offset:{16384 + 8192 + 1024*u}' for u in range(8)]
        if WR:
            issr = lambda kv: [(lambda u=u: issue(kv, 0, u, 3, WR)) for u in range(8)]
            if startst: a('s_memrealtime s[80:81]\ns_waitcnt lgkmcnt(0)')
            if WRMODE == 0:
                a.ext(tile(0, 0, kblocks=issr('K'), vblocks=issr('V'), kfront=True))
            else:
                a.ext(tile(0, 0, kblocks=issr('K'), kfront=True))
            if startst: a('s_memrealtime s[82:83]\ns_waitcnt lgkmcnt(0)')
            if WRMODE == 0:
                a.ext(tile(1, 1, after_k=wrK, after_v=wrV))
            elif WRMODE == 1:
                a.ext(tile(1, 1, kblocks=issr('V'), kfront=True, after_k=wrK, after_v=wrV))
            else:
                a.ext(tile(1, 1, kblocks=issr('V'), after_k=wrK, after_v=wrV))
            if startst: a('s_memrealtime s[84:85]\ns_waitcnt lgkmcnt(0)')
        else:
            a.ext(tile(0, 0, kblocks=iss('K', 0, 3)))
            a.ext(tile(1, 1, kblocks=iss('V', 0, 3), after_k=wrK, after_v=wrV))
        a(f's_add_u32 s{sG}, s{sG}, {4*32768}'); gbase[0] = 4
        first_loop, nit, order = 2, 5, (1, 0)
    elif hstage:
        def wrK2():
            return vm.need(('K', 2)) + [f'ds_write_b128 v{vLIN}, v[{R0+4*u}:{R0+4*u+3}] offset:{1024*u}' for u in range(HS_N)]
        kb0 = [(lambda u=u: issue('K', 0, u, 2, W)) for u in range(HS_N, 8)]
        vb0 = [(lambda u=u: (['s_waitcnt lgkmcnt(0)'] if u == 0 else []) + issue('V', 0, u, 2, W)) for u in range(8)]
        a.ext(tile(0, 0, kblocks=kb0 + vb0, after_v=wrK2))
        a.ext(tile(1, 1, kblocks=iss('K', 1, 3), vblocks=iss('V', 1, 3)))
        a(f's_add_u32 s{sG}, s{sG}, {4*32768}'); gbase[0] = 4
        first_loop, nit, order = 2, 5, (0, 1)
    else:
        a(f's_add_u32 s{sG}, s{sG}, {2*32768}'); gbase[0] = 2
        first_loop, nit, order = 0, 6, (0, 1)
    a(f's_mov_b32 s{sCnt}, {nit}')
    if WHI: a(f's_mov_b32 s50, {THR0}')
    if LALIGN: a.raw(f'.p2align {LALIGN}')
    for _ in range(LPAD): a('s_nop 0')
    a('L_loop:')
    if loopst:
        a('s_mov_b32 s86, s84\ns_mov_b32 s84, s82\ns_mov_b32 s82, s80\ns_mov_b32 s80, s66\ns_memrealtime s[66:67]\ns_waitcnt lgkmcnt(0)')
    if WHI:
        if WHICNT is not None:
            a(f's_cmp_le_u32 s{sCnt}, {WHICNT}\ns_cbranch_scc1 L_fast')
        else:
            a('s_memrealtime s[48:49]\ns_waitcnt lgkmcnt(0)\ns_sub_u32 s48, s48, s62\ns_cmp_gt_u32 s48, s50\ns_cbranch_scc1 L_fast')
    force[0] = True
    snap = (list(vm.ops), vm.done, gbase[0])
    for hb in order:
        t = gbase[0]
        a.ext(tile(hb, None, kblocks=iss('K', hb, t), vblocks=iss('V', hb, t), inloop=True, bump=True))
    force[0] = False
    if WHI:
        a('s_branch L_next')
        a('L_fast:')
        after = (list(vm.ops), vm.done, gbase[0])
        vm.ops, vm.done, gbase[0] = list(snap[0]), snap[1], snap[2]
        def issue_hi(kv, hb, u, tile_):
            o = [f's_waitcnt vmcnt({WHI-1})']
            goff = (tile_ - gbase[0]) * 32768 + Bu(u)
            vd = vDK[u & 3] if kv == 'K' else vDV
            srd = SRD_K if kv == 'K' else SRD_V
            o.append(f's_add_u32 m0, s{sRing}, {hb*16384 + (8192 if kv=="V" else 0) + 1024*u}')
            o.append(f's_add_u32 s{sT}, s{sG}, {goff}')
            o.append(f'buffer_load_dwordx4 v{vd}, s[{srd}:{srd+3}], s{sT} offen {flags} lds')
            return o
        for hb in order:
            t = gbase[0]
            a.ext(tile(hb, None, kblocks=[(lambda u=u, hb=hb, t=t: issue_hi('K', hb, u, t)) for u in range(8)],
                       vblocks=[(lambda u=u, hb=hb, t=t: issue_hi('V', hb, u, t)) for u in range(8)], inloop=True, bump=True))
        vm.ops, vm.done, gbase[0] = after
        a('L_next:')
        a(f's_add_u32 s50, s50, {DTH}')
    if latewarm is not None:
        l = lab('noflag')
        a(f's_cmp_eq_u32 s{sCnt}, {latewarm}\ns_cbranch_scc0 {l}')
        a(f'v_mov_b32 v1, {CNT}\nv_mov_b32 v2, 1\nds_write_b32 v1, v2 offset:20')
        a(f'{l}:')
    a(f's_sub_u32 s{sCnt}, s{sCnt}, 1\ns_cmp_lg_u32 s{sCnt}, 0\ns_cbranch_scc1 L_loop')
    if loopst: a('s_memrealtime s[68:69]\ns_waitcnt lgkmcnt(0)')
    for it in range(1, nit):
        for hb in order:
            t = gbase[0]
            for u in range(8): vm.add(('K', t), True)
            for u in range(8): vm.add(('V', t), True)
            gbase[0] += 1
    vm.done = len(vm.ops) - max(W, WHI or 0)
    assert gbase[0] == 14, gbase
    hB, hA = order
    wl = wo_load_list(R0, 6, lambda j: R0 + 16*(j >> 1) + 8*(j & 1)) + wo_load_list(R0, 7, lambda j: R0 + 16*(j >> 1) + 8*(j & 1) + 4)
    kb = []; vb = []
    for u in range(8):
        kb.append(lambda u=u: issue('K', hB, u, 14, WEND or W)); kb.append(other(wl[u], 'wo6'))
    for u in range(8):
        vb.append(lambda u=u: issue('V', hB, u, 14, WEND or W)); vb.append(other(wl[8+u], 'wo7'))
    a.ext(tile(hB, 12, kblocks=kb, vblocks=vb, bump=True))
    isse = lambda kv: [(lambda u=u: issue(kv, hA, u, 15, WEND or W)) for u in range(8)]
    v15 = isse('V')
    a.ext(tile(hA, 13, kblocks=isse('K'), vblocks=v15[:8 - endmix], bump=True))
    gbase_save = gbase[0]
    d8 = wo_dma_list(hB*16384, 8); d9 = wo_dma_list(hB*16384 + 8192, 9)
    def pretr():
        return vm.need('wo7') + transpose_pair_inplace(R0, 1, 2)
    late15 = [(lambda u=u: issue('V', hA, u, 15, WEND or W)) for u in range(8 - endmix, 8)]
    kb14 = []
    for i in range(8):
        if i < len(late15): kb14.append(late15[i])
        kb14.append(other(d8[i], 'wo8'))
    a.ext(tile(hB, 14, kblocks=kb14, vblocks=[other(x, 'wo9') for x in d9], mid=pretr))
    offA = hA * 16384
    def ld10():
        o = []
        for x in wo_load_list(Q0, 10): vm.add('wo10'); o += x
        return o
    def prepub():
        o = [f'v_mov_b32 v1, v{vL}', 's_nop 1', f'v_permlane32_swap_b32 v1, v{vL}', 's_nop 1', f'v_add_f32 v{vL}, v{vL}, v1',
             'v_and_b32 v2, 31, v0', 'v_lshrrev_b32 v3, 5, v0',
             'v_lshlrev_b32 v4, 5, v2', f's_lshl_b32 s{sT}, s{sWave}, 2', f'v_add_u32 v4, s{sT}, v4', f'v_add_u32 v4, {ML}, v4',
             f'ds_write_b32 v4, v{vM}', f'ds_write_b32 v4, v{vL} offset:16',
             'v_lshlrev_b32 v4, 9, v2', f'v_add_u32 v4, s{sRing}, v4', 'v_and_b32 v5, 7, v2', 'v_xor_b32 v5, v5, v3']
        for j in range(4):
            o += [f'v_xor_b32 v6, {2*j}, v5', 'v_lshlrev_b32 v6, 4, v6', f'v_add_u32 v{T[j]}, v4, v6']
        o += ['v_and_b32 v1, 8, v0', 'v_mov_b32 v2, 0x4444', 'v_mov_b32 v3, 0xeeee', 'v_cmp_ne_u32 vcc, 0, v1', 's_nop 1', f'v_cndmask_b32 v{vIDX}, v2, v3, vcc']
        return o + merge_addr(offA)
    a.ext(tile(hA, 15, after_qk=ld10, final=True, pre_v=prepub))
    stamp(3)
    for x in wo_load_list(KV0, 11): vm.add('wo11'); a.ext(x)
    for blk in range(4):
        for j in range(4):
            r = O0 + 16*blk + 4*j
            a(f'ds_write_b128 v{T[j]}, v[{r}:{r+3}] offset:{offA + 128*blk}')
    a('s_waitcnt lgkmcnt(0)')
    if LATE12 == 0:
        for x in wo_load_list(O0, 12): vm.add('wo12'); a.ext(x)
    if tailst: stamp(8)
    a('s_barrier')
    if tailst: stamp(9)
    def ld13():
        for x in wo_load_list(O0 + 32, 13): vm.add('wo13'); a.ext(x)
    merge_body(ld13 if M13 else None, zero=8)
    a('s_waitcnt lgkmcnt(0)')
    a('s_barrier')
    stamp(4)
    if LATE12 == 1:
        for x in wo_load_list(O0, 12): vm.add('wo12'); a.ext(x)
    aACC, aAF = 8, [40, 44]
    if oprio: a(f's_setprio {oprio}')
    if not M13:
        for x in wo_load_list(O0 + 32, 13): vm.add('wo13'); a.ext(x)
    a(f'ds_read_b128 v[{aAF[0]}:{aAF[0]+3}], v{vACT} offset:{64*3}')
    a(f'ds_read_b128 v[{aAF[1]}:{aAF[1]+3}], v{vACT} offset:{64*5}')
    a('s_waitcnt lgkmcnt(1)')
    for e in range(8): a(smf(aACC + 4*e, aAF[0], R0 + 8*e))
    a.ext(vm.need('wo9'))
    for blk in (8, 9):
        for j in range(8):
            a(f'ds_read_b128 v[{R0+(blk-8)*32+4*j}:{R0+(blk-8)*32+4*j+3}], v{vLIN} offset:{hB*16384 + (blk-8)*8192 + 1024*j}')
    aTB = [48, 0]
    a(f'ds_read_b128 v[{aAF[0]}:{aAF[0]+3}], v{vACT} offset:{64*4}')
    a.ext(vm.need('wo11'))
    a('s_waitcnt lgkmcnt(15)')
    a.ext(mm_pair(Q0, KV0, aTB, aAF[1], aACC))
    a(f'ds_read_b128 v[{aAF[1]}:{aAF[1]+3}], v{vACT} offset:{64*6}')
    a('s_waitcnt lgkmcnt(1)')
    a.ext(mm_pair(R0, R0 + 32, aTB, aAF[0], aACC))
    a.ext(vm.need('wo13'))
    a('s_waitcnt lgkmcnt(0)')
    a.ext(mm_pair(O0, O0 + 32, aTB, aAF[1], aACC))
    a('s_nop 7')
    for e in range(8):
        a(f'ds_write_b128 v{vLIN}, v[{aACC+4*e}:{aACC+4*e+3}] offset:{offA + e*1024}')
    a('s_waitcnt lgkmcnt(0)')
    if tailst: stamp(10)
    a('s_barrier')
    if stamps: a('s_branch L_stamps')
    else: a('s_endpgm')

    if PALIGN: a.raw(f'.p2align {PALIGN}')
    a('L_pwave:')
    a('s_mov_b32 s3, 1')
    if AFIRST: a('s_barrier')
    if pprio: a('s_setprio 3')
    if x_noq: a('s_branch L_noq')
    sPW, sGQ, sHQ, sRot = sNW, 42, 43, 39
    a(f's_lshr_b32 s{sGQ}, s{sB}, 2\ns_and_b32 s{sHQ}, s{sB}, 3\ns_and_b32 s{sRot}, s{sGQ}, 3')
    SRD_W, SRD_X = 24, 28
    XF, TB, ACC, LAND = 12, [44, 48], 56, 120
    vW, vX = 8, 9
    a(f's_mov_b32 s{SRD_X}, s{sX}\ns_and_b32 s{SRD_X+1}, s{sX+1}, 0xffff\ns_mov_b32 s{SRD_X+2}, 262144\ns_mov_b32 s{SRD_X+3}, 0x20000')
    a(f'v_and_b32 v2, 15, v0\nv_lshrrev_b32 v3, 4, v0\nv_lshlrev_b32 v4, 10, v2\nv_lshlrev_b32 v5, 4, v3\nv_add_u32 v{vX}, v4, v5')
    if x_xcontig: a(f'v_lshlrev_b32 v{vX}, 4, v0')
    a(f'v_lshlrev_b32 v4, 16, v3\nv_lshlrev_b32 v5, 4, v2\nv_add_u32 v{vW}, v4, v5')
    a(f's_lshl_b32 s{sT}, s{sH}, 2\ns_add_u32 s{sT}, s{sT}, s{sHQ}\ns_lshl_b32 s{sT}, s{sT}, 8')
    a(f's_add_u32 s{SRD_W}, s{sWq}, s{sT}\ns_addc_u32 s{SRD_W+1}, s{sWq+1}, 0\ns_and_b32 s{SRD_W+1}, s{SRD_W+1}, 0xffff')
    a(f's_sub_u32 s{SRD_W+2}, 4194304, s{sT}\ns_mov_b32 s{SRD_W+3}, 0x20000')
    for sg in range(4): a(f's_add_u32 s{48+sg}, s{sRot}, {sg}\ns_and_b32 s{48+sg}, s{48+sg}, 3')
    a(f's_and_b32 s{sT}, s{sPW}, 1')
    a(f's_lshl_b32 s52, s{sGQ}, 15\ns_lshl_b32 s{sT2}, s{sT}, 14\ns_add_u32 s52, s52, s{sT2}\ns_lshl_b32 s{sT2}, s{sPW}, 8\ns_add_u32 s52, s52, s{sT2}')
    a(f's_xor_b32 s53, s52, 16384')
    if QPF:
        a(f'v_lshrrev_b32 v4, 4, v0\nv_lshlrev_b32 v4, 13, v4\nv_and_b32 v5, 15, v0\nv_lshlrev_b32 v5, 4, v5\nv_add_u32 v4, v4, v5')
        a(f's_lshl_b32 s{sT2}, s{sGQ}, 2\ns_add_u32 s{sT2}, s{sT2}, s{sPW}\ns_lshl_b32 s{sT2}, s{sT2}, 17')
        for i in range(4):
            a(f's_add_u32 s{sT}, s{sT2}, {i*4*8192}')
            a(f'buffer_load_dwordx4 v[{LAND+4*i}:{LAND+4*i+3}], v4, s[{SRD_W}:{SRD_W+3}], s{sT} offen {wqflags}')
        a('v_lshlrev_b32 v5, 4, v0')
        a(f's_lshl_b32 s{sT2}, s{sGQ}, 5\ns_lshl_b32 s{sT}, s{sHQ}, 3\ns_add_u32 s{sT2}, s{sT2}, s{sT}\ns_lshl_b32 s{sT}, s{sPW}, 1\ns_add_u32 s{sT2}, s{sT2}, s{sT}\ns_lshl_b32 s{sT2}, s{sT2}, 10')
        for i in range(2):
            a(f'buffer_load_dwordx4 v[{LAND+16+4*i}:{LAND+16+4*i+3}], v5, s[{SRD_X}:{SRD_X+3}], s{sT2} offen offset:{i*1024} {xflags}')
        a('s_waitcnt vmcnt(0)')
        if QPFSLEEP: a(f's_sleep {QPFSLEEP}')
    npl = [0]
    def pthrottle():
        if PWIN and npl[0] >= PWIN: a(f's_waitcnt vmcnt({PWIN-1})')
        npl[0] += 1
    if XDMA:
        a('v_lshrrev_b32 v2, 4, v0\nv_and_b32 v3, 15, v0\nv_xor_b32 v4, v2, v3\nv_lshlrev_b32 v5, 10, v2')
        for t in range(4):
            a(f'v_xor_b32 v6, {4*t}, v4\nv_lshlrev_b32 v6, 4, v6\nv_add_u32 v{248+t}, v5, v6')
        a(f's_lshl_b32 s52, s{sGQ}, 15\ns_lshl_b32 s{sT2}, s{sPW}, 8\ns_add_u32 s52, s52, s{sT2}')
        a(f's_lshl_b32 s53, s{sPW}, 15\ns_add_u32 s53, s53, 24576')
        for t in range(8):
            a(f's_add_u32 m0, s53, {1024*t}\ns_add_u32 s{sT}, s52, {4096*t}')
            a(f'buffer_load_dwordx4 v{248 + (t & 3)}, s[{SRD_X}:{SRD_X+3}], s{sT} offen {xflags} lds')
    else:
        for sg in range(4):
            for rho in range(2):
                r = XF + (rho*4 + sg)*4
                a(f's_lshl_b32 s{sT}, s{48+sg}, 6\ns_add_u32 s{sT}, s{sT}, s{52+rho}')
                pthrottle()
                if not x_noload: a(f'buffer_load_dwordx4 v[{r}:{r+3}], v{vX}, s[{SRD_X}:{SRD_X+3}], s{sT} offen {xflags}')
    prep = []
    class _L:
        def __call__(self, t): prep.extend(x.strip() for x in t.split('\n') if x.strip())
    b = _L()
    tA, tB = 92, 93
    if XDMA:
        b('v_and_b32 v2, 15, v0\nv_lshrrev_b32 v3, 4, v0')
        b('v_and_b32 v4, 3, v2\nv_xor_b32 v4, v4, v3\nv_lshlrev_b32 v4, 4, v4\nv_lshlrev_b32 v5, 8, v2\nv_add_u32 v4, v4, v5')
        b(f's_and_b32 s{tA}, s{sPW}, 1\ns_lshl_b32 s{tA}, s{tA}, 12\ns_add_u32 s{tA}, s{tA}, s53\nv_add_u32 v4, s{tA}, v4')
        b('v_lshrrev_b32 v5, 2, v2')
        for sg in range(4):
            b(f'v_xor_b32 v6, s{48+sg}, v5\nv_lshlrev_b32 v6, 6, v6\nv_add_u32 v{248+sg}, v4, v6')
    def region(dst, sTile, sK):
        b(f's_mul_i32 s{dst}, s{sTile}, 3\ns_add_u32 s{dst}, s{dst}, s{sK}')
        b(f's_lshl_b32 s{tA}, s{dst}, 15\ns_add_u32 s{tA}, s{tA}, 24576')
        b(f's_sub_u32 s{tB}, s{dst}, 4\ns_lshl_b32 s{tB}, s{tB}, 13\ns_add_u32 s{tB}, s{tB}, 131072')
        b(f's_cmp_lt_u32 s{dst}, 4\ns_cselect_b32 s{dst}, s{tA}, s{tB}')
    vS1, vS0, vRd = 52, 53, [54, 55, 254]
    vPay, vTag, vLoc = 9, 255, [1, 2, 3, 4]
    b(f's_sub_u32 s54, s{sPW}, 1\ns_cmp_lt_u32 s{sPW}, 2\ns_cselect_b32 s54, 0, s54')
    b(f's_and_b32 s55, s{sPW}, 1')
    b(f's_xor_b32 s56, s55, 1')
    b('v_lshlrev_b32 v10, 4, v0')
    region(57, 56, 54); b(f'v_add_u32 v{vS1}, s57, v10')
    region(57, 55, 54); b(f'v_add_u32 v{vS0}, s57, v10')
    for k in range(3):
        b(f's_mov_b32 s58, {k}')
        region(57, 55, 58)
        b(f'v_add_u32 v{vRd[k]}, s57, v10')
    b('v_and_b32 v5, 15, v0\nv_lshrrev_b32 v6, 4, v0')
    b('v_lshrrev_b32 v10, 1, v6\nv_lshlrev_b32 v10, 17, v10\nv_and_b32 v11, 1, v6')
    b(f'v_lshlrev_b32 v{vPay}, 10, v11\nv_add_u32 v{vPay}, v{vPay}, v10\nv_lshlrev_b32 v7, 4, v5\nv_add_u32 v{vPay}, v{vPay}, v7')
    b(f'v_lshlrev_b32 v{vTag}, 5, v11\nv_add_u32 v{vTag}, v{vTag}, v10\nv_lshlrev_b32 v7, 3, v5\nv_add_u32 v{vTag}, v{vTag}, v7\nv_add_u32 v{vTag}, 8192, v{vTag}')
    b(f's_lshl_b32 s{tA}, s{sHQ}, 11\nv_add_u32 v{vPay}, s{tA}, v{vPay}\ns_lshl_b32 s{tA}, s{sHQ}, 6\nv_add_u32 v{vTag}, s{tA}, v{vTag}')
    b(f's_lshl_b32 s{tA}, s{sGQ}, 2\ns_lshl_b32 s{tB}, s55, 1\ns_add_u32 s{tA}, s{tA}, s{tB}\ns_lshl_b32 s{tA}, s{tA}, 3\ns_add_u32 s{tA}, s{tA}, s{sH}\ns_lshl_b32 s{tA}, s{tA}, 14')
    b(f's_add_u32 s58, s{sWs}, s{tA}\ns_addc_u32 s59, s{sWs+1}, 0')
    if WS_QX: b(f's_add_u32 s58, s58, {WS_QX}\ns_addc_u32 s59, s59, 0')
    b(f's_lshr_b32 s{tA}, s{sHQ}, 1\ns_and_b32 s{tB}, s{sHQ}, 1')
    b(f's_cmp_eq_u32 s{tB}, 0\ns_cselect_b32 s88, -1, 0\ns_cselect_b32 s89, 0, -1')
    b(f's_cmp_eq_u32 s{tA}, s55\ns_cselect_b32 s88, s88, 0\ns_cselect_b32 s89, s89, 0\ns_not_b64 s[90:91], s[88:89]')
    b(f's_lshl_b32 s{tA}, s{sHQ}, 3\nv_lshlrev_b32 v10, 2, v11\nv_add_u32 v10, s{tA}, v10')
    for r in range(4):
        b(f'v_add_u32 v7, {r}, v10\nv_and_b32 v11, 15, v7\nv_xor_b32 v11, v11, v5\nv_lshlrev_b32 v11, 4, v11\nv_lshlrev_b32 v7, 8, v7\nv_add_u32 v11, v11, v7\nv_add_u32 v{vLoc[r]}, {QBUF}, v11')
    b(f'v_mov_b32 v6, {CNT}\nv_mov_b32 v7, 1')
    chunks = []; cur = []
    for t in prep:
        cur.append(t)
        if not (t.startswith(('s_cmp', 's_add_u32 s58')) or (t.startswith('s_cselect') and False)):
            chunks.append(cur); cur = []
    assert not cur
    merged = []
    for c in chunks:
        if merged and c[0].startswith(('s_cselect', 's_addc')): merged[-1].extend(c)
        else: merged.append(c)
    nld = 0; PSTART = 6
    per = -(-len(merged) // (32 - PSTART))
    for sg in range(4):
        a(f's_lshl_b32 s{sT2}, s{sPW}, 2\ns_add_u32 s{sT2}, s{sT2}, s{48+sg}\ns_lshl_b32 s{sT2}, s{sT2}, 18')
        for j in range(8):
            r = LAND + sg*32 + 4*j
            a(f's_add_u32 s{sT}, s{sT2}, {j*8192}')
            pthrottle()
            if not x_noload: a(f'buffer_load_dwordx4 v[{r}:{r+3}], v{vW}, s[{SRD_W}:{SRD_W+3}], s{sT} offen {wqflags}')
            nld += 1
            if nld > PSTART:
                for c in merged[:per]: a.ext(c)
                merged = merged[per:]
    for c in merged: a.ext(c)
    if AGATE is not None:
        a(f'v_mov_b32 v6, {CNT}\nv_mov_b32 v7, 1'); lds_inc(24, 6, 7)
    if stamps and not redst: a('s_memrealtime s[80:81]')
    if XDMA:
        a('s_waitcnt vmcnt(32)')
        for sg in range(4):
            r0 = XF + sg*4; r1 = XF + (4 + sg)*4
            a(f'ds_read_b128 v[{r0}:{r0+3}], v{248+sg}')
            a(f'v_xor_b32 v5, 4096, v{248+sg}\nds_read_b128 v[{r1}:{r1+3}], v5')
        a('s_waitcnt lgkmcnt(0)')
        lds_inc(28, 6, 7)
    for sg in range(4):
        a(f's_waitcnt vmcnt({24 - 8*sg})')
        if sg == 3 and XDMA:
            lds_spin(28, 4, 6, 5)
        a.ext(mm_block(LAND + sg*32, TB, [XF + sg*4, XF + (4+sg)*4], [ACC, ACC + 32], first=(sg == 0)))
    if stamps: a('s_memrealtime s[82:83]')
    lown = lab('owner')
    a(f's_cmp_lt_u32 s{sPW}, 2\ns_cbranch_scc1 {lown}')
    a('s_nop 5')
    for e in range(8):
        r = ACC + 4*e
        a(f'ds_write_b128 v{vS0}, v[{r}:{r+3}] offset:{e*1024}')
    a(f'{lown}:')
    a('s_nop 5')
    for e in range(8):
        r = ACC + 32 + 4*e
        a(f'ds_write_b128 v{vS1}, v[{r}:{r+3}] offset:{e*1024}')
    a(f's_waitcnt lgkmcnt(0)')
    lds_inc(0, 6, 7)
    if redst: a('s_memrealtime s[80:81]')
    lqwait = lab('qwait')
    a(f's_cmp_ge_u32 s{sPW}, 2\ns_cbranch_scc1 {lqwait}')
    RD = LAND
    lds_spin(0, 4, 6, 5)
    if redst: a('s_memrealtime s[68:69]')
    for k in range(3):
        for e in range(8):
            r = RD + k*32 + 4*e
            a(f'ds_read_b128 v[{r}:{r+3}], v{vRd[k]} offset:{e*1024}')
    pk = lambda d, x, y: f'v_pk_add_f32 v[{d}:{d+1}], v[{x}:{x+1}], v[{y}:{y+1}]'
    for k in range(3):
        for hh in range(2):
            left = 24 - (k*8 + hh*4 + 4)
            a(f's_waitcnt lgkmcnt({min(15, left)})')
            if left == 0: lds_inc(4, 6, 7)
            for i in range(hh*16, hh*16 + 16, 2):
                a(pk(ACC + i, ACC + i, RD + k*32 + i) if PKADD else f'v_add_f32 v{ACC+i}, v{ACC+i}, v{RD+k*32+i}\nv_add_f32 v{ACC+i+1}, v{ACC+i+1}, v{RD+k*32+i+1}')
    if redst: a('s_memrealtime s[70:71]')
    X = RD + 16
    for r in range(4):
        d = RD + 4*r
        for p in range(4):
            a(f'v_cvt_pk_bf16_f32 v{d+p}, v{ACC+4*(2*p)+r}, v{ACC+4*(2*p+1)+r}')
    a('s_mov_b64 exec, s[90:91]')
    if not x_nost:
        for r in range(4):
            a(f'global_store_dwordx4 v{vPay}, v[{RD+4*r}:{RD+4*r+3}], s[58:59] offset:{256*r} {qst}')
    a('s_mov_b64 exec, -1')
    for r in range(4):
        d = RD + 4*r
        a(f'v_xor_b32 v{X+r}, v{d}, v{d+1}\nv_xor_b32 v{X+4+r}, v{d+2}, v{d+3}')
    for r in range(4): a(f'v_xor_b32 v{X+r}, v{X+r}, v{X+4+r}')
    for step in (8, 4, 2, 1):
        for r in range(4): a(f'v_xor_b32_dpp v{X+r}, v{X+r}, v{X+r} row_ror:{step} row_mask:0xf bank_mask:0xf')
    for r in range(1, 4):
        m = 0x00010001 << r
        a(f's_mov_b32 s56, {hex(m)}\ns_mov_b32 s57, {hex(m)}\nv_cndmask_b32 v{X}, v{X}, v{X+r}, s[56:57]')
    a(f'v_mov_b32 v{X+8}, s62\nv_xor_b32 v{X+9}, s61, v{X}')
    a('s_mov_b32 s56, 0x000f000f\ns_mov_b32 s57, 0x000f000f\ns_and_b64 exec, s[56:57], s[90:91]')
    if not x_nost: a(f'global_store_dwordx2 v{vTag}, v[{X+8}:{X+9}], s[58:59] {qst}')
    a('s_mov_b64 exec, -1')
    lnl = lab('nolocal')
    a(f's_cmp_eq_u64 s[88:89], 0\ns_cbranch_scc1 {lnl}')
    lds_spin(4, 2, 6, 5)
    a('s_mov_b64 exec, s[88:89]')
    for r in range(4): a(f'ds_write_b128 v{vLoc[r]}, v[{RD+4*r}:{RD+4*r+3}]')
    a('s_mov_b64 exec, -1')
    if debug:
        a(f's_lshl_b32 s{sT}, s2, 13\ns_add_u32 s{sT}, s{sT}, {WS_QDUMP}')
        a(f'v_lshrrev_b32 v10, 4, v0\nv_and_b32 v10, 1, v10\nv_lshlrev_b32 v10, 2, v10\ns_lshl_b32 s{sT2}, s{sHQ}, 3\nv_add_u32 v12, s{sT2}, v10')
        a('v_and_b32 v5, 15, v0\ns_mov_b64 exec, s[88:89]')
        for r in range(4):
            a(f'v_add_u32 v11, {r}, v12\nv_lshlrev_b32 v11, 8, v11\nv_lshlrev_b32 v10, 4, v5\nv_add_u32 v11, v11, v10\nv_add_u32 v11, s{sT}, v11')
            a(f'global_store_dwordx4 v11, v[{RD+4*r}:{RD+4*r+3}], s[{sWs}:{sWs+1}]')
        a('s_mov_b64 exec, -1')
    a(f'{lnl}:')
    if stamps: a('s_memrealtime s[86:87]')
    if QACK:
        a('s_waitcnt vmcnt(0)')
        a(f'v_mov_b32 v6, {CNT}\nv_mov_b32 v7, 1')
        lds_inc(8, 6, 7)
    a(f'{lqwait}:')
    if stamps: a('s_memrealtime s[84:85]')
    lq = lab('qpoll'); lqd = lab('qdone'); lqs = lab('qskip')
    a(f's_cmp_eq_u32 s{sPW}, s{sHQ}\ns_cbranch_scc1 {lqs}')
    a(f's_lshl_b32 s{sT}, s2, 14')
    a(f's_add_u32 s58, s{sWs}, s{sT}\ns_addc_u32 s59, s{sWs+1}, 0')
    if WS_QX: a(f's_add_u32 s58, s58, {WS_QX}\ns_addc_u32 s59, s59, 0')
    a(f's_lshl_b32 s{sT}, s{sPW}, 11\nv_lshlrev_b32 v1, 4, v0\nv_add_u32 v1, s{sT}, v1')
    a(f'v_lshrrev_b32 v2, 4, v0\nv_and_b32 v3, 15, v0\ns_lshl_b32 s{sT}, s{sPW}, 3\nv_add_u32 v2, s{sT}, v2')
    a('v_lshlrev_b32 v4, 3, v2\nv_add_u32 v4, 8192, v4')
    for u in range(2):
        a(f'v_add_u32 v5, {4*u}, v2\nv_and_b32 v6, 15, v5\nv_xor_b32 v6, v6, v3\nv_lshlrev_b32 v6, 4, v6\nv_lshlrev_b32 v5, 8, v5\nv_add_u32 v5, v5, v6\nv_add_u32 v{32+u}, {QBUF}, v5')
    a(f'v_mov_b32 v6, {CNT}')
    if QACK:
        lds_spin(8, 2, 6, 5)
        if QPRE: a(f's_sleep {QPRE}')
    else:
        lds_spin(4, 2, 6, 5)
        if QPRE: a(f's_sleep {QPRE}')
    if QGATE is not None: lds_spin(24, 4, 6, 5)
    a(f's_mov_b32 s57, {SPIN_MAX}')
    if x_nopoll: a(f's_branch {lqd}')
    a(f'{lq}:')
    for u in range(2): a(f'global_load_dwordx4 v[{12+4*u}:{15+4*u}], v1, s[58:59] offset:{1024*u} {qld}')
    for u in range(2): a(f'global_load_dwordx2 v[{20+2*u}:{21+2*u}], v4, s[58:59] offset:{32*u} {qld}')
    a('s_waitcnt vmcnt(0)')
    for u in range(2): a(f'v_xor_b32 v{24+u}, v{12+4*u}, v{13+4*u}\nv_xor_b32 v{26+u}, v{14+4*u}, v{15+4*u}')
    for u in range(2): a(f'v_xor_b32 v{24+u}, v{24+u}, v{26+u}')
    for u in range(2): a(f'v_subrev_u32 v{26+u}, s60, v{20+2*u}\nv_lshrrev_b32 v{26+u}, 12, v{26+u}')
    for step in (8, 4, 2, 1):
        for u in range(2): a(f'v_xor_b32_dpp v{24+u}, v{24+u}, v{24+u} row_ror:{step} row_mask:0xf bank_mask:0xf')
        a('s_nop 0')
    for u in range(2): a(f'v_xor_b32 v{24+u}, v{24+u}, v{20+2*u}\nv_xor_b32 v{24+u}, v{24+u}, v{21+2*u}\nv_xor_b32 v{24+u}, {hex(TAGK)}, v{24+u}')
    a('v_or3_b32 v28, v24, v25, v26\nv_or_b32 v28, v28, v27')
    a(f'v_cmp_ne_u32 vcc, 0, v28\ns_cbranch_vccz {lqd}')
    a(f's_sub_u32 s57, s57, 1\ns_cmp_eq_u32 s57, 0\ns_cbranch_scc1 {lqd}\ns_sleep {QSLEEP}\ns_branch {lq}')
    a(f'{lqd}:')
    for u in range(2): a(f'ds_write_b128 v{32+u}, v[{12+4*u}:{15+4*u}]')
    if debug:
        a(f's_lshl_b32 s{sT}, s2, 13\ns_add_u32 s{sT}, s{sT}, {WS_QDUMP}\nv_add_u32 v1, s{sT}, v1')
        for u in range(2): a(f'global_store_dwordx4 v1, v[{12+4*u}:{15+4*u}], s[{sWs}:{sWs+1}] offset:{1024*u}')
    a(f'{lqs}:')
    a('s_waitcnt lgkmcnt(0)')
    if x_noq: a('L_noq:')
    if pprio: a('s_setprio 0')
    stamp(1)
    a('s_barrier')
    if not redst: stamp(2)
    for _ in range(PLDELAY): a('s_sleep 32')
    HOLD = 56; PL = 12
    a(f's_lshl_b32 s{sT}, s{sH}, 19')
    a(f's_add_u32 s48, s{sWo}, s{sT}\ns_addc_u32 s49, s{sWo+1}, 0\ns_and_b32 s49, s49, 0xffff\ns_mov_b32 s50, 524288\ns_mov_b32 s51, 0x20000')
    a(f's_lshl_b32 s{sT2}, s{sB}, 4\ns_lshl_b32 s52, s{sPW}, 2\ns_add_u32 s{sT2}, s{sT2}, s52\ns_lshl_b32 s{sT2}, s{sT2}, 10')
    a('v_lshlrev_b32 v1, 4, v0')
    if latewarm is not None:
        l2 = lab('wdone')
        a(f's_cmp_ge_u32 s{sB}, {2*NHOLD}\ns_cbranch_scc1 {l2}')
        for i in range(4): a(f'buffer_load_dwordx4 v[{PL+4*i}:{PL+4*i+3}], v1, s[48:51], s{sT2} offen offset:{i*1024} nt')
        a(f'{l2}:')
    elif wosplit:
        l1 = lab('wdef'); l2 = lab('wdone')
        a(f's_cmp_ge_u32 s{sB}, {2*NHOLD}\ns_cbranch_scc1 {l1}')
        for i in range(4): a(f'buffer_load_dwordx4 v[{PL+4*i}:{PL+4*i+3}], v1, s[48:51], s{sT2} offen offset:{i*1024} nt')
        a(f's_branch {l2}\n{l1}:')
        for i in range(4): a(f'buffer_load_dwordx4 v[{PL+4*i}:{PL+4*i+3}], v1, s[48:51], s{sT2} offen offset:{i*1024}')
        a(f'{l2}:')
    else:
        for i in range(4):
            a(f'buffer_load_dwordx4 v[{PL+4*i}:{PL+4*i+3}], v1, s[48:51], s{sT2} offen offset:{i*1024} {woflags if warmflags is None else warmflags}')
    a('s_waitcnt vmcnt(0)')
    for s in range(NHOLD):
        for j, x in enumerate(wo_load_list(PL, s)):
            if plflags is not None: x = [y + ' ' + plflags if y.startswith('buffer_load') else y for y in x]
            a.ext(x)
            if (j + 1) % PTH == 0: a('s_waitcnt vmcnt(0)')
        a('s_waitcnt vmcnt(0)')
        for e in range(8):
            m = e >> 1; sel = SEL_LO + (e & 1)
            for p in range(4):
                a(f'v_perm_b32 v{HOLD+(s>>1)*64+8*e+4*(s&1)+p}, v{PL+4*(2*p+1)+m}, v{PL+4*(2*p)+m}, s{sel}')
    if latewarm is not None:
        a(f'v_mov_b32 v6, {CNT}')
        lw = lab('wwait')
        a(f'{lw}:\ns_sleep 8\nds_read_b32 v5, v6 offset:20\ns_waitcnt lgkmcnt(0)\nv_readfirstlane_b32 s{sT}, v5\ns_cmp_ge_u32 s{sT}, 1\ns_cbranch_scc0 {lw}')
        a('v_lshlrev_b32 v1, 4, v0')
        a(f's_mul_i32 s52, s{sB}, 10\ns_mul_i32 s53, s{sPW}, 3')
        for i in range(3):
            a(f's_add_u32 s54, s53, {i}\ns_add_u32 s{sT}, s52, s54\ns_add_u32 s{sT}, s{sT}, {32*NHOLD}\ns_lshl_b32 s{sT}, s{sT}, 10\ns_cmp_lt_u32 s54, 10\ns_cselect_b32 s{sT}, s{sT}, 0x400000')
            a(f'buffer_load_dwordx4 v[{PL+4*i}:{PL+4*i+3}], v1, s[48:51], s{sT} offen {lateflags}')
        a('s_waitcnt vmcnt(0)')
    a(f'v_and_b32 v1, 8, v0\nv_mov_b32 v2, 0x4444\nv_mov_b32 v3, 0xeeee\nv_cmp_ne_u32 vcc, 0, v1\ns_nop 1\nv_cndmask_b32 v{vIDX}, v2, v3, vcc')
    a.ext(merge_addr(hA * 16384))
    offA = hA * 16384
    a(f's_mov_b32 s{sC}, {hex(f2u(C_SCALE))}')
    if not redst: stamp(3)
    a('s_barrier')
    if tailst: stamp(8)
    merge_body(zero=12)
    a('s_waitcnt lgkmcnt(0)')
    if tailst: stamp(9)
    a('s_barrier')
    stamp(4)
    pACC = 12; pAF = [44, 48]
    if debug: a('s_waitcnt vmcnt(0)')
    a(f'ds_read_b128 v[{pAF[0]}:{pAF[0]+3}], v{vACT}')
    a(f'ds_read_b128 v[{pAF[1]}:{pAF[1]+3}], v{vACT} offset:64')
    a('s_waitcnt lgkmcnt(1)')
    for e in range(8): a(smf(pACC + 4*e, pAF[0], HOLD + 8*e))
    for k in range(2):
        for x in wo_load_list(HOLD + k*32, 14 + k): a.ext(x)
    a(f'ds_read_b128 v[{pAF[0]}:{pAF[0]+3}], v{vACT} offset:128')
    a('s_waitcnt lgkmcnt(1)')
    for e in range(8): a(smf(pACC + 4*e, pAF[1], HOLD + 64 + 8*e))
    a(f'ds_read_b128 v[{pAF[1]}:{pAF[1]+3}], v{vACT} offset:{64*7}')
    a('s_waitcnt lgkmcnt(1)')
    for e in range(8): a(smf(pACC + 4*e, pAF[0], HOLD + 128 + 8*e))
    a('s_waitcnt vmcnt(0) lgkmcnt(0)')
    a.ext(mm_pair(HOLD, HOLD + 32, [HOLD + 64, HOLD + 72], pAF[1], pACC))
    a('v_and_b32 v2, 15, v0\nv_lshrrev_b32 v3, 4, v0\nv_and_b32 v3, 1, v3\nv_lshrrev_b32 v5, 5, v0')
    a('v_lshrrev_b32 v4, 3, v2\nv_lshlrev_b32 v4, 14, v4\nv_lshlrev_b32 v6, 9, v3\nv_add_u32 v4, v4, v6\nv_lshlrev_b32 v6, 8, v5\nv_add_u32 v4, v4, v6\nv_and_b32 v6, 7, v2\nv_lshlrev_b32 v6, 4, v6\nv_add_u32 v4, v4, v6')
    a(f's_lshl_b32 s{sT}, s{sB}, 3\ns_lshl_b32 s{sT2}, s{sNW}, 1\ns_add_u32 s{sT}, s{sT}, s{sT2}\ns_lshl_b32 s{sT}, s{sT}, 14\ns_lshl_b32 s{sT2}, s{sH}, 11\ns_add_u32 s{sT}, s{sT}, s{sT2}\ns_add_u32 s{sT}, s{sT}, {WS_MB}')
    a(f's_add_u32 s58, s{sWs}, s{sT}\ns_addc_u32 s59, s{sWs+1}, 0')
    a(f's_lshl_b32 s{sT}, s{sNW}, 15\nv_lshlrev_b32 v1, 4, v0\nv_add_u32 v1, s{sT}, v1')
    RA = 120; SM = 152; GR = 184; HH = 200
    for g in range(4): a(f'v_mov_b32 v{GR+4*g+3}, s62')
    a('v_lshrrev_b32 v8, 4, v0\nv_and_b32 v8, 1, v8\nv_lshrrev_b32 v9, 3, v0\nv_and_b32 v9, 1, v9\nv_and_b32 v10, 7, v0\nv_lshrrev_b32 v7, 5, v0')
    a('v_lshlrev_b32 v11, 10, v8\nv_lshlrev_b32 v6, 7, v9\nv_add_u32 v11, v11, v6\nv_lshlrev_b32 v6, 4, v10\nv_add_u32 v11, v11, v6\nv_lshlrev_b32 v6, 11, v7\nv_add_u32 v11, v11, v6')
    for t in range(1, 4): a(f'v_add_u32 v{208+t}, {4096*t}, v11')
    a(f's_lshl_b32 s{sT}, s2, 14\ns_lshl_b32 s{sT2}, s{sNW}, 8\ns_add_u32 s{sT}, s{sT}, s{sT2}\ns_add_u32 s{sT}, s{sT}, {WS_MB}')
    a(f's_add_u32 s56, s{sWs}, s{sT}\ns_addc_u32 s57, s{sWs+1}, 0')
    a(f's_lshl_b32 s{sT}, s{sB}, 3\ns_lshl_b32 s{sT2}, s{sNW}, 1\ns_add_u32 s{sT}, s{sT}, s{sT2}\ns_lshl_b32 s{sT}, s{sT}, 10\ns_lshl_b32 s{sT2}, s{sH}, 7\ns_add_u32 s{sT}, s{sT}, s{sT2}')
    a(f'v_lshlrev_b32 v212, 10, v9\nv_lshlrev_b32 v6, 4, v10\nv_add_u32 v212, v212, v6\nv_lshlrev_b32 v6, 3, v8\nv_add_u32 v212, v212, v6\nv_add_u32 v212, s{sT}, v212')
    a('s_mov_b32 s54, 0xffff0000')
    if tailst: stamp(10)
    a('s_barrier')
    stamp(5)
    for e in range(8): a(f'ds_read_b128 v[{RA+4*e}:{RA+4*e+3}], v1 offset:{offA + e*1024}')
    for hfw, wait in ((0, 4), (1, 0)):
        a(f's_waitcnt lgkmcnt({wait})')
        for e in range(4*hfw, 4*hfw + 4):
            for r in range(4):
                a(f'v_add_f32 v{SM+8*r+e}, v{pACC+4*e+r}, v{RA+4*e+r}')
        a('s_nop 0')
        for rs in range(2):
            for e in range(4*hfw, 4*hfw + 4):
                a(f'v_permlane32_swap_b32 v{SM+8*rs+e}, v{SM+8*(rs+2)+e}')
        for rs in range(2):
            for e in range(4*hfw, 4*hfw + 4):
                a(f'v_add_f32 v{SM+8*rs+e}, v{SM+8*rs+e}, v{SM+8*(rs+2)+e}')
        p = hfw
        for rs in range(2):
            g = GR + 4*(2*rs + p)
            for x in range(2):
                a(f'v_cvt_pk_bf16_f32 v{g+x}, v{SM+8*rs+4*p+2*x}, v{SM+8*rs+4*p+2*x+1}')
    for rs in range(2):
        for p in range(2):
            g = GR + 4*(2*rs + p)
            a.ext(make_granule(g))
            a(f'global_store_dwordx4 v4, v[{g}:{g+3}], s[58:59] offset:{p*1024 + rs*128} sc1')
    if tailst: stamp(11)
    a(f's_mov_b32 s55, {SPIN_MAX}')
    def final_out(gb):
        for t in range(4):
            g = gb + 4*t
            d = 28 if t == 0 else 32
            a(f'v_lshlrev_b32 v{d}, 16, v{g}\nv_and_b32 v{d+1}, s54, v{g}\nv_lshlrev_b32 v{d+2}, 16, v{g+1}\nv_and_b32 v{d+3}, s54, v{g+1}')
            if t:
                for k in range(4): a(f'v_add_f32 v{28+k}, v{28+k}, v{32+k}')
        for k in range(4): a(f'v_mov_b32 v{32+k}, v{28+k}')
        a('s_nop 1')
        for k in range(4): a(f'v_permlane32_swap_b32 v{28+k}, v{32+k}')
        a('s_nop 0')
        for k in range(4): a(f'v_add_f32 v{28+k}, v{28+k}, v{32+k}')
        a('v_cvt_pk_bf16_f32 v28, v28, v29\nv_cvt_pk_bf16_f32 v29, v30, v31')
        a('s_mov_b32 exec_lo, -1\ns_mov_b32 exec_hi, 0')
        a(f'global_store_dwordx2 v212, v[28:29], s[{sOut}:{sOut+1}] {outfl}')
        a('s_mov_b64 exec, -1')
    if RPRE: a(f's_sleep {RPRE}')
    lp = lab('rpoll'); ld = lab('rdone')
    def rissue(base):
        for t in range(4):
            va = 11 if t == 0 else 208 + t
            a(f'global_load_dwordx4 v[{base+4*t}:{base+3+4*t}], v{va}, s[56:57] sc1')
    if RPIPE:
        S1 = 216; lb = lab('rgotb')
        rissue(12)
        a(f's_sleep {RPIPE}')
        rissue(S1)
        a(f'{lp}:')
        a('s_waitcnt vmcnt(4)')
        for t in range(4): a.ext(check_granule(12+4*t, 44, 45, t == 0))
        a(f'v_cmp_ne_u32 vcc, 0, v44\ns_cbranch_vccz {ld}')
        rissue(12)
        a('s_waitcnt vmcnt(4)')
        for t in range(4): a.ext(check_granule(S1+4*t, 44, 45, t == 0))
        a(f'v_cmp_ne_u32 vcc, 0, v44\ns_cbranch_vccz {lb}')
        rissue(S1)
        a(f's_sub_u32 s55, s55, 1\ns_cmp_eq_u32 s55, 0\ns_cbranch_scc0 {lp}')
        a(f's_waitcnt vmcnt(0)\ns_branch {ld}')
        a(f'{lb}:')
        final_out(S1)
        a('s_branch L_fin')
    else:
        a(f'{lp}:')
        rissue(12)
        a('s_waitcnt vmcnt(0)')
        for t in range(4): a.ext(check_granule(12+4*t, 44, 45, t == 0))
        a(f'v_cmp_ne_u32 vcc, 0, v44\ns_cbranch_vccz {ld}')
        a(f's_sub_u32 s55, s55, 1\ns_cmp_eq_u32 s55, 0\ns_cbranch_scc1 {ld}\n' + (f's_sleep {RSLEEP}\n' if RSLEEP else '') + f's_branch {lp}')
    a(f'{ld}:')
    if tailst: a(f's_sub_u32 s78, {SPIN_MAX}, s55')
    final_out(12)
    a('L_fin:')
    if lite and not stamps:
        stamp(6)
        a('s_waitcnt lgkmcnt(0)')
        a(f's_lshl_b32 s{sT}, s2, 3\ns_add_u32 s{sT}, s{sT}, s{sWave}\ns_lshl_b32 s{sT}, s{sT}, 6\ns_add_u32 s{sT}, s{sT}, {WS_STAMP}\nv_mov_b32 v3, s{sT}')
        a('s_mov_b32 exec_lo, 1\ns_mov_b32 exec_hi, 0\nv_mov_b32 v4, s64\nv_mov_b32 v5, s76')
        a(f'global_store_dwordx2 v3, v[4:5], s[{sWs}:{sWs+1}]')
    if stamps:
        stamp(6)
        a('L_stamps:')
        a('s_waitcnt lgkmcnt(0)')
        a(f's_lshl_b32 s{sT}, s2, 3\ns_add_u32 s{sT}, s{sT}, s{sWave}\ns_lshl_b32 s{sT}, s{sT}, 6\ns_add_u32 s{sT}, s{sT}, {WS_STAMP}\nv_mov_b32 v3, s{sT}')
        a('s_mov_b32 exec_lo, 1\ns_mov_b32 exec_hi, 0')
        for q in range(3):
            regs = [64+2*(4*q+i) for i in range(4)]
            a('\n'.join(f'v_mov_b32 v{4+i}, s{regs[i]}' for i in range(4)))
            a(f'global_store_dwordx4 v3, v[4:7], s[{sWs}:{sWs+1}] offset:{16*q}\ns_nop 1')
    a('L_end:\ns_endpgm')
    a.raw('.section .rodata,"a"\n.p2align 6')
    a.raw(f'.amdhsa_kernel {K}')
    a.raw('  .amdhsa_next_free_vgpr 256\n  .amdhsa_next_free_sgpr 96\n  .amdhsa_accum_offset 256')
    a.raw('  .amdhsa_group_segment_fixed_size 0\n  .amdhsa_kernarg_size 64\n  .amdhsa_user_sgpr_count 2\n  .amdhsa_user_sgpr_kernarg_segment_ptr 1\n  .amdhsa_system_sgpr_workgroup_id_x 1')
    a.raw('.end_amdhsa_kernel')
    return a.text()

if __name__ == '__main__':
    kw = json.loads(sys.argv[2]) if len(sys.argv) > 2 else {}
    open(sys.argv[1], 'w').write(gen(**kw))
```

```python
import sys, json, struct
K = 'standalone__gqa_block_cached__sampling_kernel'

QBUF = 131072
ACT = 139264
ACT_STRIDE = 544
ML = 147968
CNT = 148992
LDS_BYTES = 149056
WS_QX = 0
WS_MB = 0x400000
TAGK = 0x9E3779B9
WS_STAMP = 0xD00000
WS_QDUMP = 0x1000000
WS_ODUMP = 0x2000000
SPIN_MAX = 200000

C_SCALE = 0.08838834764831845 * 1.4426950408889634
def f2u(f): return struct.unpack('<I', struct.pack('<f', f))[0]

class Asm:
    def __init__(self): self.L = []
    def __call__(self, s):
        for line in s.split('\n'):
            line = line.strip()
            if line: self.L.append(('  ' + line) if not line.endswith(':') else line)
    def ext(self, lst):
        for s in lst: self(s)
    def raw(self, s): self.L.append(s)
    def text(self): return '\n'.join(self.L) + '\n'

def interleave(code, blocks, start=0, end=None):
    if end is None: end = len(code)
    n = len(blocks)
    out = list(code[:start])
    span = end - start
    pos = [start + (span * (i + 1)) // (n + 1) for i in range(n)] if n else []
    bi = 0
    for i in range(start, end):
        while bi < n and pos[bi] == i:
            out.extend(blocks[bi]()); bi += 1
        out.append(code[i])
    while bi < n:
        out.extend(blocks[bi]()); bi += 1
    out.extend(code[end:])
    return out

class VM:
    def __init__(self): self.ops = []; self.done = 0
    def add(self, tag, piece=False): self.ops.append((tag, piece))
    def _wait(self, idx):
        if idx < self.done: return []
        n = len(self.ops) - 1 - idx
        self.done = idx + 1
        assert n <= 63, n
        return [f's_waitcnt vmcnt({n})']
    def window(self, W):
        pcs = [i for i, (t, p) in enumerate(self.ops) if p]
        if len(pcs) < W: return []
        return self._wait(pcs[-W])
    def need(self, tag):
        idx = [i for i, (t, p) in enumerate(self.ops) if t == tag]
        assert idx, tag
        return self._wait(idx[-1])

sX, sKp, sVp, sWq, sWo, sOut, sDbg, sWs = 4, 6, 8, 10, 12, 14, 16, 18
sWave, sH, sB, sNW = 20, 21, 22, 23
sT, sT2, sC = 34, 38, 36
SEL_LO, SEL_HI = 40, 41

def gen(lite=False, W=5, W0=None, layout='p1', flags='nt', debug=False, wqflags='', woflags='', stamps=False, pprio=True,
        PTH=2, QSLEEP=4, RSLEEP=2, AGATE=None, stage=True, QPF=False, QPFSLEEP=0, x_noq=False, x_nopoll=False, x_nost=False, x_noload=False, PWIN=None, xflags='', aprio=False, PDELAY=0, qst='sc1', qld='sc1', tailst=False, LATE12=0, opst=False, P14AT=(3, 5), A13AT=1, x_xcontig=False, x_halfw=False, AFIRST=0, WHI=None, THR0=1350, DTH=455, warmflags=None, wosplit=False, plflags=None, latewarm=None, lateflags='nt', probe=False, PSLEEP=2, QGATE=None, XDMA=True, outfl='', AORD=0, oprio=0, M13=True, loopst=False, WR=16, startst=False, WRMODE=1, PLDELAY=0, WEND=None, WHICNT=None, QACK=True, QPRE=0, RPRE=0, PKADD=True, redst=False, hstage=False, HS_N=8, endmix=0, RPIPE=0, LALIGN=None, LPAD=0, PALIGN=None, WO67EARLY=False):
    NHOLD = 6
    W0 = W0 or W
    a = Asm()
    uid = [0]
    def lab(n):
        uid[0] += 1
        return f'L_{n}_{uid[0]}'
    def lds_spin(off, target, vaddr, vtmp):
        l = lab('spin')
        a(f'{l}:')
        a(f'ds_read_b32 v{vtmp}, v{vaddr} offset:{off}\ns_waitcnt lgkmcnt(0)\nv_readfirstlane_b32 s{sT}, v{vtmp}\ns_cmp_ge_u32 s{sT}, {target}\ns_cbranch_scc0 {l}')
    def lds_inc(off, vaddr, vone):
        a(f's_mov_b32 exec_lo, 1\ns_mov_b32 exec_hi, 0\nds_add_u32 v{vaddr}, v{vone} offset:{off}\ns_mov_b64 exec, -1')
    def get_nonce():
        pass
    def make_granule(g):
        return [f'v_xor_b32 v{g+2}, v{g}, v{g+1}', f'v_xor_b32 v{g+2}, s61, v{g+2}']
    def check_granule(g, bad, tmp, first):
        o = [f'v_xor_b32 v{tmp}, v{g}, v{g+1}', f'v_xor_b32 v{tmp}, v{tmp}, v{g+2}', f'v_xor_b32 v{tmp}, v{tmp}, v{g+3}', f'v_xor_b32 v{tmp}, {hex(TAGK)}, v{tmp}',
             f'v_subrev_u32 v{tmp+1}, s60, v{g+3}', f'v_lshrrev_b32 v{tmp+1}, 12, v{tmp+1}']
        o.append(f'v_or_b32 v{bad}, v{tmp}, v{tmp+1}' if first else f'v_or3_b32 v{bad}, v{bad}, v{tmp}, v{tmp+1}')
        return o
    def stamp(i):
        if stamps: a(f's_memrealtime s[{64+2*i}:{65+2*i}]')
        elif lite and i in (0, 6): a(f's_memrealtime s[{64+2*i}:{65+2*i}]')

    vK = list(range(8, 16)); vV = list(range(16, 20)); vDK = list(range(20, 24)); vDV = 24
    vM, vL, vNM, vAl = 25, 26, 27, 28
    T = list(range(29, 36))
    P0, S0, Q0, KV0, O0, R0 = 36, 44, 60, 92, 124, 188
    vWO = 252; vACT = 253; vIDX = 255
    SRD_K, SRD_V, SRD_WO = 24, 28, 44
    sRing, sG, sCnt = 32, 33, 35
    if layout == 'p1':   Bu = lambda u: 4096 * u;  Cw = 1024
    elif layout == 'p2': Bu = lambda u: 8192 * (u >> 1) + 1024 * (u & 1); Cw = 2048
    elif layout == 'p4': Bu = lambda u: 16384 * (u >> 2) + 1024 * (u & 3); Cw = 4096
    elif layout == 'p8': Bu = lambda u: 1024 * u; Cw = 8192

    a.raw(f'; @launch grid=(256,1,1) block=(512,1,1) lds={LDS_BYTES}')
    a.raw('.amdgcn_target "amdgcn-amd-amdhsa--gfx950"')
    a.raw('.text')
    a.raw(f'.globl {K}\n.p2align 8\n.type {K},@function\n{K}:')
    a('s_cmp_ge_u32 s2, 256\ns_cbranch_scc1 L_end')
    a('s_load_dwordx16 s[4:19], s[0:1], 0')
    a('s_memrealtime s[62:63]')
    stamp(0)
    a(f'v_mov_b32 v2, {CNT}\nv_mov_b32 v3, 0')
    for o in range(0, 32, 4): a(f'ds_write_b32 v2, v3 offset:{o}')
    a('v_lshrrev_b32 v1, 6, v0\nv_and_b32 v0, 63, v0')
    a(f'v_readfirstlane_b32 s{sWave}, v1')
    a(f's_and_b32 s{sH}, s2, 7\ns_lshr_b32 s{sB}, s2, 3')
    a(f's_mov_b32 s{SEL_LO}, 0x05040100\ns_mov_b32 s{SEL_HI}, 0x07060302')
    a(f'v_lshrrev_b32 v2, 4, v0\nv_and_b32 v3, 15, v0\nv_lshlrev_b32 v2, 13, v2\nv_lshlrev_b32 v4, 4, v3\nv_add_u32 v{vWO}, v2, v4')
    a(f'v_and_b32 v2, 15, v0\nv_mul_u32_u24 v2, {ACT_STRIDE}, v2\nv_lshrrev_b32 v3, 4, v0\nv_lshlrev_b32 v3, 4, v3\nv_add_u32 v2, v2, v3\nv_add_u32 v{vACT}, {ACT}, v2')
    a(f's_and_b32 s{sNW}, s{sWave}, 3')
    a('s_waitcnt lgkmcnt(0)')
    a(f's_sub_u32 s60, s62, 2048\ns_xor_b32 s61, s62, {hex(TAGK)}')
    a(f's_lshl_b32 s{sT}, s{sH}, 19\ns_lshl_b32 s{sT2}, s{sNW}, 8\ns_add_u32 s{sT}, s{sT}, s{sT2}')
    a(f's_add_u32 s{SRD_WO}, s{sWo}, s{sT}\ns_addc_u32 s{SRD_WO+1}, s{sWo+1}, 0\ns_and_b32 s{SRD_WO+1}, s{SRD_WO+1}, 0xffff')
    a(f's_sub_u32 s{SRD_WO+2}, 524288, s{sT2}\ns_mov_b32 s{SRD_WO+3}, 0x20000')
    if not AFIRST: a('s_barrier')
    a(f's_cmp_ge_u32 s{sWave}, 4\ns_cbranch_scc1 L_pwave')

    def perms(land, e, tb):
        m = e >> 1; sel = SEL_LO + (e & 1); t = tb[e % 2]
        return [f'v_perm_b32 v{t+p}, v{land+4*(2*p+1)+m}, v{land+4*(2*p)+m}, s{sel}' for p in range(4)]
    def mm_block(land, tb, afs, accs, first=False):
        o = perms(land, 0, tb) + perms(land, 1, tb)
        for e in range(8):
            t = tb[e % 2]
            if e == 7 and len(afs) == 1: o.append('s_nop 0')
            for af, acc in zip(afs, accs):
                c = '0' if first else f'v[{acc+4*e}:{acc+4*e+3}]'
                o.append(f'v_mfma_f32_16x16x32_bf16 v[{acc+4*e}:{acc+4*e+3}], v[{af}:{af+3}], v[{t}:{t+3}], {c}')
            if e + 2 < 8: o += perms(land, e + 2, tb)
        return o
    def smf(acc, af, bop):
        return f'v_smfmac_f32_16x16x64_bf16 v[{acc}:{acc+3}], v[{af}:{af+3}], v[{bop}:{bop+7}], v{vIDX}'
    def mm_pair(landA, landB, tb, af, acc):
        def pp(e):
            m = e >> 1; sel = SEL_LO + (e & 1); t = tb[e % 2]
            return ([f'v_perm_b32 v{t+p}, v{landA+4*(2*p+1)+m}, v{landA+4*(2*p)+m}, s{sel}' for p in range(4)] +
                    [f'v_perm_b32 v{t+4+p}, v{landB+4*(2*p+1)+m}, v{landB+4*(2*p)+m}, s{sel}' for p in range(4)])
        o = pp(0) + pp(1)
        for e in range(8):
            if e == 7: o.append('s_nop 0')
            o.append(smf(acc + 4*e, af, tb[e % 2]))
            if e + 2 < 8: o += pp(e + 2)
        return o
    def transpose_pair_inplace(b, t0, t1):
        o = []
        P_ = lambda d, hi_, lo_, x: f'v_perm_b32 v{d}, v{hi_}, v{lo_}, s{SEL_LO + x}'
        for blk in range(2):
            ix = lambda aa, bb, cc: b + 16*aa + 8*bb + 4*blk + cc
            for p in range(4):
                o += [P_(t0, ix(p,1,p), ix(p,0,p), 0), P_(ix(p,1,p), ix(p,1,p), ix(p,0,p), 1), f'v_mov_b32 v{ix(p,0,p)}, v{t0}']
            for p in range(4):
                for m in range(p + 1, 4):
                    o += [P_(t0, ix(p,1,m), ix(p,0,m), 0), P_(t1, ix(p,1,m), ix(p,0,m), 1),
                          P_(ix(p,0,m), ix(m,1,p), ix(m,0,p), 0), P_(ix(p,1,m), ix(m,1,p), ix(m,0,p), 1),
                          f'v_mov_b32 v{ix(m,0,p)}, v{t0}', f'v_mov_b32 v{ix(m,1,p)}, v{t1}']
        return o
    def transpose_inplace(b, t0, t1):
        o = []
        P_ = lambda d, hi_, lo_, x: f'v_perm_b32 v{d}, v{hi_}, v{lo_}, s{SEL_LO + x}'
        for p in range(4):
            o += [P_(t0, b+8*p+4+p, b+8*p+p, 0), P_(b+8*p+4+p, b+8*p+4+p, b+8*p+p, 1), f'v_mov_b32 v{b+8*p+p}, v{t0}']
        for p in range(4):
            for m in range(p + 1, 4):
                o += [P_(t0, b+8*p+4+m, b+8*p+m, 0), P_(t1, b+8*p+4+m, b+8*p+m, 1),
                      P_(b+8*p+m, b+8*m+4+p, b+8*m+p, 0), P_(b+8*p+4+m, b+8*m+4+p, b+8*m+p, 1),
                      f'v_mov_b32 v{b+8*m+p}, v{t0}', f'v_mov_b32 v{b+8*m+4+p}, v{t1}']
        return o
    vMa, vMb, vMc, vMd = 52, 53, 54, 55
    def merge_addr(offA):
        o = [f's_lshl_b32 s{sT}, s{sWave}, 6', f'v_add_u32 v1, s{sT}, v0', 'v_lshrrev_b32 v2, 4, v1', 'v_and_b32 v3, 15, v1',
             f'v_lshlrev_b32 v{vMa}, 5, v2', f'v_add_u32 v{vMa}, {ML}, v{vMa}',
             'v_and_b32 v5, 7, v2', 'v_xor_b32 v5, v5, v3', 'v_lshlrev_b32 v5, 4, v5', 'v_lshlrev_b32 v6, 9, v2', 'v_add_u32 v5, v5, v6', f'v_add_u32 v{vMb}, {offA}, v5',
             f'v_add_u32 v{vMc}, 65536, v{vMb}',
             'v_and_b32 v4, 7, v2', f'v_mul_u32_u24 v4, {ACT_STRIDE}, v4', 'v_lshrrev_b32 v5, 3, v2', 'v_lshlrev_b32 v5, 7, v5', 'v_add_u32 v4, v4, v5', 'v_lshlrev_b32 v5, 2, v3', 'v_add_u32 v4, v4, v5', f'v_add_u32 v{vMd}, {ACT}, v4']
        return o
    def merge_body(hook=None, zero=None):
        a(f'ds_read_b128 v[8:11], v{vMa}\nds_read_b128 v[12:15], v{vMa} offset:16')
        for w in range(4):
            for half in range(2):
                r = 16 + (w*2 + half)*4
                a(f'ds_read_b128 v[{r}:{r+3}], v{vMb if w < 2 else vMc} offset:{(w&1)*32768 + 256*half}')
        if hook is not None: hook()
        a('s_waitcnt lgkmcnt(8)')
        a('v_max3_f32 v48, v8, v9, v10\nv_max_f32 v48, v48, v11')
        for w in range(4): a(f'v_sub_f32 v{8+w}, v{8+w}, v48')
        for w in range(4): a(f'v_mul_f32 v{8+w}, s{sC}, v{8+w}')
        for w in range(4): a(f'v_exp_f32 v{8+w}, v{8+w}')
        a('s_nop 0')
        a('v_mul_f32 v48, v8, v12\nv_fmac_f32 v48, v9, v13\nv_fmac_f32 v48, v10, v14\nv_fmac_f32 v48, v11, v15')
        a('v_rcp_f32 v48, v48\ns_nop 0')
        for w in range(4): a(f'v_mul_f32 v{8+w}, v{8+w}, v48')
        a('s_waitcnt lgkmcnt(0)')
        for half in range(2):
            for i in range(4): a(f'v_mul_f32 v{16+half*4+i}, v8, v{16+half*4+i}')
        for w in range(1, 4):
            for half in range(2):
                for i in range(4): a(f'v_fmac_f32 v{16+half*4+i}, v{8+w}, v{16+(w*2+half)*4+i}')
        a('v_cvt_pk_bf16_f32 v48, v16, v17\nv_cvt_pk_bf16_f32 v49, v18, v19\nv_cvt_pk_bf16_f32 v50, v20, v21\nv_cvt_pk_bf16_f32 v51, v22, v23')
        a(f'ds_write2_b32 v{vMd}, v48, v50 offset1:16\nv_add_u32 v{vMd}, {8*ACT_STRIDE}, v{vMd}\nds_write2_b32 v{vMd}, v49, v51 offset1:16')
        if zero is not None:
            for r in range(zero, zero + 32): a(f'v_mov_b32 v{r}, 0')
        if debug:
            a(f's_lshl_b32 s{sT}, s{sWave}, 6\nv_add_u32 v1, s{sT}, v0\nv_lshrrev_b32 v2, 4, v1\nv_and_b32 v3, 15, v1')
            a(f'v_and_b32 v4, 7, v2\nv_lshlrev_b32 v4, 13, v4\nv_lshrrev_b32 v5, 3, v2\nv_lshlrev_b32 v5, 8, v5\nv_add_u32 v4, v4, v5\nv_lshlrev_b32 v5, 3, v3\nv_add_u32 v4, v4, v5')
            a(f's_lshl_b32 s{sT}, s{sB}, 16\ns_lshl_b32 s{sT2}, s{sH}, 10\ns_add_u32 s{sT}, s{sT}, s{sT2}\ns_add_u32 s{sT}, s{sT}, {WS_ODUMP}\nv_add_u32 v4, s{sT}, v4')
            a(f'global_store_dwordx2 v4, v[48:49], s[{sWs}:{sWs+1}]\nglobal_store_dwordx2 v4, v[50:51], s[{sWs}:{sWs+1}] offset:128')
            a('s_waitcnt vmcnt(0)')
    def wo_load_list(land, s, regmap=None):
        o = []
        for j in range(8):
            r = land + 4*j if regmap is None else regmap(j)
            o.append([f's_mov_b32 s{sT}, {s*32768 + (j//4)*4096}',
                      f'buffer_load_dwordx4 v[{r}:{r+3}], v{vWO}, s[{SRD_WO}:{SRD_WO+3}], s{sT} offen offset:{(j%4)*1024} {woflags}'])
        return o
    def wo_dma_list(ldsoff, s):
        o = []
        for j in range(8):
            o.append([f's_add_u32 m0, s{sRing}, {ldsoff + j*1024}', f's_mov_b32 s{sT}, {s*32768 + j*1024}',
                      f'buffer_load_dwordx4 v{vWO}, s[{SRD_WO}:{SRD_WO+3}], s{sT} offen {woflags} lds'])
        return o

    a('s_mov_b32 s3, 0')
    if aprio: a('s_setprio 3')
    a(f's_lshl_b32 s{sT}, s2, 19')
    for srd, p in ((SRD_K, sKp), (SRD_V, sVp)):
        a(f's_add_u32 s{srd}, s{p}, s{sT}\ns_addc_u32 s{srd+1}, s{p+1}, 0\ns_and_b32 s{srd+1}, s{srd+1}, 0xffff')
        a(f's_mov_b32 s{srd+2}, 524288\ns_mov_b32 s{srd+3}, 0x20000')
    a(f's_lshl_b32 s{sRing}, s{sWave}, 15')
    a(f's_mul_i32 s{sG}, s{sWave}, {Cw}')
    a(f's_mov_b32 s{sC}, {hex(f2u(C_SCALE))}')
    a('v_lshrrev_b32 v1, 4, v0\nv_and_b32 v2, 15, v0')
    a('v_lshlrev_b32 v3, 8, v1')
    a('v_xor_b32 v4, v2, v1')
    for u in range(4):
        a(f'v_xor_b32 v5, {4*u}, v4\nv_lshlrev_b32 v5, 4, v5\nv_add_u32 v{vDK[u]}, v3, v5')
    a(f'v_lshlrev_b32 v5, 2, v1\nv_xor_b32 v5, v5, v2\nv_lshlrev_b32 v5, 4, v5\nv_add_u32 v{vDV}, v3, v5')

    vm = VM()
    force = [False]
    gbase = [0]
    def issue(kv, hb, u, tile, win, toreg=None):
        o = vm.window(win) if win else []
        if force[0] and not o: o = [f's_waitcnt vmcnt({win-1})']
        if force[0]: assert o == [f's_waitcnt vmcnt({win-1})'], o
        goff = (tile - gbase[0]) * 32768 + Bu(u)
        vd = vDK[u & 3] if kv == 'K' else vDV
        srd = SRD_K if kv == 'K' else SRD_V
        if toreg is None:
            o.append(f's_add_u32 m0, s{sRing}, {hb*16384 + (8192 if kv=="V" else 0) + 1024*u}')
            o.append(f's_add_u32 s{sT}, s{sG}, {goff}')
            o.append(f'buffer_load_dwordx4 v{vd}, s[{srd}:{srd+3}], s{sT} offen {flags} lds')
        else:
            o.append(f's_add_u32 s{sT}, s{sG}, {goff}')
            o.append(f'buffer_load_dwordx4 v[{toreg}:{toreg+3}], v{vd}, s[{srd}:{srd+3}], s{sT} offen {flags}')
        vm.add((kv, tile), True)
        return o
    def other(lst, tag):
        def f():
            vm.add(tag, False)
            return list(lst)
        return f

    npro = [0]
    def pro(kv, hb, tile, toreg=None, us=range(8)):
        for u in us:
            if AGATE is not None and npro[0] == AGATE:
                a(f'v_mov_b32 v6, {CNT}'); lds_spin(24, 4, 6, 7)
            a.ext(issue(kv, hb, u, tile, W0, None if toreg is None else toreg + 4*u)); npro[0] += 1
            if QGATE is not None and npro[0] == QGATE:
                a(f'v_mov_b32 v6, {CNT}\nv_mov_b32 v7, 1'); lds_inc(24, 6, 7)
    if AFIRST:
        for u in range(AFIRST):
            pro('K', 0, 0, us=[u]); pro('V', 0, 0, us=[u])
        a('s_barrier')
        pro('K', 0, 0, us=range(AFIRST, 8))
    else:
        pro('K', 0, 0)
    a('v_and_b32 v1, 31, v0\nv_lshrrev_b32 v2, 5, v0')
    a('v_and_b32 v3, 15, v1\nv_xor_b32 v3, v3, v2')
    a(f'v_lshlrev_b32 v4, 8, v1\nv_add_u32 v4, s{sRing}, v4')
    for s in range(8):
        a(f'v_xor_b32 v5, {2*s}, v3\nv_lshlrev_b32 v5, 4, v5\nv_add_u32 v{vK[s]}, v4, v5')
    a('v_lshrrev_b32 v1, 4, v0')
    a('v_lshrrev_b32 v2, 2, v0\nv_and_b32 v2, 3, v2')
    a('v_and_b32 v3, 3, v0')
    a('v_lshrrev_b32 v4, 1, v1\nv_lshlrev_b32 v4, 2, v4\nv_add_u32 v4, v4, v2\nv_lshlrev_b32 v4, 8, v4')
    a('v_and_b32 v5, 1, v1\nv_lshlrev_b32 v5, 5, v5\nv_add_u32 v4, v4, v5')
    a('v_lshlrev_b32 v5, 3, v3\nv_add_u32 v4, v4, v5')
    a(f'v_add_u32 v4, s{sRing}, v4\nv_add_u32 v4, 8192, v4')
    for blk in range(4):
        a(f'v_xor_b32 v5, {blk}, v2\nv_lshlrev_b32 v5, 6, v5\nv_add_u32 v{vV[blk]}, v4, v5')
    a(f'v_mov_b32 v{vM}, 0xff800000\nv_mov_b32 v{vL}, 0')
    for r in range(64): a(f'v_mov_b32 v{O0+r}, 0')
    vLIN = 254
    a(f'v_lshlrev_b32 v{vLIN}, 4, v0\nv_add_u32 v{vLIN}, s{sRing}, v{vLIN}')
    pro('V', 0, 0, us=range(AFIRST, 8))
    if not (loopst or startst): stamp(8)
    pro('K', 1, 1)
    if not (loopst or startst): stamp(9)
    if stage:
        pro('K', 0, 2, toreg=R0)
        if not (loopst or startst): stamp(10)
        pro('V', 0, 2, toreg=R0 + 32)
        if not (loopst or startst): stamp(11)
    a(f'v_mov_b32 v6, {CNT}')
    if not x_noq: lds_spin(4, 2, 6, 7)
    pro('V', 1, 1)
    if hstage:
        pro('K', 0, 2, toreg=R0, us=range(HS_N))
    if not loopst: stamp(1)
    if aprio: a('s_setprio 0')
    a('s_barrier')
    if not loopst: stamp(2)
    a(f's_sub_u32 s{sT}, {QBUF}, s{sRing}')
    for s in range(8):
        a(f'v_add_u32 v1, s{sT}, v{vK[s]}\nds_read_b128 v[{Q0+4*s}:{Q0+4*s+3}], v1')
    a('s_waitcnt lgkmcnt(0)')

    def tile(hb, tidx, kblocks=(), vblocks=(), after_k=None, after_v=None, after_qk=None, inloop=False, final=False, bump=False, pre_v=None, mid=None, kfront=False):
        c = []
        off = hb * 16384
        if not inloop: c += vm.need(('K', tidx))
        for s in range(8):
            c.append(f'ds_read_b128 v[{KV0+4*s}:{KV0+4*s+3}], v{vK[s]} offset:{off}')
        c.append('s_waitcnt lgkmcnt(4)')
        for s in range(8):
            if s == 4: c.append('s_waitcnt lgkmcnt(0)')
            srcc = '0' if s == 0 else f'v[{S0}:{S0+15}]'
            c.append(f'v_mfma_f32_32x32x16_bf16 v[{S0}:{S0+15}], v[{KV0+4*s}:{KV0+4*s+3}], v[{Q0+4*s}:{Q0+4*s+3}], {srcc}')
        vreads = []
        for s2 in range(2):
            for blk in range(4):
                for half in range(2):
                    r = KV0 + (s2*4 + blk)*4 + 2*half
                    vreads.append(f'ds_read_b64_tr_b16 v[{r}:{r+1}], v{vV[blk]} offset:{off + s2*4096 + half*2048}')
        nw = 0
        if after_k is not None:
            x = after_k(); c += x; nw += len(x)
        if after_qk is not None:
            x = after_qk(); c += x; nw += len(x)
        if not final:
            if not inloop: c += vm.need(('V', tidx))
            c.extend(vreads); nw += 16
        if nw < 12: c.append(f's_nop {min(7, 11 - nw)}'); nw += min(8, 12 - nw)
        if nw < 12: c.append(f's_nop {11 - nw}')
        sm = []
        S = lambda k: S0 + k
        sm.append(f'v_max3_f32 v{T[0]}, v{S(0)}, v{S(1)}, v{S(2)}')
        sm.append(f'v_max3_f32 v{T[1]}, v{S(3)}, v{S(4)}, v{S(5)}')
        sm.append(f'v_max3_f32 v{T[2]}, v{S(6)}, v{S(7)}, v{S(8)}')
        sm.append(f'v_max3_f32 v{T[3]}, v{S(9)}, v{S(10)}, v{S(11)}')
        sm.append(f'v_max3_f32 v{T[4]}, v{S(12)}, v{S(13)}, v{S(14)}')
        sm.append(f'v_max3_f32 v{T[0]}, v{T[0]}, v{T[1]}, v{S(15)}')
        sm.append(f'v_max3_f32 v{T[2]}, v{T[2]}, v{T[3]}, v{T[4]}')
        sm.append(f'v_max_f32 v{T[0]}, v{T[0]}, v{T[2]}')
        sm.append(f'v_mov_b32 v{T[1]}, v{T[0]}')
        sm.append('s_nop 1')
        sm.append(f'v_permlane32_swap_b32 v{T[0]}, v{T[1]}')
        sm.append(f's_nop 1')
        sm.append(f'v_max3_f32 v{T[0]}, v{T[0]}, v{T[1]}, v{vM}')
        sm.append(f'v_mul_f32 v{vNM}, s{sC}, v{T[0]}')
        sm.append(f'v_fma_f32 v{vAl}, v{vM}, s{sC}, -v{vNM}')
        sm.append(f'v_mov_b32 v{vM}, v{T[0]}')
        sm.append(f'v_exp_f32 v{vAl}, v{vAl}')
        for k in range(16): sm.append(f'v_fma_f32 v{S(k)}, v{S(k)}, s{sC}, -v{vNM}')
        for k in range(16): sm.append(f'v_exp_f32 v{S(k)}, v{S(k)}')
        sm.append(f'v_mul_f32 v{vL}, v{vL}, v{vAl}')
        for k in range(4): sm.append(f'v_add_f32 v{T[k]}, v{S(k)}, v{S(k+4)}')
        for k in range(4): sm.append(f'v_add_f32 v{T[k]}, v{T[k]}, v{S(k+8)}')
        for k in range(4): sm.append(f'v_add_f32 v{T[k]}, v{T[k]}, v{S(k+12)}')
        sm.append(f'v_add_f32 v{T[0]}, v{T[0]}, v{T[1]}')
        sm.append(f'v_add_f32 v{T[2]}, v{T[2]}, v{T[3]}')
        for k in range(8): sm.append(f'v_cvt_pk_bf16_f32 v{P0+k}, v{S(2*k)}, v{S(2*k+1)}')
        sm.append(f'v_add_f32 v{vL}, v{vL}, v{T[0]}')
        sm.append(f'v_add_f32 v{vL}, v{vL}, v{T[2]}')
        for r in range(64): sm.append(f'v_mul_f32 v{O0+r}, v{O0+r}, v{vAl}')
        if kfront:
            for b in kblocks: c.extend(b())
            c.extend(sm)
        else:
            c.extend(interleave(sm, list(kblocks)))
        if mid is not None: c += mid()
        if pre_v is not None: c += pre_v()
        if final:
            c += vm.need(('V', tidx))
            c.extend(vreads)
        c.append('s_waitcnt lgkmcnt(0)')
        if after_v is not None: c += after_v()
        pv = []
        for s2 in range(2):
            for blk in range(4):
                r = KV0 + (s2*4 + blk)*4
                pv.append(f'v_mfma_f32_32x32x16_bf16 v[{O0+16*blk}:{O0+16*blk+15}], v[{r}:{r+3}], v[{P0+4*s2}:{P0+4*s2+3}], v[{O0+16*blk}:{O0+16*blk+15}]')
        vb = list(vblocks)
        per = -(-len(vb) // 8) if vb else 0
        for i in range(8):
            c.append(pv[i])
            for b in vb[i*per:(i+1)*per]: c.extend(b())
        if bump:
            c.append(f's_add_u32 s{sG}, s{sG}, 32768'); gbase[0] += 1
        return c
    def iss(kv, hb, tile_): return [(lambda u=u: issue(kv, hb, u, tile_, W)) for u in range(8)]

    if stage:
        def wrK():
            return vm.need(('K', 2)) + [f'ds_write_b128 v{vLIN}, v[{R0+4*u}:{R0+4*u+3}] offset:{16384 + 1024*u}' for u in range(8)]
        def wrV():
            return vm.need(('V', 2)) + [f'ds_write_b128 v{vLIN}, v[{R0+32+4*u}:{R0+32+4*u+3}] offset:{16384 + 8192 + 1024*u}' for u in range(8)]
        if WR:
            issr = lambda kv: [(lambda u=u: issue(kv, 0, u, 3, WR)) for u in range(8)]
            if startst: a('s_memrealtime s[80:81]\ns_waitcnt lgkmcnt(0)')
            if WRMODE == 0:
                a.ext(tile(0, 0, kblocks=issr('K'), vblocks=issr('V'), kfront=True))
            else:
                a.ext(tile(0, 0, kblocks=issr('K'), kfront=True))
            if startst: a('s_memrealtime s[82:83]\ns_waitcnt lgkmcnt(0)')
            if WRMODE == 0:
                a.ext(tile(1, 1, after_k=wrK, after_v=wrV))
            elif WRMODE == 1:
                a.ext(tile(1, 1, kblocks=issr('V'), kfront=True, after_k=wrK, after_v=wrV))
            else:
                a.ext(tile(1, 1, kblocks=issr('V'), after_k=wrK, after_v=wrV))
            if startst: a('s_memrealtime s[84:85]\ns_waitcnt lgkmcnt(0)')
        else:
            a.ext(tile(0, 0, kblocks=iss('K', 0, 3)))
            a.ext(tile(1, 1, kblocks=iss('V', 0, 3), after_k=wrK, after_v=wrV))
        a(f's_add_u32 s{sG}, s{sG}, {4*32768}'); gbase[0] = 4
        first_loop, nit, order = 2, 5, (1, 0)
    elif hstage:
        def wrK2():
            return vm.need(('K', 2)) + [f'ds_write_b128 v{vLIN}, v[{R0+4*u}:{R0+4*u+3}] offset:{1024*u}' for u in range(HS_N)]
        kb0 = [(lambda u=u: issue('K', 0, u, 2, W)) for u in range(HS_N, 8)]
        vb0 = [(lambda u=u: (['s_waitcnt lgkmcnt(0)'] if u == 0 else []) + issue('V', 0, u, 2, W)) for u in range(8)]
        a.ext(tile(0, 0, kblocks=kb0 + vb0, after_v=wrK2))
        if WO67EARLY:
            wl67 = wo_load_list(R0, 6, lambda j: R0 + 16*(j >> 1) + 8*(j & 1)) + wo_load_list(R0, 7, lambda j: R0 + 16*(j >> 1) + 8*(j & 1) + 4)
            kb1 = []
            for u in range(8):
                kb1.append(lambda u=u: issue('K', 1, u, 3, W))
                kb1.append(other(wl67[2*u], 'wo6' if 2*u < 8 else 'wo7')); kb1.append(other(wl67[2*u+1], 'wo6' if 2*u+1 < 8 else 'wo7'))
            a.ext(tile(1, 1, kblocks=kb1, vblocks=iss('V', 1, 3)))
        else:
            a.ext(tile(1, 1, kblocks=iss('K', 1, 3), vblocks=iss('V', 1, 3)))
        a(f's_add_u32 s{sG}, s{sG}, {4*32768}'); gbase[0] = 4
        first_loop, nit, order = 2, 5, (0, 1)
    else:
        a(f's_add_u32 s{sG}, s{sG}, {2*32768}'); gbase[0] = 2
        first_loop, nit, order = 0, 6, (0, 1)
    a(f's_mov_b32 s{sCnt}, {nit}')
    if WHI: a(f's_mov_b32 s50, {THR0}')
    if LALIGN: a.raw(f'.p2align {LALIGN}')
    for _ in range(LPAD): a('s_nop 0')
    a('L_loop:')
    if loopst:
        a('s_mov_b32 s86, s84\ns_mov_b32 s84, s82\ns_mov_b32 s82, s80\ns_mov_b32 s80, s66\ns_memrealtime s[66:67]\ns_waitcnt lgkmcnt(0)')
    if WHI:
        if WHICNT is not None:
            a(f's_cmp_le_u32 s{sCnt}, {WHICNT}\ns_cbranch_scc1 L_fast')
        else:
            a('s_memrealtime s[48:49]\ns_waitcnt lgkmcnt(0)\ns_sub_u32 s48, s48, s62\ns_cmp_gt_u32 s48, s50\ns_cbranch_scc1 L_fast')
    force[0] = True
    snap = (list(vm.ops), vm.done, gbase[0])
    for hb in order:
        t = gbase[0]
        a.ext(tile(hb, None, kblocks=iss('K', hb, t), vblocks=iss('V', hb, t), inloop=True, bump=True))
    force[0] = False
    if WHI:
        a('s_branch L_next')
        a('L_fast:')
        after = (list(vm.ops), vm.done, gbase[0])
        vm.ops, vm.done, gbase[0] = list(snap[0]), snap[1], snap[2]
        def issue_hi(kv, hb, u, tile_):
            o = [f's_waitcnt vmcnt({WHI-1})']
            goff = (tile_ - gbase[0]) * 32768 + Bu(u)
            vd = vDK[u & 3] if kv == 'K' else vDV
            srd = SRD_K if kv == 'K' else SRD_V
            o.append(f's_add_u32 m0, s{sRing}, {hb*16384 + (8192 if kv=="V" else 0) + 1024*u}')
            o.append(f's_add_u32 s{sT}, s{sG}, {goff}')
            o.append(f'buffer_load_dwordx4 v{vd}, s[{srd}:{srd+3}], s{sT} offen {flags} lds')
            return o
        for hb in order:
            t = gbase[0]
            a.ext(tile(hb, None, kblocks=[(lambda u=u, hb=hb, t=t: issue_hi('K', hb, u, t)) for u in range(8)],
                       vblocks=[(lambda u=u, hb=hb, t=t: issue_hi('V', hb, u, t)) for u in range(8)], inloop=True, bump=True))
        vm.ops, vm.done, gbase[0] = after
        a('L_next:')
        a(f's_add_u32 s50, s50, {DTH}')
    if latewarm is not None:
        l = lab('noflag')
        a(f's_cmp_eq_u32 s{sCnt}, {latewarm}\ns_cbranch_scc0 {l}')
        a(f'v_mov_b32 v1, {CNT}\nv_mov_b32 v2, 1\nds_write_b32 v1, v2 offset:20')
        a(f'{l}:')
    a(f's_sub_u32 s{sCnt}, s{sCnt}, 1\ns_cmp_lg_u32 s{sCnt}, 0\ns_cbranch_scc1 L_loop')
    if loopst: a('s_memrealtime s[68:69]\ns_waitcnt lgkmcnt(0)')
    for it in range(1, nit):
        for hb in order:
            t = gbase[0]
            for u in range(8): vm.add(('K', t), True)
            for u in range(8): vm.add(('V', t), True)
            gbase[0] += 1
    vm.done = len(vm.ops) - max(W, WHI or 0)
    assert gbase[0] == 14, gbase
    hB, hA = order
    wl = wo_load_list(R0, 6, lambda j: R0 + 16*(j >> 1) + 8*(j & 1)) + wo_load_list(R0, 7, lambda j: R0 + 16*(j >> 1) + 8*(j & 1) + 4)
    kb = []; vb = []
    for u in range(8):
        kb.append(lambda u=u: issue('K', hB, u, 14, WEND or W))
        if not WO67EARLY: kb.append(other(wl[u], 'wo6'))
    for u in range(8):
        vb.append(lambda u=u: issue('V', hB, u, 14, WEND or W))
        if not WO67EARLY: vb.append(other(wl[8+u], 'wo7'))
    mid12 = (lambda: vm.need('wo7') + transpose_pair_inplace(R0, 1, 2)) if WO67EARLY else None
    a.ext(tile(hB, 12, kblocks=kb, vblocks=vb, bump=True, mid=mid12))
    isse = lambda kv: [(lambda u=u: issue(kv, hA, u, 15, WEND or W)) for u in range(8)]
    v15 = isse('V')
    a.ext(tile(hA, 13, kblocks=isse('K'), vblocks=v15[:8 - endmix], bump=True))
    gbase_save = gbase[0]
    d8 = wo_dma_list(hB*16384, 8); d9 = wo_dma_list(hB*16384 + 8192, 9)
    def pretr():
        return vm.need('wo7') + transpose_pair_inplace(R0, 1, 2)
    late15 = [(lambda u=u: issue('V', hA, u, 15, WEND or W)) for u in range(8 - endmix, 8)]
    kb14 = []
    for i in range(8):
        if i < len(late15): kb14.append(late15[i])
        kb14.append(other(d8[i], 'wo8'))
    a.ext(tile(hB, 14, kblocks=kb14, vblocks=[other(x, 'wo9') for x in d9], mid=None if WO67EARLY else pretr))
    offA = hA * 16384
    def ld10():
        o = []
        for x in wo_load_list(Q0, 10): vm.add('wo10'); o += x
        return o
    def prepub():
        o = [f'v_mov_b32 v1, v{vL}', 's_nop 1', f'v_permlane32_swap_b32 v1, v{vL}', 's_nop 1', f'v_add_f32 v{vL}, v{vL}, v1',
             'v_and_b32 v2, 31, v0', 'v_lshrrev_b32 v3, 5, v0',
             'v_lshlrev_b32 v4, 5, v2', f's_lshl_b32 s{sT}, s{sWave}, 2', f'v_add_u32 v4, s{sT}, v4', f'v_add_u32 v4, {ML}, v4',
             f'ds_write_b32 v4, v{vM}', f'ds_write_b32 v4, v{vL} offset:16',
             'v_lshlrev_b32 v4, 9, v2', f'v_add_u32 v4, s{sRing}, v4', 'v_and_b32 v5, 7, v2', 'v_xor_b32 v5, v5, v3']
        for j in range(4):
            o += [f'v_xor_b32 v6, {2*j}, v5', 'v_lshlrev_b32 v6, 4, v6', f'v_add_u32 v{T[j]}, v4, v6']
        o += ['v_and_b32 v1, 8, v0', 'v_mov_b32 v2, 0x4444', 'v_mov_b32 v3, 0xeeee', 'v_cmp_ne_u32 vcc, 0, v1', 's_nop 1', f'v_cndmask_b32 v{vIDX}, v2, v3, vcc']
        return o + merge_addr(offA)
    a.ext(tile(hA, 15, after_qk=ld10, final=True, pre_v=prepub))
    stamp(3)
    for x in wo_load_list(KV0, 11): vm.add('wo11'); a.ext(x)
    for blk in range(4):
        for j in range(4):
            r = O0 + 16*blk + 4*j
            a(f'ds_write_b128 v{T[j]}, v[{r}:{r+3}] offset:{offA + 128*blk}')
    a('s_waitcnt lgkmcnt(0)')
    if LATE12 == 0:
        for x in wo_load_list(O0, 12): vm.add('wo12'); a.ext(x)
    if tailst: stamp(8)
    a('s_barrier')
    if tailst: stamp(9)
    def ld13():
        for x in wo_load_list(O0 + 32, 13): vm.add('wo13'); a.ext(x)
    merge_body(ld13 if M13 else None, zero=8)
    a('s_waitcnt lgkmcnt(0)')
    a('s_barrier')
    stamp(4)
    if LATE12 == 1:
        for x in wo_load_list(O0, 12): vm.add('wo12'); a.ext(x)
    aACC, aAF = 8, [40, 44]
    if oprio: a(f's_setprio {oprio}')
    if not M13:
        for x in wo_load_list(O0 + 32, 13): vm.add('wo13'); a.ext(x)
    a(f'ds_read_b128 v[{aAF[0]}:{aAF[0]+3}], v{vACT} offset:{64*3}')
    a(f'ds_read_b128 v[{aAF[1]}:{aAF[1]+3}], v{vACT} offset:{64*5}')
    a('s_waitcnt lgkmcnt(1)')
    for e in range(8): a(smf(aACC + 4*e, aAF[0], R0 + 8*e))
    a.ext(vm.need('wo9'))
    for blk in (8, 9):
        for j in range(8):
            a(f'ds_read_b128 v[{R0+(blk-8)*32+4*j}:{R0+(blk-8)*32+4*j+3}], v{vLIN} offset:{hB*16384 + (blk-8)*8192 + 1024*j}')
    aTB = [48, 0]
    a(f'ds_read_b128 v[{aAF[0]}:{aAF[0]+3}], v{vACT} offset:{64*4}')
    a.ext(vm.need('wo11'))
    a('s_waitcnt lgkmcnt(15)')
    a.ext(mm_pair(Q0, KV0, aTB, aAF[1], aACC))
    a(f'ds_read_b128 v[{aAF[1]}:{aAF[1]+3}], v{vACT} offset:{64*6}')
    a('s_waitcnt lgkmcnt(1)')
    a.ext(mm_pair(R0, R0 + 32, aTB, aAF[0], aACC))
    a.ext(vm.need('wo13'))
    a('s_waitcnt lgkmcnt(0)')
    a.ext(mm_pair(O0, O0 + 32, aTB, aAF[1], aACC))
    a('s_nop 7')
    for e in range(8):
        a(f'ds_write_b128 v{vLIN}, v[{aACC+4*e}:{aACC+4*e+3}] offset:{offA + e*1024}')
    a('s_waitcnt lgkmcnt(0)')
    if tailst: stamp(10)
    a('s_barrier')
    if stamps: a('s_branch L_stamps')
    else: a('s_endpgm')

    if PALIGN: a.raw(f'.p2align {PALIGN}')
    a('L_pwave:')
    a('s_mov_b32 s3, 1')
    if AFIRST: a('s_barrier')
    if pprio: a('s_setprio 3')
    if x_noq: a('s_branch L_noq')
    sPW, sGQ, sHQ, sRot = sNW, 42, 43, 39
    a(f's_lshr_b32 s{sGQ}, s{sB}, 2\ns_and_b32 s{sHQ}, s{sB}, 3\ns_and_b32 s{sRot}, s{sGQ}, 3')
    SRD_W, SRD_X = 24, 28
    XF, TB, ACC, LAND = 12, [44, 48], 56, 120
    vW, vX = 8, 9
    a(f's_mov_b32 s{SRD_X}, s{sX}\ns_and_b32 s{SRD_X+1}, s{sX+1}, 0xffff\ns_mov_b32 s{SRD_X+2}, 262144\ns_mov_b32 s{SRD_X+3}, 0x20000')
    a(f'v_and_b32 v2, 15, v0\nv_lshrrev_b32 v3, 4, v0\nv_lshlrev_b32 v4, 10, v2\nv_lshlrev_b32 v5, 4, v3\nv_add_u32 v{vX}, v4, v5')
    if x_xcontig: a(f'v_lshlrev_b32 v{vX}, 4, v0')
    a(f'v_lshlrev_b32 v4, 16, v3\nv_lshlrev_b32 v5, 4, v2\nv_add_u32 v{vW}, v4, v5')
    a(f's_lshl_b32 s{sT}, s{sH}, 2\ns_add_u32 s{sT}, s{sT}, s{sHQ}\ns_lshl_b32 s{sT}, s{sT}, 8')
    a(f's_add_u32 s{SRD_W}, s{sWq}, s{sT}\ns_addc_u32 s{SRD_W+1}, s{sWq+1}, 0\ns_and_b32 s{SRD_W+1}, s{SRD_W+1}, 0xffff')
    a(f's_sub_u32 s{SRD_W+2}, 4194304, s{sT}\ns_mov_b32 s{SRD_W+3}, 0x20000')
    for sg in range(4): a(f's_add_u32 s{48+sg}, s{sRot}, {sg}\ns_and_b32 s{48+sg}, s{48+sg}, 3')
    a(f's_and_b32 s{sT}, s{sPW}, 1')
    a(f's_lshl_b32 s52, s{sGQ}, 15\ns_lshl_b32 s{sT2}, s{sT}, 14\ns_add_u32 s52, s52, s{sT2}\ns_lshl_b32 s{sT2}, s{sPW}, 8\ns_add_u32 s52, s52, s{sT2}')
    a(f's_xor_b32 s53, s52, 16384')
    if QPF:
        a(f'v_lshrrev_b32 v4, 4, v0\nv_lshlrev_b32 v4, 13, v4\nv_and_b32 v5, 15, v0\nv_lshlrev_b32 v5, 4, v5\nv_add_u32 v4, v4, v5')
        a(f's_lshl_b32 s{sT2}, s{sGQ}, 2\ns_add_u32 s{sT2}, s{sT2}, s{sPW}\ns_lshl_b32 s{sT2}, s{sT2}, 17')
        for i in range(4):
            a(f's_add_u32 s{sT}, s{sT2}, {i*4*8192}')
            a(f'buffer_load_dwordx4 v[{LAND+4*i}:{LAND+4*i+3}], v4, s[{SRD_W}:{SRD_W+3}], s{sT} offen {wqflags}')
        a('v_lshlrev_b32 v5, 4, v0')
        a(f's_lshl_b32 s{sT2}, s{sGQ}, 5\ns_lshl_b32 s{sT}, s{sHQ}, 3\ns_add_u32 s{sT2}, s{sT2}, s{sT}\ns_lshl_b32 s{sT}, s{sPW}, 1\ns_add_u32 s{sT2}, s{sT2}, s{sT}\ns_lshl_b32 s{sT2}, s{sT2}, 10')
        for i in range(2):
            a(f'buffer_load_dwordx4 v[{LAND+16+4*i}:{LAND+16+4*i+3}], v5, s[{SRD_X}:{SRD_X+3}], s{sT2} offen offset:{i*1024} {xflags}')
        a('s_waitcnt vmcnt(0)')
        if QPFSLEEP: a(f's_sleep {QPFSLEEP}')
    npl = [0]
    def pthrottle():
        if PWIN and npl[0] >= PWIN: a(f's_waitcnt vmcnt({PWIN-1})')
        npl[0] += 1
    if XDMA:
        a('v_lshrrev_b32 v2, 4, v0\nv_and_b32 v3, 15, v0\nv_xor_b32 v4, v2, v3\nv_lshlrev_b32 v5, 10, v2')
        for t in range(4):
            a(f'v_xor_b32 v6, {4*t}, v4\nv_lshlrev_b32 v6, 4, v6\nv_add_u32 v{248+t}, v5, v6')
        a(f's_lshl_b32 s52, s{sGQ}, 15\ns_lshl_b32 s{sT2}, s{sPW}, 8\ns_add_u32 s52, s52, s{sT2}')
        a(f's_lshl_b32 s53, s{sPW}, 15\ns_add_u32 s53, s53, 24576')
        for t in range(8):
            a(f's_add_u32 m0, s53, {1024*t}\ns_add_u32 s{sT}, s52, {4096*t}')
            a(f'buffer_load_dwordx4 v{248 + (t & 3)}, s[{SRD_X}:{SRD_X+3}], s{sT} offen {xflags} lds')
    else:
        for sg in range(4):
            for rho in range(2):
                r = XF + (rho*4 + sg)*4
                a(f's_lshl_b32 s{sT}, s{48+sg}, 6\ns_add_u32 s{sT}, s{sT}, s{52+rho}')
                pthrottle()
                if not x_noload: a(f'buffer_load_dwordx4 v[{r}:{r+3}], v{vX}, s[{SRD_X}:{SRD_X+3}], s{sT} offen {xflags}')
    prep = []
    class _L:
        def __call__(self, t): prep.extend(x.strip() for x in t.split('\n') if x.strip())
    b = _L()
    tA, tB = 92, 93
    if XDMA:
        b('v_and_b32 v2, 15, v0\nv_lshrrev_b32 v3, 4, v0')
        b('v_and_b32 v4, 3, v2\nv_xor_b32 v4, v4, v3\nv_lshlrev_b32 v4, 4, v4\nv_lshlrev_b32 v5, 8, v2\nv_add_u32 v4, v4, v5')
        b(f's_and_b32 s{tA}, s{sPW}, 1\ns_lshl_b32 s{tA}, s{tA}, 12\ns_add_u32 s{tA}, s{tA}, s53\nv_add_u32 v4, s{tA}, v4')
        b('v_lshrrev_b32 v5, 2, v2')
        for sg in range(4):
            b(f'v_xor_b32 v6, s{48+sg}, v5\nv_lshlrev_b32 v6, 6, v6\nv_add_u32 v{248+sg}, v4, v6')
    def region(dst, sTile, sK):
        b(f's_mul_i32 s{dst}, s{sTile}, 3\ns_add_u32 s{dst}, s{dst}, s{sK}')
        b(f's_lshl_b32 s{tA}, s{dst}, 15\ns_add_u32 s{tA}, s{tA}, 24576')
        b(f's_sub_u32 s{tB}, s{dst}, 4\ns_lshl_b32 s{tB}, s{tB}, 13\ns_add_u32 s{tB}, s{tB}, 131072')
        b(f's_cmp_lt_u32 s{dst}, 4\ns_cselect_b32 s{dst}, s{tA}, s{tB}')
    vS1, vS0, vRd = 52, 53, [54, 55, 254]
    vPay, vTag, vLoc = 9, 255, [1, 2, 3, 4]
    b(f's_sub_u32 s54, s{sPW}, 1\ns_cmp_lt_u32 s{sPW}, 2\ns_cselect_b32 s54, 0, s54')
    b(f's_and_b32 s55, s{sPW}, 1')
    b(f's_xor_b32 s56, s55, 1')
    b('v_lshlrev_b32 v10, 4, v0')
    region(57, 56, 54); b(f'v_add_u32 v{vS1}, s57, v10')
    region(57, 55, 54); b(f'v_add_u32 v{vS0}, s57, v10')
    for k in range(3):
        b(f's_mov_b32 s58, {k}')
        region(57, 55, 58)
        b(f'v_add_u32 v{vRd[k]}, s57, v10')
    b('v_and_b32 v5, 15, v0\nv_lshrrev_b32 v6, 4, v0')
    b('v_lshrrev_b32 v10, 1, v6\nv_lshlrev_b32 v10, 17, v10\nv_and_b32 v11, 1, v6')
    b(f'v_lshlrev_b32 v{vPay}, 10, v11\nv_add_u32 v{vPay}, v{vPay}, v10\nv_lshlrev_b32 v7, 4, v5\nv_add_u32 v{vPay}, v{vPay}, v7')
    b(f'v_lshlrev_b32 v{vTag}, 5, v11\nv_add_u32 v{vTag}, v{vTag}, v10\nv_lshlrev_b32 v7, 3, v5\nv_add_u32 v{vTag}, v{vTag}, v7\nv_add_u32 v{vTag}, 8192, v{vTag}')
    b(f's_lshl_b32 s{tA}, s{sHQ}, 11\nv_add_u32 v{vPay}, s{tA}, v{vPay}\ns_lshl_b32 s{tA}, s{sHQ}, 6\nv_add_u32 v{vTag}, s{tA}, v{vTag}')
    b(f's_lshl_b32 s{tA}, s{sGQ}, 2\ns_lshl_b32 s{tB}, s55, 1\ns_add_u32 s{tA}, s{tA}, s{tB}\ns_lshl_b32 s{tA}, s{tA}, 3\ns_add_u32 s{tA}, s{tA}, s{sH}\ns_lshl_b32 s{tA}, s{tA}, 14')
    b(f's_add_u32 s58, s{sWs}, s{tA}\ns_addc_u32 s59, s{sWs+1}, 0')
    if WS_QX: b(f's_add_u32 s58, s58, {WS_QX}\ns_addc_u32 s59, s59, 0')
    b(f's_lshr_b32 s{tA}, s{sHQ}, 1\ns_and_b32 s{tB}, s{sHQ}, 1')
    b(f's_cmp_eq_u32 s{tB}, 0\ns_cselect_b32 s88, -1, 0\ns_cselect_b32 s89, 0, -1')
    b(f's_cmp_eq_u32 s{tA}, s55\ns_cselect_b32 s88, s88, 0\ns_cselect_b32 s89, s89, 0\ns_not_b64 s[90:91], s[88:89]')
    b(f's_lshl_b32 s{tA}, s{sHQ}, 3\nv_lshlrev_b32 v10, 2, v11\nv_add_u32 v10, s{tA}, v10')
    for r in range(4):
        b(f'v_add_u32 v7, {r}, v10\nv_and_b32 v11, 15, v7\nv_xor_b32 v11, v11, v5\nv_lshlrev_b32 v11, 4, v11\nv_lshlrev_b32 v7, 8, v7\nv_add_u32 v11, v11, v7\nv_add_u32 v{vLoc[r]}, {QBUF}, v11')
    b(f'v_mov_b32 v6, {CNT}\nv_mov_b32 v7, 1')
    chunks = []; cur = []
    for t in prep:
        cur.append(t)
        if not (t.startswith(('s_cmp', 's_add_u32 s58')) or (t.startswith('s_cselect') and False)):
            chunks.append(cur); cur = []
    assert not cur
    merged = []
    for c in chunks:
        if merged and c[0].startswith(('s_cselect', 's_addc')): merged[-1].extend(c)
        else: merged.append(c)
    nld = 0; PSTART = 6
    per = -(-len(merged) // (32 - PSTART))
    for sg in range(4):
        a(f's_lshl_b32 s{sT2}, s{sPW}, 2\ns_add_u32 s{sT2}, s{sT2}, s{48+sg}\ns_lshl_b32 s{sT2}, s{sT2}, 18')
        for j in range(8):
            r = LAND + sg*32 + 4*j
            a(f's_add_u32 s{sT}, s{sT2}, {j*8192}')
            pthrottle()
            if not x_noload: a(f'buffer_load_dwordx4 v[{r}:{r+3}], v{vW}, s[{SRD_W}:{SRD_W+3}], s{sT} offen {wqflags}')
            nld += 1
            if nld > PSTART:
                for c in merged[:per]: a.ext(c)
                merged = merged[per:]
    for c in merged: a.ext(c)
    if AGATE is not None:
        a(f'v_mov_b32 v6, {CNT}\nv_mov_b32 v7, 1'); lds_inc(24, 6, 7)
    if stamps and not redst: a('s_memrealtime s[80:81]')
    if XDMA:
        a('s_waitcnt vmcnt(32)')
        for sg in range(4):
            r0 = XF + sg*4; r1 = XF + (4 + sg)*4
            a(f'ds_read_b128 v[{r0}:{r0+3}], v{248+sg}')
            a(f'v_xor_b32 v5, 4096, v{248+sg}\nds_read_b128 v[{r1}:{r1+3}], v5')
        a('s_waitcnt lgkmcnt(0)')
        lds_inc(28, 6, 7)
    for sg in range(4):
        a(f's_waitcnt vmcnt({24 - 8*sg})')
        if sg == 3 and XDMA:
            lds_spin(28, 4, 6, 5)
        a.ext(mm_block(LAND + sg*32, TB, [XF + sg*4, XF + (4+sg)*4], [ACC, ACC + 32], first=(sg == 0)))
    if stamps: a('s_memrealtime s[82:83]')
    lown = lab('owner')
    a(f's_cmp_lt_u32 s{sPW}, 2\ns_cbranch_scc1 {lown}')
    a('s_nop 5')
    for e in range(8):
        r = ACC + 4*e
        a(f'ds_write_b128 v{vS0}, v[{r}:{r+3}] offset:{e*1024}')
    a(f'{lown}:')
    a('s_nop 5')
    for e in range(8):
        r = ACC + 32 + 4*e
        a(f'ds_write_b128 v{vS1}, v[{r}:{r+3}] offset:{e*1024}')
    a(f's_waitcnt lgkmcnt(0)')
    lds_inc(0, 6, 7)
    if redst: a('s_memrealtime s[80:81]')
    lqwait = lab('qwait')
    a(f's_cmp_ge_u32 s{sPW}, 2\ns_cbranch_scc1 {lqwait}')
    RD = LAND
    lds_spin(0, 4, 6, 5)
    if redst: a('s_memrealtime s[68:69]')
    for k in range(3):
        for e in range(8):
            r = RD + k*32 + 4*e
            a(f'ds_read_b128 v[{r}:{r+3}], v{vRd[k]} offset:{e*1024}')
    pk = lambda d, x, y: f'v_pk_add_f32 v[{d}:{d+1}], v[{x}:{x+1}], v[{y}:{y+1}]'
    for k in range(3):
        for hh in range(2):
            left = 24 - (k*8 + hh*4 + 4)
            a(f's_waitcnt lgkmcnt({min(15, left)})')
            if left == 0: lds_inc(4, 6, 7)
            for i in range(hh*16, hh*16 + 16, 2):
                a(pk(ACC + i, ACC + i, RD + k*32 + i) if PKADD else f'v_add_f32 v{ACC+i}, v{ACC+i}, v{RD+k*32+i}\nv_add_f32 v{ACC+i+1}, v{ACC+i+1}, v{RD+k*32+i+1}')
    if redst: a('s_memrealtime s[70:71]')
    X = RD + 16
    for r in range(4):
        d = RD + 4*r
        for p in range(4):
            a(f'v_cvt_pk_bf16_f32 v{d+p}, v{ACC+4*(2*p)+r}, v{ACC+4*(2*p+1)+r}')
    a('s_mov_b64 exec, s[90:91]')
    if not x_nost:
        for r in range(4):
            a(f'global_store_dwordx4 v{vPay}, v[{RD+4*r}:{RD+4*r+3}], s[58:59] offset:{256*r} {qst}')
    a('s_mov_b64 exec, -1')
    for r in range(4):
        d = RD + 4*r
        a(f'v_xor_b32 v{X+r}, v{d}, v{d+1}\nv_xor_b32 v{X+4+r}, v{d+2}, v{d+3}')
    for r in range(4): a(f'v_xor_b32 v{X+r}, v{X+r}, v{X+4+r}')
    for step in (8, 4, 2, 1):
        for r in range(4): a(f'v_xor_b32_dpp v{X+r}, v{X+r}, v{X+r} row_ror:{step} row_mask:0xf bank_mask:0xf')
    for r in range(1, 4):
        m = 0x00010001 << r
        a(f's_mov_b32 s56, {hex(m)}\ns_mov_b32 s57, {hex(m)}\nv_cndmask_b32 v{X}, v{X}, v{X+r}, s[56:57]')
    a(f'v_mov_b32 v{X+8}, s62\nv_xor_b32 v{X+9}, s61, v{X}')
    a('s_mov_b32 s56, 0x000f000f\ns_mov_b32 s57, 0x000f000f\ns_and_b64 exec, s[56:57], s[90:91]')
    if not x_nost: a(f'global_store_dwordx2 v{vTag}, v[{X+8}:{X+9}], s[58:59] {qst}')
    a('s_mov_b64 exec, -1')
    lnl = lab('nolocal')
    a(f's_cmp_eq_u64 s[88:89], 0\ns_cbranch_scc1 {lnl}')
    lds_spin(4, 2, 6, 5)
    a('s_mov_b64 exec, s[88:89]')
    for r in range(4): a(f'ds_write_b128 v{vLoc[r]}, v[{RD+4*r}:{RD+4*r+3}]')
    a('s_mov_b64 exec, -1')
    if debug:
        a(f's_lshl_b32 s{sT}, s2, 13\ns_add_u32 s{sT}, s{sT}, {WS_QDUMP}')
        a(f'v_lshrrev_b32 v10, 4, v0\nv_and_b32 v10, 1, v10\nv_lshlrev_b32 v10, 2, v10\ns_lshl_b32 s{sT2}, s{sHQ}, 3\nv_add_u32 v12, s{sT2}, v10')
        a('v_and_b32 v5, 15, v0\ns_mov_b64 exec, s[88:89]')
        for r in range(4):
            a(f'v_add_u32 v11, {r}, v12\nv_lshlrev_b32 v11, 8, v11\nv_lshlrev_b32 v10, 4, v5\nv_add_u32 v11, v11, v10\nv_add_u32 v11, s{sT}, v11')
            a(f'global_store_dwordx4 v11, v[{RD+4*r}:{RD+4*r+3}], s[{sWs}:{sWs+1}]')
        a('s_mov_b64 exec, -1')
    a(f'{lnl}:')
    if stamps: a('s_memrealtime s[86:87]')
    if QACK:
        a('s_waitcnt vmcnt(0)')
        a(f'v_mov_b32 v6, {CNT}\nv_mov_b32 v7, 1')
        lds_inc(8, 6, 7)
    a(f'{lqwait}:')
    if stamps: a('s_memrealtime s[84:85]')
    lq = lab('qpoll'); lqd = lab('qdone'); lqs = lab('qskip')
    a(f's_cmp_eq_u32 s{sPW}, s{sHQ}\ns_cbranch_scc1 {lqs}')
    a(f's_lshl_b32 s{sT}, s2, 14')
    a(f's_add_u32 s58, s{sWs}, s{sT}\ns_addc_u32 s59, s{sWs+1}, 0')
    if WS_QX: a(f's_add_u32 s58, s58, {WS_QX}\ns_addc_u32 s59, s59, 0')
    a(f's_lshl_b32 s{sT}, s{sPW}, 11\nv_lshlrev_b32 v1, 4, v0\nv_add_u32 v1, s{sT}, v1')
    a(f'v_lshrrev_b32 v2, 4, v0\nv_and_b32 v3, 15, v0\ns_lshl_b32 s{sT}, s{sPW}, 3\nv_add_u32 v2, s{sT}, v2')
    a('v_lshlrev_b32 v4, 3, v2\nv_add_u32 v4, 8192, v4')
    for u in range(2):
        a(f'v_add_u32 v5, {4*u}, v2\nv_and_b32 v6, 15, v5\nv_xor_b32 v6, v6, v3\nv_lshlrev_b32 v6, 4, v6\nv_lshlrev_b32 v5, 8, v5\nv_add_u32 v5, v5, v6\nv_add_u32 v{32+u}, {QBUF}, v5')
    a(f'v_mov_b32 v6, {CNT}')
    if QACK:
        lds_spin(8, 2, 6, 5)
        if QPRE: a(f's_sleep {QPRE}')
    else:
        lds_spin(4, 2, 6, 5)
        if QPRE: a(f's_sleep {QPRE}')
    if QGATE is not None: lds_spin(24, 4, 6, 5)
    a(f's_mov_b32 s57, {SPIN_MAX}')
    if x_nopoll: a(f's_branch {lqd}')
    a(f'{lq}:')
    for u in range(2): a(f'global_load_dwordx4 v[{12+4*u}:{15+4*u}], v1, s[58:59] offset:{1024*u} {qld}')
    for u in range(2): a(f'global_load_dwordx2 v[{20+2*u}:{21+2*u}], v4, s[58:59] offset:{32*u} {qld}')
    a('s_waitcnt vmcnt(0)')
    for u in range(2): a(f'v_xor_b32 v{24+u}, v{12+4*u}, v{13+4*u}\nv_xor_b32 v{26+u}, v{14+4*u}, v{15+4*u}')
    for u in range(2): a(f'v_xor_b32 v{24+u}, v{24+u}, v{26+u}')
    for u in range(2): a(f'v_subrev_u32 v{26+u}, s60, v{20+2*u}\nv_lshrrev_b32 v{26+u}, 12, v{26+u}')
    for step in (8, 4, 2, 1):
        for u in range(2): a(f'v_xor_b32_dpp v{24+u}, v{24+u}, v{24+u} row_ror:{step} row_mask:0xf bank_mask:0xf')
        a('s_nop 0')
    for u in range(2): a(f'v_xor_b32 v{24+u}, v{24+u}, v{20+2*u}\nv_xor_b32 v{24+u}, v{24+u}, v{21+2*u}\nv_xor_b32 v{24+u}, {hex(TAGK)}, v{24+u}')
    a('v_or3_b32 v28, v24, v25, v26\nv_or_b32 v28, v28, v27')
    a(f'v_cmp_ne_u32 vcc, 0, v28\ns_cbranch_vccz {lqd}')
    a(f's_sub_u32 s57, s57, 1\ns_cmp_eq_u32 s57, 0\ns_cbranch_scc1 {lqd}\ns_sleep {QSLEEP}\ns_branch {lq}')
    a(f'{lqd}:')
    for u in range(2): a(f'ds_write_b128 v{32+u}, v[{12+4*u}:{15+4*u}]')
    if debug:
        a(f's_lshl_b32 s{sT}, s2, 13\ns_add_u32 s{sT}, s{sT}, {WS_QDUMP}\nv_add_u32 v1, s{sT}, v1')
        for u in range(2): a(f'global_store_dwordx4 v1, v[{12+4*u}:{15+4*u}], s[{sWs}:{sWs+1}] offset:{1024*u}')
    a(f'{lqs}:')
    a('s_waitcnt lgkmcnt(0)')
    if x_noq: a('L_noq:')
    if pprio: a('s_setprio 0')
    stamp(1)
    a('s_barrier')
    if not redst: stamp(2)
    for _ in range(PLDELAY): a('s_sleep 32')
    HOLD = 56; PL = 12
    a(f's_lshl_b32 s{sT}, s{sH}, 19')
    a(f's_add_u32 s48, s{sWo}, s{sT}\ns_addc_u32 s49, s{sWo+1}, 0\ns_and_b32 s49, s49, 0xffff\ns_mov_b32 s50, 524288\ns_mov_b32 s51, 0x20000')
    a(f's_lshl_b32 s{sT2}, s{sB}, 4\ns_lshl_b32 s52, s{sPW}, 2\ns_add_u32 s{sT2}, s{sT2}, s52\ns_lshl_b32 s{sT2}, s{sT2}, 10')
    a('v_lshlrev_b32 v1, 4, v0')
    if latewarm is not None:
        l2 = lab('wdone')
        a(f's_cmp_ge_u32 s{sB}, {2*NHOLD}\ns_cbranch_scc1 {l2}')
        for i in range(4): a(f'buffer_load_dwordx4 v[{PL+4*i}:{PL+4*i+3}], v1, s[48:51], s{sT2} offen offset:{i*1024} nt')
        a(f'{l2}:')
    elif wosplit:
        l1 = lab('wdef'); l2 = lab('wdone')
        a(f's_cmp_ge_u32 s{sB}, {2*NHOLD}\ns_cbranch_scc1 {l1}')
        for i in range(4): a(f'buffer_load_dwordx4 v[{PL+4*i}:{PL+4*i+3}], v1, s[48:51], s{sT2} offen offset:{i*1024} nt')
        a(f's_branch {l2}\n{l1}:')
        for i in range(4): a(f'buffer_load_dwordx4 v[{PL+4*i}:{PL+4*i+3}], v1, s[48:51], s{sT2} offen offset:{i*1024}')
        a(f'{l2}:')
    else:
        for i in range(4):
            a(f'buffer_load_dwordx4 v[{PL+4*i}:{PL+4*i+3}], v1, s[48:51], s{sT2} offen offset:{i*1024} {woflags if warmflags is None else warmflags}')
    a('s_waitcnt vmcnt(0)')
    for s in range(NHOLD):
        for j, x in enumerate(wo_load_list(PL, s)):
            if plflags is not None: x = [y + ' ' + plflags if y.startswith('buffer_load') else y for y in x]
            a.ext(x)
            if (j + 1) % PTH == 0: a('s_waitcnt vmcnt(0)')
        a('s_waitcnt vmcnt(0)')
        for e in range(8):
            m = e >> 1; sel = SEL_LO + (e & 1)
            for p in range(4):
                a(f'v_perm_b32 v{HOLD+(s>>1)*64+8*e+4*(s&1)+p}, v{PL+4*(2*p+1)+m}, v{PL+4*(2*p)+m}, s{sel}')
    if latewarm is not None:
        a(f'v_mov_b32 v6, {CNT}')
        lw = lab('wwait')
        a(f'{lw}:\ns_sleep 8\nds_read_b32 v5, v6 offset:20\ns_waitcnt lgkmcnt(0)\nv_readfirstlane_b32 s{sT}, v5\ns_cmp_ge_u32 s{sT}, 1\ns_cbranch_scc0 {lw}')
        a('v_lshlrev_b32 v1, 4, v0')
        a(f's_mul_i32 s52, s{sB}, 10\ns_mul_i32 s53, s{sPW}, 3')
        for i in range(3):
            a(f's_add_u32 s54, s53, {i}\ns_add_u32 s{sT}, s52, s54\ns_add_u32 s{sT}, s{sT}, {32*NHOLD}\ns_lshl_b32 s{sT}, s{sT}, 10\ns_cmp_lt_u32 s54, 10\ns_cselect_b32 s{sT}, s{sT}, 0x400000')
            a(f'buffer_load_dwordx4 v[{PL+4*i}:{PL+4*i+3}], v1, s[48:51], s{sT} offen {lateflags}')
        a('s_waitcnt vmcnt(0)')
    a(f'v_and_b32 v1, 8, v0\nv_mov_b32 v2, 0x4444\nv_mov_b32 v3, 0xeeee\nv_cmp_ne_u32 vcc, 0, v1\ns_nop 1\nv_cndmask_b32 v{vIDX}, v2, v3, vcc')
    a.ext(merge_addr(hA * 16384))
    offA = hA * 16384
    a(f's_mov_b32 s{sC}, {hex(f2u(C_SCALE))}')
    if not redst: stamp(3)
    a('s_barrier')
    if tailst: stamp(8)
    merge_body(zero=12)
    a('s_waitcnt lgkmcnt(0)')
    if tailst: stamp(9)
    a('s_barrier')
    stamp(4)
    pACC = 12; pAF = [44, 48]
    if debug: a('s_waitcnt vmcnt(0)')
    a(f'ds_read_b128 v[{pAF[0]}:{pAF[0]+3}], v{vACT}')
    a(f'ds_read_b128 v[{pAF[1]}:{pAF[1]+3}], v{vACT} offset:64')
    a('s_waitcnt lgkmcnt(1)')
    for e in range(8): a(smf(pACC + 4*e, pAF[0], HOLD + 8*e))
    for k in range(2):
        for x in wo_load_list(HOLD + k*32, 14 + k): a.ext(x)
    a(f'ds_read_b128 v[{pAF[0]}:{pAF[0]+3}], v{vACT} offset:128')
    a('s_waitcnt lgkmcnt(1)')
    for e in range(8): a(smf(pACC + 4*e, pAF[1], HOLD + 64 + 8*e))
    a(f'ds_read_b128 v[{pAF[1]}:{pAF[1]+3}], v{vACT} offset:{64*7}')
    a('s_waitcnt lgkmcnt(1)')
    for e in range(8): a(smf(pACC + 4*e, pAF[0], HOLD + 128 + 8*e))
    a('s_waitcnt vmcnt(0) lgkmcnt(0)')
    a.ext(mm_pair(HOLD, HOLD + 32, [HOLD + 64, HOLD + 72], pAF[1], pACC))
    a('v_and_b32 v2, 15, v0\nv_lshrrev_b32 v3, 4, v0\nv_and_b32 v3, 1, v3\nv_lshrrev_b32 v5, 5, v0')
    a('v_lshrrev_b32 v4, 3, v2\nv_lshlrev_b32 v4, 14, v4\nv_lshlrev_b32 v6, 9, v3\nv_add_u32 v4, v4, v6\nv_lshlrev_b32 v6, 8, v5\nv_add_u32 v4, v4, v6\nv_and_b32 v6, 7, v2\nv_lshlrev_b32 v6, 4, v6\nv_add_u32 v4, v4, v6')
    a(f's_lshl_b32 s{sT}, s{sB}, 3\ns_lshl_b32 s{sT2}, s{sNW}, 1\ns_add_u32 s{sT}, s{sT}, s{sT2}\ns_lshl_b32 s{sT}, s{sT}, 14\ns_lshl_b32 s{sT2}, s{sH}, 11\ns_add_u32 s{sT}, s{sT}, s{sT2}\ns_add_u32 s{sT}, s{sT}, {WS_MB}')
    a(f's_add_u32 s58, s{sWs}, s{sT}\ns_addc_u32 s59, s{sWs+1}, 0')
    a(f's_lshl_b32 s{sT}, s{sNW}, 15\nv_lshlrev_b32 v1, 4, v0\nv_add_u32 v1, s{sT}, v1')
    RA = 120; SM = 152; GR = 184; HH = 200
    for g in range(4): a(f'v_mov_b32 v{GR+4*g+3}, s62')
    a('v_lshrrev_b32 v8, 4, v0\nv_and_b32 v8, 1, v8\nv_lshrrev_b32 v9, 3, v0\nv_and_b32 v9, 1, v9\nv_and_b32 v10, 7, v0\nv_lshrrev_b32 v7, 5, v0')
    a('v_lshlrev_b32 v11, 10, v8\nv_lshlrev_b32 v6, 7, v9\nv_add_u32 v11, v11, v6\nv_lshlrev_b32 v6, 4, v10\nv_add_u32 v11, v11, v6\nv_lshlrev_b32 v6, 11, v7\nv_add_u32 v11, v11, v6')
    for t in range(1, 4): a(f'v_add_u32 v{208+t}, {4096*t}, v11')
    a(f's_lshl_b32 s{sT}, s2, 14\ns_lshl_b32 s{sT2}, s{sNW}, 8\ns_add_u32 s{sT}, s{sT}, s{sT2}\ns_add_u32 s{sT}, s{sT}, {WS_MB}')
    a(f's_add_u32 s56, s{sWs}, s{sT}\ns_addc_u32 s57, s{sWs+1}, 0')
    a(f's_lshl_b32 s{sT}, s{sB}, 3\ns_lshl_b32 s{sT2}, s{sNW}, 1\ns_add_u32 s{sT}, s{sT}, s{sT2}\ns_lshl_b32 s{sT}, s{sT}, 10\ns_lshl_b32 s{sT2}, s{sH}, 7\ns_add_u32 s{sT}, s{sT}, s{sT2}')
    a(f'v_lshlrev_b32 v212, 10, v9\nv_lshlrev_b32 v6, 4, v10\nv_add_u32 v212, v212, v6\nv_lshlrev_b32 v6, 3, v8\nv_add_u32 v212, v212, v6\nv_add_u32 v212, s{sT}, v212')
    a('s_mov_b32 s54, 0xffff0000')
    if tailst: stamp(10)
    a('s_barrier')
    stamp(5)
    for e in range(8): a(f'ds_read_b128 v[{RA+4*e}:{RA+4*e+3}], v1 offset:{offA + e*1024}')
    for hfw, wait in ((0, 4), (1, 0)):
        a(f's_waitcnt lgkmcnt({wait})')
        for e in range(4*hfw, 4*hfw + 4):
            for r in range(4):
                a(f'v_add_f32 v{SM+8*r+e}, v{pACC+4*e+r}, v{RA+4*e+r}')
        a('s_nop 0')
        for rs in range(2):
            for e in range(4*hfw, 4*hfw + 4):
                a(f'v_permlane32_swap_b32 v{SM+8*rs+e}, v{SM+8*(rs+2)+e}')
        for rs in range(2):
            for e in range(4*hfw, 4*hfw + 4):
                a(f'v_add_f32 v{SM+8*rs+e}, v{SM+8*rs+e}, v{SM+8*(rs+2)+e}')
        p = hfw
        for rs in range(2):
            g = GR + 4*(2*rs + p)
            for x in range(2):
                a(f'v_cvt_pk_bf16_f32 v{g+x}, v{SM+8*rs+4*p+2*x}, v{SM+8*rs+4*p+2*x+1}')
    for rs in range(2):
        for p in range(2):
            g = GR + 4*(2*rs + p)
            a.ext(make_granule(g))
            a(f'global_store_dwordx4 v4, v[{g}:{g+3}], s[58:59] offset:{p*1024 + rs*128} sc1')
    if tailst: stamp(11)
    a(f's_mov_b32 s55, {SPIN_MAX}')
    def final_out(gb):
        for t in range(4):
            g = gb + 4*t
            d = 28 if t == 0 else 32
            a(f'v_lshlrev_b32 v{d}, 16, v{g}\nv_and_b32 v{d+1}, s54, v{g}\nv_lshlrev_b32 v{d+2}, 16, v{g+1}\nv_and_b32 v{d+3}, s54, v{g+1}')
            if t:
                for k in range(4): a(f'v_add_f32 v{28+k}, v{28+k}, v{32+k}')
        for k in range(4): a(f'v_mov_b32 v{32+k}, v{28+k}')
        a('s_nop 1')
        for k in range(4): a(f'v_permlane32_swap_b32 v{28+k}, v{32+k}')
        a('s_nop 0')
        for k in range(4): a(f'v_add_f32 v{28+k}, v{28+k}, v{32+k}')
        a('v_cvt_pk_bf16_f32 v28, v28, v29\nv_cvt_pk_bf16_f32 v29, v30, v31')
        a('s_mov_b32 exec_lo, -1\ns_mov_b32 exec_hi, 0')
        a(f'global_store_dwordx2 v212, v[28:29], s[{sOut}:{sOut+1}] {outfl}')
        a('s_mov_b64 exec, -1')
    if RPRE: a(f's_sleep {RPRE}')
    lp = lab('rpoll'); ld = lab('rdone')
    def rissue(base):
        for t in range(4):
            va = 11 if t == 0 else 208 + t
            a(f'global_load_dwordx4 v[{base+4*t}:{base+3+4*t}], v{va}, s[56:57] sc1')
    if RPIPE:
        S1 = 216; lb = lab('rgotb')
        rissue(12)
        a(f's_sleep {RPIPE}')
        rissue(S1)
        a(f'{lp}:')
        a('s_waitcnt vmcnt(4)')
        for t in range(4): a.ext(check_granule(12+4*t, 44, 45, t == 0))
        a(f'v_cmp_ne_u32 vcc, 0, v44\ns_cbranch_vccz {ld}')
        rissue(12)
        a('s_waitcnt vmcnt(4)')
        for t in range(4): a.ext(check_granule(S1+4*t, 44, 45, t == 0))
        a(f'v_cmp_ne_u32 vcc, 0, v44\ns_cbranch_vccz {lb}')
        rissue(S1)
        a(f's_sub_u32 s55, s55, 1\ns_cmp_eq_u32 s55, 0\ns_cbranch_scc0 {lp}')
        a(f's_waitcnt vmcnt(0)\ns_branch {ld}')
        a(f'{lb}:')
        final_out(S1)
        a('s_branch L_fin')
    else:
        a(f'{lp}:')
        rissue(12)
        a('s_waitcnt vmcnt(0)')
        for t in range(4): a.ext(check_granule(12+4*t, 44, 45, t == 0))
        a(f'v_cmp_ne_u32 vcc, 0, v44\ns_cbranch_vccz {ld}')
        a(f's_sub_u32 s55, s55, 1\ns_cmp_eq_u32 s55, 0\ns_cbranch_scc1 {ld}\n' + (f's_sleep {RSLEEP}\n' if RSLEEP else '') + f's_branch {lp}')
    a(f'{ld}:')
    if tailst: a(f's_sub_u32 s78, {SPIN_MAX}, s55')
    final_out(12)
    a('L_fin:')
    if lite and not stamps:
        stamp(6)
        a('s_waitcnt lgkmcnt(0)')
        a(f's_lshl_b32 s{sT}, s2, 3\ns_add_u32 s{sT}, s{sT}, s{sWave}\ns_lshl_b32 s{sT}, s{sT}, 6\ns_add_u32 s{sT}, s{sT}, {WS_STAMP}\nv_mov_b32 v3, s{sT}')
        a('s_mov_b32 exec_lo, 1\ns_mov_b32 exec_hi, 0\nv_mov_b32 v4, s64\nv_mov_b32 v5, s76')
        a(f'global_store_dwordx2 v3, v[4:5], s[{sWs}:{sWs+1}]')
    if stamps:
        stamp(6)
        a('L_stamps:')
        a('s_waitcnt lgkmcnt(0)')
        a(f's_lshl_b32 s{sT}, s2, 3\ns_add_u32 s{sT}, s{sT}, s{sWave}\ns_lshl_b32 s{sT}, s{sT}, 6\ns_add_u32 s{sT}, s{sT}, {WS_STAMP}\nv_mov_b32 v3, s{sT}')
        a('s_mov_b32 exec_lo, 1\ns_mov_b32 exec_hi, 0')
        for q in range(3):
            regs = [64+2*(4*q+i) for i in range(4)]
            a('\n'.join(f'v_mov_b32 v{4+i}, s{regs[i]}' for i in range(4)))
            a(f'global_store_dwordx4 v3, v[4:7], s[{sWs}:{sWs+1}] offset:{16*q}\ns_nop 1')
    a('L_end:\ns_endpgm')
    a.raw('.section .rodata,"a"\n.p2align 6')
    a.raw(f'.amdhsa_kernel {K}')
    a.raw('  .amdhsa_next_free_vgpr 256\n  .amdhsa_next_free_sgpr 96\n  .amdhsa_accum_offset 256')
    a.raw('  .amdhsa_group_segment_fixed_size 0\n  .amdhsa_kernarg_size 64\n  .amdhsa_user_sgpr_count 2\n  .amdhsa_user_sgpr_kernarg_segment_ptr 1\n  .amdhsa_system_sgpr_workgroup_id_x 1')
    a.raw('.end_amdhsa_kernel')
    return a.text()

if __name__ == '__main__':
    kw = json.loads(sys.argv[2]) if len(sys.argv) > 2 else {}
    open(sys.argv[1], 'w').write(gen(**kw))
```

```python
import sys, json, struct
K = 'standalone__gqa_block_cached__sampling_kernel'

QBUF = 131072
ACT = 139264
ACT_STRIDE = 544
ML = 147968
CNT = 148992
LDS_BYTES = 149056
WS_QX = 0
WS_MB = 0x400000
TAGK = 0x9E3779B9
WS_STAMP = 0xD00000
WS_QDUMP = 0x1000000
WS_ODUMP = 0x2000000
SPIN_MAX = 200000

HEADER = """
GQA decode attention with fused Q- and O-projections, one launch.   out = softmax(x Wq K^T / sqrt(128)) V Wo
Kernarg (ptrs only, s[0:1]): 0 x(32,8,512) 8 k(32,8,2048,128) 16 v 24 wq(512,4096) 32 wo(4096,512) 40 out 48 debug 56 ws   (all bf16)
Workgroup = (batch b = id>>3, kv head = id&7), 8 waves:
  waves 0-3 ("A"): stream their quarter of K/V through a private 32 KiB LDS ring with LDS-DMA (nt, at most W loads in flight),
                   S^T = K Q^T and O^T += V^T P^T on 32x32x16 MFMAs, online softmax with the true running max, no barriers in the loop.
  waves 4-7 ("P"): Q projection for 4 batches x 1 head (K split over the waves, reduced through LDS), q rows handed to the 3 partner
                   workgroups through ws; afterwards they preload / pre-transpose their part of Wo into registers.
Tail: merge the 4 partial (m, l, O) through LDS, O projection with sparse MFMAs (rows 0-7 even k pairs, rows 8-15 odd k pairs of the same
      o rows, i.e. the exact dense product), bf16 partial results of the 8 kv heads exchanged through ws and summed in fp32.
Hand-offs through ws are self-validating: every row / granule carries an XOR check word and the producer's kernel-entry clock value; a
consumer accepts it only if the check matches and the clock value lies within +-20 us of its own entry time (older launches are >40 us away).
"""

C_SCALE = 0.08838834764831845 * 1.4426950408889634
def f2u(f): return struct.unpack('<I', struct.pack('<f', f))[0]

class Asm:
    def __init__(self): self.L = []
    def __call__(self, s):
        for line in s.split('\n'):
            line = line.strip()
            if line: self.L.append(('  ' + line) if not line.endswith(':') else line)
    def ext(self, lst):
        for s in lst: self(s)
    def raw(self, s): self.L.append(s)
    def text(self): return '\n'.join(self.L) + '\n'

def interleave(code, blocks, start=0, end=None):
    if end is None: end = len(code)
    n = len(blocks)
    out = list(code[:start])
    span = end - start
    pos = [start + (span * (i + 1)) // (n + 1) for i in range(n)] if n else []
    bi = 0
    for i in range(start, end):
        while bi < n and pos[bi] == i:
            out.extend(blocks[bi]()); bi += 1
        out.append(code[i])
    while bi < n:
        out.extend(blocks[bi]()); bi += 1
    out.extend(code[end:])
    return out

class VM:
    def __init__(self): self.ops = []; self.done = 0
    def add(self, tag, piece=False): self.ops.append((tag, piece))
    def _wait(self, idx):
        if idx < self.done: return []
        n = len(self.ops) - 1 - idx
        self.done = idx + 1
        assert n <= 63, n
        return [f's_waitcnt vmcnt({n})']
    def window(self, W):
        pcs = [i for i, (t, p) in enumerate(self.ops) if p]
        if len(pcs) < W: return []
        return self._wait(pcs[-W])
    def need(self, tag):
        idx = [i for i, (t, p) in enumerate(self.ops) if t == tag]
        assert idx, tag
        return self._wait(idx[-1])

sX, sKp, sVp, sWq, sWo, sOut, sDbg, sWs = 4, 6, 8, 10, 12, 14, 16, 18
sWave, sH, sB, sNW = 20, 21, 22, 23
sT, sT2, sC = 34, 38, 36
SEL_LO, SEL_HI = 40, 41

def gen(lite=False, W=5, W0=None, layout='p1', flags='nt', debug=False, wqflags='', woflags='', stamps=False, pprio=True,
        PTH=2, QSLEEP=4, RSLEEP=2, AGATE=None, stage=True, QPF=False, QPFSLEEP=0, x_noq=False, x_nopoll=False, x_nost=False, x_noload=False, PWIN=None, xflags='', aprio=False, PDELAY=0, qst='sc1', qld='sc1', tailst=False, LATE12=0, opst=False, P14AT=(3, 5), A13AT=1, x_xcontig=False, x_halfw=False, AFIRST=0, WHI=None, THR0=1350, DTH=455, warmflags=None, wosplit=False, plflags=None, latewarm=None, lateflags='nt', probe=False, PSLEEP=2, QGATE=None, XDMA=True, outfl='', AORD=0, oprio=0, M13=True, loopst=False, WR=16, startst=False, WRMODE=1, PLDELAY=0, WEND=None, WHICNT=None, QACK=True, QPRE=0, RPRE=0, PKADD=True, redst=False, hstage=False, HS_N=8, endmix=0, RPIPE=0, LALIGN=None, LPAD=0, PALIGN=None, WO67EARLY=False, PLFLAG=False, PUBFIRST=False):
    NHOLD = 6
    W0 = W0 or W
    a = Asm()
    uid = [0]
    def lab(n):
        uid[0] += 1
        return f'L_{n}_{uid[0]}'
    def lds_spin(off, target, vaddr, vtmp):
        l = lab('spin')
        a(f'{l}:')
        a(f'ds_read_b32 v{vtmp}, v{vaddr} offset:{off}\ns_waitcnt lgkmcnt(0)\nv_readfirstlane_b32 s{sT}, v{vtmp}\ns_cmp_ge_u32 s{sT}, {target}\ns_cbranch_scc0 {l}')
    def lds_inc(off, vaddr, vone):
        a(f's_mov_b32 exec_lo, 1\ns_mov_b32 exec_hi, 0\nds_add_u32 v{vaddr}, v{vone} offset:{off}\ns_mov_b64 exec, -1')
    def get_nonce():
        pass
    def make_granule(g):
        return [f'v_xor_b32 v{g+2}, v{g}, v{g+1}', f'v_xor_b32 v{g+2}, s61, v{g+2}']
    def check_granule(g, bad, tmp, first):
        o = [f'v_xor_b32 v{tmp}, v{g}, v{g+1}', f'v_xor_b32 v{tmp}, v{tmp}, v{g+2}', f'v_xor_b32 v{tmp}, v{tmp}, v{g+3}', f'v_xor_b32 v{tmp}, {hex(TAGK)}, v{tmp}',
             f'v_subrev_u32 v{tmp+1}, s60, v{g+3}', f'v_lshrrev_b32 v{tmp+1}, 12, v{tmp+1}']
        o.append(f'v_or_b32 v{bad}, v{tmp}, v{tmp+1}' if first else f'v_or3_b32 v{bad}, v{bad}, v{tmp}, v{tmp+1}')
        return o
    def stamp(i):
        if stamps: a(f's_memrealtime s[{64+2*i}:{65+2*i}]')
        elif lite and i in (0, 6): a(f's_memrealtime s[{64+2*i}:{65+2*i}]')

    vK = list(range(8, 16)); vV = list(range(16, 20)); vDK = list(range(20, 24)); vDV = 24
    vM, vL, vNM, vAl = 25, 26, 27, 28
    T = list(range(29, 36))
    P0, S0, Q0, KV0, O0, R0 = 36, 44, 60, 92, 124, 188
    vWO = 252; vACT = 253; vIDX = 255
    SRD_K, SRD_V, SRD_WO = 24, 28, 44
    sRing, sG, sCnt = 32, 33, 35
    if layout == 'p1':   Bu = lambda u: 4096 * u;  Cw = 1024
    elif layout == 'p2': Bu = lambda u: 8192 * (u >> 1) + 1024 * (u & 1); Cw = 2048
    elif layout == 'p4': Bu = lambda u: 16384 * (u >> 2) + 1024 * (u & 3); Cw = 4096
    elif layout == 'p8': Bu = lambda u: 1024 * u; Cw = 8192

    a.raw(f'; @launch grid=(256,1,1) block=(512,1,1) lds={LDS_BYTES}')
    for line in HEADER.strip('\n').split('\n'): a.raw(('; ' + line).rstrip())
    a.raw('.amdgcn_target "amdgcn-amd-amdhsa--gfx950"')
    a.raw('.text')
    a.raw(f'.globl {K}\n.p2align 8\n.type {K},@function\n{K}:')
    a('s_cmp_ge_u32 s2, 256\ns_cbranch_scc1 L_end')
    a('s_load_dwordx16 s[4:19], s[0:1], 0')
    a('s_memrealtime s[62:63]')
    stamp(0)
    a(f'v_mov_b32 v2, {CNT}\nv_mov_b32 v3, 0')
    for o in range(0, 32, 4): a(f'ds_write_b32 v2, v3 offset:{o}')
    a('v_lshrrev_b32 v1, 6, v0\nv_and_b32 v0, 63, v0')
    a(f'v_readfirstlane_b32 s{sWave}, v1')
    a(f's_and_b32 s{sH}, s2, 7\ns_lshr_b32 s{sB}, s2, 3')
    a(f's_mov_b32 s{SEL_LO}, 0x05040100\ns_mov_b32 s{SEL_HI}, 0x07060302')
    a(f'v_lshrrev_b32 v2, 4, v0\nv_and_b32 v3, 15, v0\nv_lshlrev_b32 v2, 13, v2\nv_lshlrev_b32 v4, 4, v3\nv_add_u32 v{vWO}, v2, v4')
    a(f'v_and_b32 v2, 15, v0\nv_mul_u32_u24 v2, {ACT_STRIDE}, v2\nv_lshrrev_b32 v3, 4, v0\nv_lshlrev_b32 v3, 4, v3\nv_add_u32 v2, v2, v3\nv_add_u32 v{vACT}, {ACT}, v2')
    a(f's_and_b32 s{sNW}, s{sWave}, 3')
    a('s_waitcnt lgkmcnt(0)')
    a(f's_sub_u32 s60, s62, 2048\ns_xor_b32 s61, s62, {hex(TAGK)}')
    a(f's_lshl_b32 s{sT}, s{sH}, 19\ns_lshl_b32 s{sT2}, s{sNW}, 8\ns_add_u32 s{sT}, s{sT}, s{sT2}')
    a(f's_add_u32 s{SRD_WO}, s{sWo}, s{sT}\ns_addc_u32 s{SRD_WO+1}, s{sWo+1}, 0\ns_and_b32 s{SRD_WO+1}, s{SRD_WO+1}, 0xffff')
    a(f's_sub_u32 s{SRD_WO+2}, 524288, s{sT2}\ns_mov_b32 s{SRD_WO+3}, 0x20000')
    if not AFIRST: a('s_barrier')
    a(f's_cmp_ge_u32 s{sWave}, 4\ns_cbranch_scc1 L_pwave')

    def perms(land, e, tb):
        m = e >> 1; sel = SEL_LO + (e & 1); t = tb[e % 2]
        return [f'v_perm_b32 v{t+p}, v{land+4*(2*p+1)+m}, v{land+4*(2*p)+m}, s{sel}' for p in range(4)]
    def mm_block(land, tb, afs, accs, first=False):
        o = perms(land, 0, tb) + perms(land, 1, tb)
        for e in range(8):
            t = tb[e % 2]
            if e == 7 and len(afs) == 1: o.append('s_nop 0')
            for af, acc in zip(afs, accs):
                c = '0' if first else f'v[{acc+4*e}:{acc+4*e+3}]'
                o.append(f'v_mfma_f32_16x16x32_bf16 v[{acc+4*e}:{acc+4*e+3}], v[{af}:{af+3}], v[{t}:{t+3}], {c}')
            if e + 2 < 8: o += perms(land, e + 2, tb)
        return o
    def smf(acc, af, bop):
        return f'v_smfmac_f32_16x16x64_bf16 v[{acc}:{acc+3}], v[{af}:{af+3}], v[{bop}:{bop+7}], v{vIDX}'
    def mm_pair(landA, landB, tb, af, acc):
        def pp(e):
            m = e >> 1; sel = SEL_LO + (e & 1); t = tb[e % 2]
            return ([f'v_perm_b32 v{t+p}, v{landA+4*(2*p+1)+m}, v{landA+4*(2*p)+m}, s{sel}' for p in range(4)] +
                    [f'v_perm_b32 v{t+4+p}, v{landB+4*(2*p+1)+m}, v{landB+4*(2*p)+m}, s{sel}' for p in range(4)])
        o = pp(0) + pp(1)
        for e in range(8):
            if e == 7: o.append('s_nop 0')
            o.append(smf(acc + 4*e, af, tb[e % 2]))
            if e + 2 < 8: o += pp(e + 2)
        return o
    def transpose_pair_inplace(b, t0, t1):
        o = []
        P_ = lambda d, hi_, lo_, x: f'v_perm_b32 v{d}, v{hi_}, v{lo_}, s{SEL_LO + x}'
        for blk in range(2):
            ix = lambda aa, bb, cc: b + 16*aa + 8*bb + 4*blk + cc
            for p in range(4):
                o += [P_(t0, ix(p,1,p), ix(p,0,p), 0), P_(ix(p,1,p), ix(p,1,p), ix(p,0,p), 1), f'v_mov_b32 v{ix(p,0,p)}, v{t0}']
            for p in range(4):
                for m in range(p + 1, 4):
                    o += [P_(t0, ix(p,1,m), ix(p,0,m), 0), P_(t1, ix(p,1,m), ix(p,0,m), 1),
                          P_(ix(p,0,m), ix(m,1,p), ix(m,0,p), 0), P_(ix(p,1,m), ix(m,1,p), ix(m,0,p), 1),
                          f'v_mov_b32 v{ix(m,0,p)}, v{t0}', f'v_mov_b32 v{ix(m,1,p)}, v{t1}']
        return o
    def transpose_inplace(b, t0, t1):
        o = []
        P_ = lambda d, hi_, lo_, x: f'v_perm_b32 v{d}, v{hi_}, v{lo_}, s{SEL_LO + x}'
        for p in range(4):
            o += [P_(t0, b+8*p+4+p, b+8*p+p, 0), P_(b+8*p+4+p, b+8*p+4+p, b+8*p+p, 1), f'v_mov_b32 v{b+8*p+p}, v{t0}']
        for p in range(4):
            for m in range(p + 1, 4):
                o += [P_(t0, b+8*p+4+m, b+8*p+m, 0), P_(t1, b+8*p+4+m, b+8*p+m, 1),
                      P_(b+8*p+m, b+8*m+4+p, b+8*m+p, 0), P_(b+8*p+4+m, b+8*m+4+p, b+8*m+p, 1),
                      f'v_mov_b32 v{b+8*m+p}, v{t0}', f'v_mov_b32 v{b+8*m+4+p}, v{t1}']
        return o
    vMa, vMb, vMc, vMd = 52, 53, 54, 55
    def merge_addr(offA):
        o = [f's_lshl_b32 s{sT}, s{sWave}, 6', f'v_add_u32 v1, s{sT}, v0', 'v_lshrrev_b32 v2, 4, v1', 'v_and_b32 v3, 15, v1',
             f'v_lshlrev_b32 v{vMa}, 5, v2', f'v_add_u32 v{vMa}, {ML}, v{vMa}',
             'v_and_b32 v5, 7, v2', 'v_xor_b32 v5, v5, v3', 'v_lshlrev_b32 v5, 4, v5', 'v_lshlrev_b32 v6, 9, v2', 'v_add_u32 v5, v5, v6', f'v_add_u32 v{vMb}, {offA}, v5',
             f'v_add_u32 v{vMc}, 65536, v{vMb}',
             'v_and_b32 v4, 7, v2', f'v_mul_u32_u24 v4, {ACT_STRIDE}, v4', 'v_lshrrev_b32 v5, 3, v2', 'v_lshlrev_b32 v5, 7, v5', 'v_add_u32 v4, v4, v5', 'v_lshlrev_b32 v5, 2, v3', 'v_add_u32 v4, v4, v5', f'v_add_u32 v{vMd}, {ACT}, v4']
        return o
    def merge_body(hook=None, zero=None):
        a(f'ds_read_b128 v[8:11], v{vMa}\nds_read_b128 v[12:15], v{vMa} offset:16')
        for w in range(4):
            for half in range(2):
                r = 16 + (w*2 + half)*4
                a(f'ds_read_b128 v[{r}:{r+3}], v{vMb if w < 2 else vMc} offset:{(w&1)*32768 + 256*half}')
        if hook is not None: hook()
        a('s_waitcnt lgkmcnt(8)')
        a('v_max3_f32 v48, v8, v9, v10\nv_max_f32 v48, v48, v11')
        for w in range(4): a(f'v_sub_f32 v{8+w}, v{8+w}, v48')
        for w in range(4): a(f'v_mul_f32 v{8+w}, s{sC}, v{8+w}')
        for w in range(4): a(f'v_exp_f32 v{8+w}, v{8+w}')
        a('s_nop 0')
        a('v_mul_f32 v48, v8, v12\nv_fmac_f32 v48, v9, v13\nv_fmac_f32 v48, v10, v14\nv_fmac_f32 v48, v11, v15')
        a('v_rcp_f32 v48, v48\ns_nop 0')
        for w in range(4): a(f'v_mul_f32 v{8+w}, v{8+w}, v48')
        a('s_waitcnt lgkmcnt(0)')
        for half in range(2):
            for i in range(4): a(f'v_mul_f32 v{16+half*4+i}, v8, v{16+half*4+i}')
        for w in range(1, 4):
            for half in range(2):
                for i in range(4): a(f'v_fmac_f32 v{16+half*4+i}, v{8+w}, v{16+(w*2+half)*4+i}')
        a('v_cvt_pk_bf16_f32 v48, v16, v17\nv_cvt_pk_bf16_f32 v49, v18, v19\nv_cvt_pk_bf16_f32 v50, v20, v21\nv_cvt_pk_bf16_f32 v51, v22, v23')
        a(f'ds_write2_b32 v{vMd}, v48, v50 offset1:16\nv_add_u32 v{vMd}, {8*ACT_STRIDE}, v{vMd}\nds_write2_b32 v{vMd}, v49, v51 offset1:16')
        if zero is not None:
            for r in range(zero, zero + 32): a(f'v_mov_b32 v{r}, 0')
        if debug:
            a(f's_lshl_b32 s{sT}, s{sWave}, 6\nv_add_u32 v1, s{sT}, v0\nv_lshrrev_b32 v2, 4, v1\nv_and_b32 v3, 15, v1')
            a(f'v_and_b32 v4, 7, v2\nv_lshlrev_b32 v4, 13, v4\nv_lshrrev_b32 v5, 3, v2\nv_lshlrev_b32 v5, 8, v5\nv_add_u32 v4, v4, v5\nv_lshlrev_b32 v5, 3, v3\nv_add_u32 v4, v4, v5')
            a(f's_lshl_b32 s{sT}, s{sB}, 16\ns_lshl_b32 s{sT2}, s{sH}, 10\ns_add_u32 s{sT}, s{sT}, s{sT2}\ns_add_u32 s{sT}, s{sT}, {WS_ODUMP}\nv_add_u32 v4, s{sT}, v4')
            a(f'global_store_dwordx2 v4, v[48:49], s[{sWs}:{sWs+1}]\nglobal_store_dwordx2 v4, v[50:51], s[{sWs}:{sWs+1}] offset:128')
            a('s_waitcnt vmcnt(0)')
    def wo_load_list(land, s, regmap=None):
        o = []
        for j in range(8):
            r = land + 4*j if regmap is None else regmap(j)
            o.append([f's_mov_b32 s{sT}, {s*32768 + (j//4)*4096}',
                      f'buffer_load_dwordx4 v[{r}:{r+3}], v{vWO}, s[{SRD_WO}:{SRD_WO+3}], s{sT} offen offset:{(j%4)*1024} {woflags}'])
        return o
    def wo_dma_list(ldsoff, s):
        o = []
        for j in range(8):
            o.append([f's_add_u32 m0, s{sRing}, {ldsoff + j*1024}', f's_mov_b32 s{sT}, {s*32768 + j*1024}',
                      f'buffer_load_dwordx4 v{vWO}, s[{SRD_WO}:{SRD_WO+3}], s{sT} offen {woflags} lds'])
        return o

    a('s_mov_b32 s3, 0')
    if aprio: a('s_setprio 3')
    a(f's_lshl_b32 s{sT}, s2, 19')
    for srd, p in ((SRD_K, sKp), (SRD_V, sVp)):
        a(f's_add_u32 s{srd}, s{p}, s{sT}\ns_addc_u32 s{srd+1}, s{p+1}, 0\ns_and_b32 s{srd+1}, s{srd+1}, 0xffff')
        a(f's_mov_b32 s{srd+2}, 524288\ns_mov_b32 s{srd+3}, 0x20000')
    a(f's_lshl_b32 s{sRing}, s{sWave}, 15')
    a(f's_mul_i32 s{sG}, s{sWave}, {Cw}')
    a(f's_mov_b32 s{sC}, {hex(f2u(C_SCALE))}')
    a('v_lshrrev_b32 v1, 4, v0\nv_and_b32 v2, 15, v0')
    a('v_lshlrev_b32 v3, 8, v1')
    a('v_xor_b32 v4, v2, v1')
    for u in range(4):
        a(f'v_xor_b32 v5, {4*u}, v4\nv_lshlrev_b32 v5, 4, v5\nv_add_u32 v{vDK[u]}, v3, v5')
    a(f'v_lshlrev_b32 v5, 2, v1\nv_xor_b32 v5, v5, v2\nv_lshlrev_b32 v5, 4, v5\nv_add_u32 v{vDV}, v3, v5')

    vm = VM()
    force = [False]
    gbase = [0]
    def issue(kv, hb, u, tile, win, toreg=None):
        o = vm.window(win) if win else []
        if force[0] and not o: o = [f's_waitcnt vmcnt({win-1})']
        if force[0]: assert o == [f's_waitcnt vmcnt({win-1})'], o
        goff = (tile - gbase[0]) * 32768 + Bu(u)
        vd = vDK[u & 3] if kv == 'K' else vDV
        srd = SRD_K if kv == 'K' else SRD_V
        if toreg is None:
            o.append(f's_add_u32 m0, s{sRing}, {hb*16384 + (8192 if kv=="V" else 0) + 1024*u}')
            o.append(f's_add_u32 s{sT}, s{sG}, {goff}')
            o.append(f'buffer_load_dwordx4 v{vd}, s[{srd}:{srd+3}], s{sT} offen {flags} lds')
        else:
            o.append(f's_add_u32 s{sT}, s{sG}, {goff}')
            o.append(f'buffer_load_dwordx4 v[{toreg}:{toreg+3}], v{vd}, s[{srd}:{srd+3}], s{sT} offen {flags}')
        vm.add((kv + ('R' if (toreg is not None and hstage) else ''), tile), True)
        return o
    def other(lst, tag):
        def f():
            vm.add(tag, False)
            return list(lst)
        return f

    npro = [0]
    def pro(kv, hb, tile, toreg=None, us=range(8)):
        for u in us:
            if AGATE is not None and npro[0] == AGATE:
                a(f'v_mov_b32 v6, {CNT}'); lds_spin(24, 4, 6, 7)
            a.ext(issue(kv, hb, u, tile, W0, None if toreg is None else toreg + 4*u)); npro[0] += 1
            if QGATE is not None and npro[0] == QGATE:
                a(f'v_mov_b32 v6, {CNT}\nv_mov_b32 v7, 1'); lds_inc(24, 6, 7)
    if AFIRST:
        for u in range(AFIRST):
            pro('K', 0, 0, us=[u]); pro('V', 0, 0, us=[u])
        a('s_barrier')
        pro('K', 0, 0, us=range(AFIRST, 8))
    else:
        pro('K', 0, 0)
    a('v_and_b32 v1, 31, v0\nv_lshrrev_b32 v2, 5, v0')
    a('v_and_b32 v3, 15, v1\nv_xor_b32 v3, v3, v2')
    a(f'v_lshlrev_b32 v4, 8, v1\nv_add_u32 v4, s{sRing}, v4')
    for s in range(8):
        a(f'v_xor_b32 v5, {2*s}, v3\nv_lshlrev_b32 v5, 4, v5\nv_add_u32 v{vK[s]}, v4, v5')
    a('v_lshrrev_b32 v1, 4, v0')
    a('v_lshrrev_b32 v2, 2, v0\nv_and_b32 v2, 3, v2')
    a('v_and_b32 v3, 3, v0')
    a('v_lshrrev_b32 v4, 1, v1\nv_lshlrev_b32 v4, 2, v4\nv_add_u32 v4, v4, v2\nv_lshlrev_b32 v4, 8, v4')
    a('v_and_b32 v5, 1, v1\nv_lshlrev_b32 v5, 5, v5\nv_add_u32 v4, v4, v5')
    a('v_lshlrev_b32 v5, 3, v3\nv_add_u32 v4, v4, v5')
    a(f'v_add_u32 v4, s{sRing}, v4\nv_add_u32 v4, 8192, v4')
    for blk in range(4):
        a(f'v_xor_b32 v5, {blk}, v2\nv_lshlrev_b32 v5, 6, v5\nv_add_u32 v{vV[blk]}, v4, v5')
    a(f'v_mov_b32 v{vM}, 0xff800000\nv_mov_b32 v{vL}, 0')
    for r in range(64): a(f'v_mov_b32 v{O0+r}, 0')
    vLIN = 254
    a(f'v_lshlrev_b32 v{vLIN}, 4, v0\nv_add_u32 v{vLIN}, s{sRing}, v{vLIN}')
    pro('V', 0, 0, us=range(AFIRST, 8))
    if not (loopst or startst): stamp(8)
    pro('K', 1, 1)
    if not (loopst or startst): stamp(9)
    if stage:
        pro('K', 0, 2, toreg=R0)
        if not (loopst or startst): stamp(10)
        pro('V', 0, 2, toreg=R0 + 32)
        if not (loopst or startst): stamp(11)
    a(f'v_mov_b32 v6, {CNT}')
    if not x_noq: lds_spin(4, 2, 6, 7)
    pro('V', 1, 1)
    if hstage:
        pro('K', 0, 2, toreg=R0, us=range(HS_N))
    if not loopst: stamp(1)
    if aprio: a('s_setprio 0')
    a('s_barrier')
    if not loopst: stamp(2)
    a(f's_sub_u32 s{sT}, {QBUF}, s{sRing}')
    for s in range(8):
        a(f'v_add_u32 v1, s{sT}, v{vK[s]}\nds_read_b128 v[{Q0+4*s}:{Q0+4*s+3}], v1')
    a('s_waitcnt lgkmcnt(0)')

    def tile(hb, tidx, kblocks=(), vblocks=(), after_k=None, after_v=None, after_qk=None, inloop=False, final=False, bump=False, pre_v=None, mid=None, kfront=False):
        c = []
        off = hb * 16384
        if not inloop: c += vm.need(('K', tidx))
        for s in range(8):
            c.append(f'ds_read_b128 v[{KV0+4*s}:{KV0+4*s+3}], v{vK[s]} offset:{off}')
        c.append('s_waitcnt lgkmcnt(4)')
        for s in range(8):
            if s == 4: c.append('s_waitcnt lgkmcnt(0)')
            srcc = '0' if s == 0 else f'v[{S0}:{S0+15}]'
            c.append(f'v_mfma_f32_32x32x16_bf16 v[{S0}:{S0+15}], v[{KV0+4*s}:{KV0+4*s+3}], v[{Q0+4*s}:{Q0+4*s+3}], {srcc}')
        vreads = []
        for s2 in range(2):
            for blk in range(4):
                for half in range(2):
                    r = KV0 + (s2*4 + blk)*4 + 2*half
                    vreads.append(f'ds_read_b64_tr_b16 v[{r}:{r+1}], v{vV[blk]} offset:{off + s2*4096 + half*2048}')
        nw = 0
        if after_k is not None:
            x = after_k(); c += x; nw += len(x)
        if after_qk is not None:
            x = after_qk(); c += x; nw += len(x)
        if not final:
            if not inloop: c += vm.need(('V', tidx))
            c.extend(vreads); nw += 16
        if nw < 12: c.append(f's_nop {min(7, 11 - nw)}'); nw += min(8, 12 - nw)
        if nw < 12: c.append(f's_nop {11 - nw}')
        sm = []
        S = lambda k: S0 + k
        sm.append(f'v_max3_f32 v{T[0]}, v{S(0)}, v{S(1)}, v{S(2)}')
        sm.append(f'v_max3_f32 v{T[1]}, v{S(3)}, v{S(4)}, v{S(5)}')
        sm.append(f'v_max3_f32 v{T[2]}, v{S(6)}, v{S(7)}, v{S(8)}')
        sm.append(f'v_max3_f32 v{T[3]}, v{S(9)}, v{S(10)}, v{S(11)}')
        sm.append(f'v_max3_f32 v{T[4]}, v{S(12)}, v{S(13)}, v{S(14)}')
        sm.append(f'v_max3_f32 v{T[0]}, v{T[0]}, v{T[1]}, v{S(15)}')
        sm.append(f'v_max3_f32 v{T[2]}, v{T[2]}, v{T[3]}, v{T[4]}')
        sm.append(f'v_max_f32 v{T[0]}, v{T[0]}, v{T[2]}')
        sm.append(f'v_mov_b32 v{T[1]}, v{T[0]}')
        sm.append('s_nop 1')
        sm.append(f'v_permlane32_swap_b32 v{T[0]}, v{T[1]}')
        sm.append(f's_nop 1')
        sm.append(f'v_max3_f32 v{T[0]}, v{T[0]}, v{T[1]}, v{vM}')
        sm.append(f'v_mul_f32 v{vNM}, s{sC}, v{T[0]}')
        sm.append(f'v_fma_f32 v{vAl}, v{vM}, s{sC}, -v{vNM}')
        sm.append(f'v_mov_b32 v{vM}, v{T[0]}')
        sm.append(f'v_exp_f32 v{vAl}, v{vAl}')
        for k in range(16): sm.append(f'v_fma_f32 v{S(k)}, v{S(k)}, s{sC}, -v{vNM}')
        for k in range(16): sm.append(f'v_exp_f32 v{S(k)}, v{S(k)}')
        sm.append(f'v_mul_f32 v{vL}, v{vL}, v{vAl}')
        for k in range(4): sm.append(f'v_add_f32 v{T[k]}, v{S(k)}, v{S(k+4)}')
        for k in range(4): sm.append(f'v_add_f32 v{T[k]}, v{T[k]}, v{S(k+8)}')
        for k in range(4): sm.append(f'v_add_f32 v{T[k]}, v{T[k]}, v{S(k+12)}')
        sm.append(f'v_add_f32 v{T[0]}, v{T[0]}, v{T[1]}')
        sm.append(f'v_add_f32 v{T[2]}, v{T[2]}, v{T[3]}')
        for k in range(8): sm.append(f'v_cvt_pk_bf16_f32 v{P0+k}, v{S(2*k)}, v{S(2*k+1)}')
        sm.append(f'v_add_f32 v{vL}, v{vL}, v{T[0]}')
        sm.append(f'v_add_f32 v{vL}, v{vL}, v{T[2]}')
        for r in range(64): sm.append(f'v_mul_f32 v{O0+r}, v{O0+r}, v{vAl}')
        if kfront:
            for b in kblocks: c.extend(b())
            c.extend(sm)
        else:
            c.extend(interleave(sm, list(kblocks)))
        if mid is not None: c += mid()
        if pre_v is not None: c += pre_v()
        if final:
            c += vm.need(('V', tidx))
            c.extend(vreads)
        c.append('s_waitcnt lgkmcnt(0)')
        if after_v is not None: c += after_v()
        pv = []
        for s2 in range(2):
            for blk in range(4):
                r = KV0 + (s2*4 + blk)*4
                pv.append(f'v_mfma_f32_32x32x16_bf16 v[{O0+16*blk}:{O0+16*blk+15}], v[{r}:{r+3}], v[{P0+4*s2}:{P0+4*s2+3}], v[{O0+16*blk}:{O0+16*blk+15}]')
        vb = list(vblocks)
        per = -(-len(vb) // 8) if vb else 0
        for i in range(8):
            c.append(pv[i])
            for b in vb[i*per:(i+1)*per]: c.extend(b())
        if bump:
            c.append(f's_add_u32 s{sG}, s{sG}, 32768'); gbase[0] += 1
        return c
    def iss(kv, hb, tile_): return [(lambda u=u: issue(kv, hb, u, tile_, W)) for u in range(8)]

    if stage:
        def wrK():
            return vm.need(('K', 2)) + [f'ds_write_b128 v{vLIN}, v[{R0+4*u}:{R0+4*u+3}] offset:{16384 + 1024*u}' for u in range(8)]
        def wrV():
            return vm.need(('V', 2)) + [f'ds_write_b128 v{vLIN}, v[{R0+32+4*u}:{R0+32+4*u+3}] offset:{16384 + 8192 + 1024*u}' for u in range(8)]
        if WR:
            issr = lambda kv: [(lambda u=u: issue(kv, 0, u, 3, WR)) for u in range(8)]
            if startst: a('s_memrealtime s[80:81]\ns_waitcnt lgkmcnt(0)')
            if WRMODE == 0:
                a.ext(tile(0, 0, kblocks=issr('K'), vblocks=issr('V'), kfront=True))
            else:
                a.ext(tile(0, 0, kblocks=issr('K'), kfront=True))
            if startst: a('s_memrealtime s[82:83]\ns_waitcnt lgkmcnt(0)')
            if WRMODE == 0:
                a.ext(tile(1, 1, after_k=wrK, after_v=wrV))
            elif WRMODE == 1:
                a.ext(tile(1, 1, kblocks=issr('V'), kfront=True, after_k=wrK, after_v=wrV))
            else:
                a.ext(tile(1, 1, kblocks=issr('V'), after_k=wrK, after_v=wrV))
            if startst: a('s_memrealtime s[84:85]\ns_waitcnt lgkmcnt(0)')
        else:
            a.ext(tile(0, 0, kblocks=iss('K', 0, 3)))
            a.ext(tile(1, 1, kblocks=iss('V', 0, 3), after_k=wrK, after_v=wrV))
        a(f's_add_u32 s{sG}, s{sG}, {4*32768}'); gbase[0] = 4
        first_loop, nit, order = 2, 5, (1, 0)
    elif hstage:
        def wrK2():
            return vm.need(('KR', 2)) + [f'ds_write_b128 v{vLIN}, v[{R0+4*u}:{R0+4*u+3}] offset:{1024*u}' for u in range(HS_N)]
        kb0 = [(lambda u=u: issue('K', 0, u, 2, W)) for u in range(HS_N, 8)]
        vb0 = [(lambda u=u: (['s_waitcnt lgkmcnt(0)'] if u == 0 else []) + issue('V', 0, u, 2, W)) for u in range(8)]
        a.ext(tile(0, 0, kblocks=kb0 + vb0, after_v=wrK2))
        if PLFLAG:
            a(f'v_mov_b32 v6, {CNT}\nv_mov_b32 v7, 1'); lds_inc(20, 6, 7)
        if WO67EARLY:
            wl67 = wo_load_list(R0, 6, lambda j: R0 + 16*(j >> 1) + 8*(j & 1)) + wo_load_list(R0, 7, lambda j: R0 + 16*(j >> 1) + 8*(j & 1) + 4)
            kb1 = []
            for u in range(8):
                kb1.append(lambda u=u: issue('K', 1, u, 3, W))
                kb1.append(other(wl67[2*u], 'wo6' if 2*u < 8 else 'wo7')); kb1.append(other(wl67[2*u+1], 'wo6' if 2*u+1 < 8 else 'wo7'))
            a.ext(tile(1, 1, kblocks=kb1, vblocks=iss('V', 1, 3)))
        else:
            a.ext(tile(1, 1, kblocks=iss('K', 1, 3), vblocks=iss('V', 1, 3)))
        a(f's_add_u32 s{sG}, s{sG}, {4*32768}'); gbase[0] = 4
        first_loop, nit, order = 2, 5, (0, 1)
    else:
        a(f's_add_u32 s{sG}, s{sG}, {2*32768}'); gbase[0] = 2
        first_loop, nit, order = 0, 6, (0, 1)
    a(f's_mov_b32 s{sCnt}, {nit}')
    if WHI: a(f's_mov_b32 s50, {THR0}')
    if LALIGN: a.raw(f'.p2align {LALIGN}')
    for _ in range(LPAD): a('s_nop 0')
    a('L_loop:')
    if loopst:
        a('s_mov_b32 s86, s84\ns_mov_b32 s84, s82\ns_mov_b32 s82, s80\ns_mov_b32 s80, s66\ns_memrealtime s[66:67]\ns_waitcnt lgkmcnt(0)')
    if WHI:
        if WHICNT is not None:
            a(f's_cmp_le_u32 s{sCnt}, {WHICNT}\ns_cbranch_scc1 L_fast')
        else:
            a('s_memrealtime s[48:49]\ns_waitcnt lgkmcnt(0)\ns_sub_u32 s48, s48, s62\ns_cmp_gt_u32 s48, s50\ns_cbranch_scc1 L_fast')
    force[0] = True
    snap = (list(vm.ops), vm.done, gbase[0])
    for hb in order:
        t = gbase[0]
        a.ext(tile(hb, None, kblocks=iss('K', hb, t), vblocks=iss('V', hb, t), inloop=True, bump=True))
    force[0] = False
    if WHI:
        a('s_branch L_next')
        a('L_fast:')
        after = (list(vm.ops), vm.done, gbase[0])
        vm.ops, vm.done, gbase[0] = list(snap[0]), snap[1], snap[2]
        def issue_hi(kv, hb, u, tile_):
            o = [f's_waitcnt vmcnt({WHI-1})']
            goff = (tile_ - gbase[0]) * 32768 + Bu(u)
            vd = vDK[u & 3] if kv == 'K' else vDV
            srd = SRD_K if kv == 'K' else SRD_V
            o.append(f's_add_u32 m0, s{sRing}, {hb*16384 + (8192 if kv=="V" else 0) + 1024*u}')
            o.append(f's_add_u32 s{sT}, s{sG}, {goff}')
            o.append(f'buffer_load_dwordx4 v{vd}, s[{srd}:{srd+3}], s{sT} offen {flags} lds')
            return o
        for hb in order:
            t = gbase[0]
            a.ext(tile(hb, None, kblocks=[(lambda u=u, hb=hb, t=t: issue_hi('K', hb, u, t)) for u in range(8)],
                       vblocks=[(lambda u=u, hb=hb, t=t: issue_hi('V', hb, u, t)) for u in range(8)], inloop=True, bump=True))
        vm.ops, vm.done, gbase[0] = after
        a('L_next:')
        a(f's_add_u32 s50, s50, {DTH}')
    if latewarm is not None:
        l = lab('noflag')
        a(f's_cmp_eq_u32 s{sCnt}, {latewarm}\ns_cbranch_scc0 {l}')
        a(f'v_mov_b32 v1, {CNT}\nv_mov_b32 v2, 1\nds_write_b32 v1, v2 offset:20')
        a(f'{l}:')
    a(f's_sub_u32 s{sCnt}, s{sCnt}, 1\ns_cmp_lg_u32 s{sCnt}, 0\ns_cbranch_scc1 L_loop')
    if loopst: a('s_memrealtime s[68:69]\ns_waitcnt lgkmcnt(0)')
    for it in range(1, nit):
        for hb in order:
            t = gbase[0]
            for u in range(8): vm.add(('K', t), True)
            for u in range(8): vm.add(('V', t), True)
            gbase[0] += 1
    vm.done = len(vm.ops) - max(W, WHI or 0)
    assert gbase[0] == 14, gbase
    hB, hA = order
    wl = wo_load_list(R0, 6, lambda j: R0 + 16*(j >> 1) + 8*(j & 1)) + wo_load_list(R0, 7, lambda j: R0 + 16*(j >> 1) + 8*(j & 1) + 4)
    kb = []; vb = []
    for u in range(8):
        kb.append(lambda u=u: issue('K', hB, u, 14, WEND or W))
        if not WO67EARLY: kb.append(other(wl[u], 'wo6'))
    for u in range(8):
        vb.append(lambda u=u: issue('V', hB, u, 14, WEND or W))
        if not WO67EARLY: vb.append(other(wl[8+u], 'wo7'))
    mid12 = (lambda: vm.need('wo7') + transpose_pair_inplace(R0, 1, 2)) if WO67EARLY else None
    a.ext(tile(hB, 12, kblocks=kb, vblocks=vb, bump=True, mid=mid12))
    isse = lambda kv: [(lambda u=u: issue(kv, hA, u, 15, WEND or W)) for u in range(8)]
    v15 = isse('V')
    a.ext(tile(hA, 13, kblocks=isse('K'), vblocks=v15[:8 - endmix], bump=True))
    gbase_save = gbase[0]
    d8 = wo_dma_list(hB*16384, 8); d9 = wo_dma_list(hB*16384 + 8192, 9)
    def pretr():
        return vm.need('wo7') + transpose_pair_inplace(R0, 1, 2)
    late15 = [(lambda u=u: issue('V', hA, u, 15, WEND or W)) for u in range(8 - endmix, 8)]
    kb14 = []
    for i in range(8):
        if i < len(late15): kb14.append(late15[i])
        kb14.append(other(d8[i], 'wo8'))
    a.ext(tile(hB, 14, kblocks=kb14, vblocks=[other(x, 'wo9') for x in d9], mid=None if WO67EARLY else pretr))
    offA = hA * 16384
    def ld10():
        o = []
        for x in wo_load_list(Q0, 10): vm.add('wo10'); o += x
        return o
    def prepub():
        o = [f'v_mov_b32 v1, v{vL}', 's_nop 1', f'v_permlane32_swap_b32 v1, v{vL}', 's_nop 1', f'v_add_f32 v{vL}, v{vL}, v1',
             'v_and_b32 v2, 31, v0', 'v_lshrrev_b32 v3, 5, v0',
             'v_lshlrev_b32 v4, 5, v2', f's_lshl_b32 s{sT}, s{sWave}, 2', f'v_add_u32 v4, s{sT}, v4', f'v_add_u32 v4, {ML}, v4',
             f'ds_write_b32 v4, v{vM}', f'ds_write_b32 v4, v{vL} offset:16',
             'v_lshlrev_b32 v4, 9, v2', f'v_add_u32 v4, s{sRing}, v4', 'v_and_b32 v5, 7, v2', 'v_xor_b32 v5, v5, v3']
        for j in range(4):
            o += [f'v_xor_b32 v6, {2*j}, v5', 'v_lshlrev_b32 v6, 4, v6', f'v_add_u32 v{T[j]}, v4, v6']
        o += ['v_and_b32 v1, 8, v0', 'v_mov_b32 v2, 0x4444', 'v_mov_b32 v3, 0xeeee', 'v_cmp_ne_u32 vcc, 0, v1', 's_nop 1', f'v_cndmask_b32 v{vIDX}, v2, v3, vcc']
        return o + merge_addr(offA)
    a.ext(tile(hA, 15, after_qk=ld10, final=True, pre_v=prepub))
    stamp(3)
    def pub():
        for blk in range(4):
            for j in range(4):
                r = O0 + 16*blk + 4*j
                a(f'ds_write_b128 v{T[j]}, v[{r}:{r+3}] offset:{offA + 128*blk}')
    def ld11():
        for x in wo_load_list(KV0, 11): vm.add('wo11'); a.ext(x)
    if PUBFIRST:
        a('s_nop 7\ns_nop 0'); pub(); ld11()
    else:
        ld11(); pub()
    a('s_waitcnt lgkmcnt(0)')
    if LATE12 == 0:
        for x in wo_load_list(O0, 12): vm.add('wo12'); a.ext(x)
    if tailst: stamp(8)
    a('s_barrier')
    if tailst: stamp(9)
    def ld13():
        for x in wo_load_list(O0 + 32, 13): vm.add('wo13'); a.ext(x)
    merge_body(ld13 if M13 else None, zero=8)
    a('s_waitcnt lgkmcnt(0)')
    a('s_barrier')
    stamp(4)
    if LATE12 == 1:
        for x in wo_load_list(O0, 12): vm.add('wo12'); a.ext(x)
    aACC, aAF = 8, [40, 44]
    if oprio: a(f's_setprio {oprio}')
    if not M13:
        for x in wo_load_list(O0 + 32, 13): vm.add('wo13'); a.ext(x)
    a(f'ds_read_b128 v[{aAF[0]}:{aAF[0]+3}], v{vACT} offset:{64*3}')
    a(f'ds_read_b128 v[{aAF[1]}:{aAF[1]+3}], v{vACT} offset:{64*5}')
    a('s_waitcnt lgkmcnt(1)')
    for e in range(8): a(smf(aACC + 4*e, aAF[0], R0 + 8*e))
    a.ext(vm.need('wo9'))
    for blk in (8, 9):
        for j in range(8):
            a(f'ds_read_b128 v[{R0+(blk-8)*32+4*j}:{R0+(blk-8)*32+4*j+3}], v{vLIN} offset:{hB*16384 + (blk-8)*8192 + 1024*j}')
    aTB = [48, 0]
    a(f'ds_read_b128 v[{aAF[0]}:{aAF[0]+3}], v{vACT} offset:{64*4}')
    a.ext(vm.need('wo11'))
    a('s_waitcnt lgkmcnt(15)')
    a.ext(mm_pair(Q0, KV0, aTB, aAF[1], aACC))
    a(f'ds_read_b128 v[{aAF[1]}:{aAF[1]+3}], v{vACT} offset:{64*6}')
    a('s_waitcnt lgkmcnt(1)')
    a.ext(mm_pair(R0, R0 + 32, aTB, aAF[0], aACC))
    a.ext(vm.need('wo13'))
    a('s_waitcnt lgkmcnt(0)')
    a.ext(mm_pair(O0, O0 + 32, aTB, aAF[1], aACC))
    a('s_nop 7')
    for e in range(8):
        a(f'ds_write_b128 v{vLIN}, v[{aACC+4*e}:{aACC+4*e+3}] offset:{offA + e*1024}')
    a('s_waitcnt lgkmcnt(0)')
    if tailst: stamp(10)
    a('s_barrier')
    if stamps: a('s_branch L_stamps')
    else: a('s_endpgm')

    if PALIGN: a.raw(f'.p2align {PALIGN}')
    a('L_pwave:')
    a('s_mov_b32 s3, 1')
    if AFIRST: a('s_barrier')
    if pprio: a('s_setprio 3')
    if x_noq: a('s_branch L_noq')
    sPW, sGQ, sHQ, sRot = sNW, 42, 43, 39
    a(f's_lshr_b32 s{sGQ}, s{sB}, 2\ns_and_b32 s{sHQ}, s{sB}, 3\ns_and_b32 s{sRot}, s{sGQ}, 3')
    SRD_W, SRD_X = 24, 28
    XF, TB, ACC, LAND = 12, [44, 48], 56, 120
    vW, vX = 8, 9
    a(f's_mov_b32 s{SRD_X}, s{sX}\ns_and_b32 s{SRD_X+1}, s{sX+1}, 0xffff\ns_mov_b32 s{SRD_X+2}, 262144\ns_mov_b32 s{SRD_X+3}, 0x20000')
    a(f'v_and_b32 v2, 15, v0\nv_lshrrev_b32 v3, 4, v0\nv_lshlrev_b32 v4, 10, v2\nv_lshlrev_b32 v5, 4, v3\nv_add_u32 v{vX}, v4, v5')
    if x_xcontig: a(f'v_lshlrev_b32 v{vX}, 4, v0')
    a(f'v_lshlrev_b32 v4, 16, v3\nv_lshlrev_b32 v5, 4, v2\nv_add_u32 v{vW}, v4, v5')
    a(f's_lshl_b32 s{sT}, s{sH}, 2\ns_add_u32 s{sT}, s{sT}, s{sHQ}\ns_lshl_b32 s{sT}, s{sT}, 8')
    a(f's_add_u32 s{SRD_W}, s{sWq}, s{sT}\ns_addc_u32 s{SRD_W+1}, s{sWq+1}, 0\ns_and_b32 s{SRD_W+1}, s{SRD_W+1}, 0xffff')
    a(f's_sub_u32 s{SRD_W+2}, 4194304, s{sT}\ns_mov_b32 s{SRD_W+3}, 0x20000')
    for sg in range(4): a(f's_add_u32 s{48+sg}, s{sRot}, {sg}\ns_and_b32 s{48+sg}, s{48+sg}, 3')
    a(f's_and_b32 s{sT}, s{sPW}, 1')
    a(f's_lshl_b32 s52, s{sGQ}, 15\ns_lshl_b32 s{sT2}, s{sT}, 14\ns_add_u32 s52, s52, s{sT2}\ns_lshl_b32 s{sT2}, s{sPW}, 8\ns_add_u32 s52, s52, s{sT2}')
    a(f's_xor_b32 s53, s52, 16384')
    if QPF:
        a(f'v_lshrrev_b32 v4, 4, v0\nv_lshlrev_b32 v4, 13, v4\nv_and_b32 v5, 15, v0\nv_lshlrev_b32 v5, 4, v5\nv_add_u32 v4, v4, v5')
        a(f's_lshl_b32 s{sT2}, s{sGQ}, 2\ns_add_u32 s{sT2}, s{sT2}, s{sPW}\ns_lshl_b32 s{sT2}, s{sT2}, 17')
        for i in range(4):
            a(f's_add_u32 s{sT}, s{sT2}, {i*4*8192}')
            a(f'buffer_load_dwordx4 v[{LAND+4*i}:{LAND+4*i+3}], v4, s[{SRD_W}:{SRD_W+3}], s{sT} offen {wqflags}')
        a('v_lshlrev_b32 v5, 4, v0')
        a(f's_lshl_b32 s{sT2}, s{sGQ}, 5\ns_lshl_b32 s{sT}, s{sHQ}, 3\ns_add_u32 s{sT2}, s{sT2}, s{sT}\ns_lshl_b32 s{sT}, s{sPW}, 1\ns_add_u32 s{sT2}, s{sT2}, s{sT}\ns_lshl_b32 s{sT2}, s{sT2}, 10')
        for i in range(2):
            a(f'buffer_load_dwordx4 v[{LAND+16+4*i}:{LAND+16+4*i+3}], v5, s[{SRD_X}:{SRD_X+3}], s{sT2} offen offset:{i*1024} {xflags}')
        a('s_waitcnt vmcnt(0)')
        if QPFSLEEP: a(f's_sleep {QPFSLEEP}')
    npl = [0]
    def pthrottle():
        if PWIN and npl[0] >= PWIN: a(f's_waitcnt vmcnt({PWIN-1})')
        npl[0] += 1
    if XDMA:
        a('v_lshrrev_b32 v2, 4, v0\nv_and_b32 v3, 15, v0\nv_xor_b32 v4, v2, v3\nv_lshlrev_b32 v5, 10, v2')
        for t in range(4):
            a(f'v_xor_b32 v6, {4*t}, v4\nv_lshlrev_b32 v6, 4, v6\nv_add_u32 v{248+t}, v5, v6')
        a(f's_lshl_b32 s52, s{sGQ}, 15\ns_lshl_b32 s{sT2}, s{sPW}, 8\ns_add_u32 s52, s52, s{sT2}')
        a(f's_lshl_b32 s53, s{sPW}, 15\ns_add_u32 s53, s53, 24576')
        for t in range(8):
            a(f's_add_u32 m0, s53, {1024*t}\ns_add_u32 s{sT}, s52, {4096*t}')
            a(f'buffer_load_dwordx4 v{248 + (t & 3)}, s[{SRD_X}:{SRD_X+3}], s{sT} offen {xflags} lds')
    else:
        for sg in range(4):
            for rho in range(2):
                r = XF + (rho*4 + sg)*4
                a(f's_lshl_b32 s{sT}, s{48+sg}, 6\ns_add_u32 s{sT}, s{sT}, s{52+rho}')
                pthrottle()
                if not x_noload: a(f'buffer_load_dwordx4 v[{r}:{r+3}], v{vX}, s[{SRD_X}:{SRD_X+3}], s{sT} offen {xflags}')
    prep = []
    class _L:
        def __call__(self, t): prep.extend(x.strip() for x in t.split('\n') if x.strip())
    b = _L()
    tA, tB = 92, 93
    if XDMA:
        b('v_and_b32 v2, 15, v0\nv_lshrrev_b32 v3, 4, v0')
        b('v_and_b32 v4, 3, v2\nv_xor_b32 v4, v4, v3\nv_lshlrev_b32 v4, 4, v4\nv_lshlrev_b32 v5, 8, v2\nv_add_u32 v4, v4, v5')
        b(f's_and_b32 s{tA}, s{sPW}, 1\ns_lshl_b32 s{tA}, s{tA}, 12\ns_add_u32 s{tA}, s{tA}, s53\nv_add_u32 v4, s{tA}, v4')
        b('v_lshrrev_b32 v5, 2, v2')
        for sg in range(4):
            b(f'v_xor_b32 v6, s{48+sg}, v5\nv_lshlrev_b32 v6, 6, v6\nv_add_u32 v{248+sg}, v4, v6')
    def region(dst, sTile, sK):
        b(f's_mul_i32 s{dst}, s{sTile}, 3\ns_add_u32 s{dst}, s{dst}, s{sK}')
        b(f's_lshl_b32 s{tA}, s{dst}, 15\ns_add_u32 s{tA}, s{tA}, 24576')
        b(f's_sub_u32 s{tB}, s{dst}, 4\ns_lshl_b32 s{tB}, s{tB}, 13\ns_add_u32 s{tB}, s{tB}, 131072')
        b(f's_cmp_lt_u32 s{dst}, 4\ns_cselect_b32 s{dst}, s{tA}, s{tB}')
    vS1, vS0, vRd = 52, 53, [54, 55, 254]
    vPay, vTag, vLoc = 9, 255, [1, 2, 3, 4]
    b(f's_sub_u32 s54, s{sPW}, 1\ns_cmp_lt_u32 s{sPW}, 2\ns_cselect_b32 s54, 0, s54')
    b(f's_and_b32 s55, s{sPW}, 1')
    b(f's_xor_b32 s56, s55, 1')
    b('v_lshlrev_b32 v10, 4, v0')
    region(57, 56, 54); b(f'v_add_u32 v{vS1}, s57, v10')
    region(57, 55, 54); b(f'v_add_u32 v{vS0}, s57, v10')
    for k in range(3):
        b(f's_mov_b32 s58, {k}')
        region(57, 55, 58)
        b(f'v_add_u32 v{vRd[k]}, s57, v10')
    b('v_and_b32 v5, 15, v0\nv_lshrrev_b32 v6, 4, v0')
    b('v_lshrrev_b32 v10, 1, v6\nv_lshlrev_b32 v10, 17, v10\nv_and_b32 v11, 1, v6')
    b(f'v_lshlrev_b32 v{vPay}, 10, v11\nv_add_u32 v{vPay}, v{vPay}, v10\nv_lshlrev_b32 v7, 4, v5\nv_add_u32 v{vPay}, v{vPay}, v7')
    b(f'v_lshlrev_b32 v{vTag}, 5, v11\nv_add_u32 v{vTag}, v{vTag}, v10\nv_lshlrev_b32 v7, 3, v5\nv_add_u32 v{vTag}, v{vTag}, v7\nv_add_u32 v{vTag}, 8192, v{vTag}')
    b(f's_lshl_b32 s{tA}, s{sHQ}, 11\nv_add_u32 v{vPay}, s{tA}, v{vPay}\ns_lshl_b32 s{tA}, s{sHQ}, 6\nv_add_u32 v{vTag}, s{tA}, v{vTag}')
    b(f's_lshl_b32 s{tA}, s{sGQ}, 2\ns_lshl_b32 s{tB}, s55, 1\ns_add_u32 s{tA}, s{tA}, s{tB}\ns_lshl_b32 s{tA}, s{tA}, 3\ns_add_u32 s{tA}, s{tA}, s{sH}\ns_lshl_b32 s{tA}, s{tA}, 14')
    b(f's_add_u32 s58, s{sWs}, s{tA}\ns_addc_u32 s59, s{sWs+1}, 0')
    if WS_QX: b(f's_add_u32 s58, s58, {WS_QX}\ns_addc_u32 s59, s59, 0')
    b(f's_lshr_b32 s{tA}, s{sHQ}, 1\ns_and_b32 s{tB}, s{sHQ}, 1')
    b(f's_cmp_eq_u32 s{tB}, 0\ns_cselect_b32 s88, -1, 0\ns_cselect_b32 s89, 0, -1')
    b(f's_cmp_eq_u32 s{tA}, s55\ns_cselect_b32 s88, s88, 0\ns_cselect_b32 s89, s89, 0\ns_not_b64 s[90:91], s[88:89]')
    b(f's_lshl_b32 s{tA}, s{sHQ}, 3\nv_lshlrev_b32 v10, 2, v11\nv_add_u32 v10, s{tA}, v10')
    for r in range(4):
        b(f'v_add_u32 v7, {r}, v10\nv_and_b32 v11, 15, v7\nv_xor_b32 v11, v11, v5\nv_lshlrev_b32 v11, 4, v11\nv_lshlrev_b32 v7, 8, v7\nv_add_u32 v11, v11, v7\nv_add_u32 v{vLoc[r]}, {QBUF}, v11')
    b(f'v_mov_b32 v6, {CNT}\nv_mov_b32 v7, 1')
    chunks = []; cur = []
    for t in prep:
        cur.append(t)
        if not (t.startswith(('s_cmp', 's_add_u32 s58')) or (t.startswith('s_cselect') and False)):
            chunks.append(cur); cur = []
    assert not cur
    merged = []
    for c in chunks:
        if merged and c[0].startswith(('s_cselect', 's_addc')): merged[-1].extend(c)
        else: merged.append(c)
    nld = 0; PSTART = 6
    per = -(-len(merged) // (32 - PSTART))
    for sg in range(4):
        a(f's_lshl_b32 s{sT2}, s{sPW}, 2\ns_add_u32 s{sT2}, s{sT2}, s{48+sg}\ns_lshl_b32 s{sT2}, s{sT2}, 18')
        for j in range(8):
            r = LAND + sg*32 + 4*j
            a(f's_add_u32 s{sT}, s{sT2}, {j*8192}')
            pthrottle()
            if not x_noload: a(f'buffer_load_dwordx4 v[{r}:{r+3}], v{vW}, s[{SRD_W}:{SRD_W+3}], s{sT} offen {wqflags}')
            nld += 1
            if nld > PSTART:
                for c in merged[:per]: a.ext(c)
                merged = merged[per:]
    for c in merged: a.ext(c)
    if AGATE is not None:
        a(f'v_mov_b32 v6, {CNT}\nv_mov_b32 v7, 1'); lds_inc(24, 6, 7)
    if stamps and not redst: a('s_memrealtime s[80:81]')
    if XDMA:
        a('s_waitcnt vmcnt(32)')
        for sg in range(4):
            r0 = XF + sg*4; r1 = XF + (4 + sg)*4
            a(f'ds_read_b128 v[{r0}:{r0+3}], v{248+sg}')
            a(f'v_xor_b32 v5, 4096, v{248+sg}\nds_read_b128 v[{r1}:{r1+3}], v5')
        a('s_waitcnt lgkmcnt(0)')
        lds_inc(28, 6, 7)
    for sg in range(4):
        a(f's_waitcnt vmcnt({24 - 8*sg})')
        if sg == 3 and XDMA:
            lds_spin(28, 4, 6, 5)
        a.ext(mm_block(LAND + sg*32, TB, [XF + sg*4, XF + (4+sg)*4], [ACC, ACC + 32], first=(sg == 0)))
    if stamps: a('s_memrealtime s[82:83]')
    lown = lab('owner')
    a(f's_cmp_lt_u32 s{sPW}, 2\ns_cbranch_scc1 {lown}')
    a('s_nop 5')
    for e in range(8):
        r = ACC + 4*e
        a(f'ds_write_b128 v{vS0}, v[{r}:{r+3}] offset:{e*1024}')
    a(f'{lown}:')
    a('s_nop 5')
    for e in range(8):
        r = ACC + 32 + 4*e
        a(f'ds_write_b128 v{vS1}, v[{r}:{r+3}] offset:{e*1024}')
    a(f's_waitcnt lgkmcnt(0)')
    lds_inc(0, 6, 7)
    if redst: a('s_memrealtime s[80:81]')
    lqwait = lab('qwait')
    a(f's_cmp_ge_u32 s{sPW}, 2\ns_cbranch_scc1 {lqwait}')
    RD = LAND
    lds_spin(0, 4, 6, 5)
    if redst: a('s_memrealtime s[68:69]')
    for k in range(3):
        for e in range(8):
            r = RD + k*32 + 4*e
            a(f'ds_read_b128 v[{r}:{r+3}], v{vRd[k]} offset:{e*1024}')
    pk = lambda d, x, y: f'v_pk_add_f32 v[{d}:{d+1}], v[{x}:{x+1}], v[{y}:{y+1}]'
    for k in range(3):
        for hh in range(2):
            left = 24 - (k*8 + hh*4 + 4)
            a(f's_waitcnt lgkmcnt({min(15, left)})')
            if left == 0: lds_inc(4, 6, 7)
            for i in range(hh*16, hh*16 + 16, 2):
                a(pk(ACC + i, ACC + i, RD + k*32 + i) if PKADD else f'v_add_f32 v{ACC+i}, v{ACC+i}, v{RD+k*32+i}\nv_add_f32 v{ACC+i+1}, v{ACC+i+1}, v{RD+k*32+i+1}')
    if redst: a('s_memrealtime s[70:71]')
    X = RD + 16
    for r in range(4):
        d = RD + 4*r
        for p in range(4):
            a(f'v_cvt_pk_bf16_f32 v{d+p}, v{ACC+4*(2*p)+r}, v{ACC+4*(2*p+1)+r}')
    a('s_mov_b64 exec, s[90:91]')
    if not x_nost:
        for r in range(4):
            a(f'global_store_dwordx4 v{vPay}, v[{RD+4*r}:{RD+4*r+3}], s[58:59] offset:{256*r} {qst}')
    a('s_mov_b64 exec, -1')
    for r in range(4):
        d = RD + 4*r
        a(f'v_xor_b32 v{X+r}, v{d}, v{d+1}\nv_xor_b32 v{X+4+r}, v{d+2}, v{d+3}')
    for r in range(4): a(f'v_xor_b32 v{X+r}, v{X+r}, v{X+4+r}')
    for step in (8, 4, 2, 1):
        for r in range(4): a(f'v_xor_b32_dpp v{X+r}, v{X+r}, v{X+r} row_ror:{step} row_mask:0xf bank_mask:0xf')
    for r in range(1, 4):
        m = 0x00010001 << r
        a(f's_mov_b32 s56, {hex(m)}\ns_mov_b32 s57, {hex(m)}\nv_cndmask_b32 v{X}, v{X}, v{X+r}, s[56:57]')
    a(f'v_mov_b32 v{X+8}, s62\nv_xor_b32 v{X+9}, s61, v{X}')
    a('s_mov_b32 s56, 0x000f000f\ns_mov_b32 s57, 0x000f000f\ns_and_b64 exec, s[56:57], s[90:91]')
    if not x_nost: a(f'global_store_dwordx2 v{vTag}, v[{X+8}:{X+9}], s[58:59] {qst}')
    a('s_mov_b64 exec, -1')
    lnl = lab('nolocal')
    a(f's_cmp_eq_u64 s[88:89], 0\ns_cbranch_scc1 {lnl}')
    lds_spin(4, 2, 6, 5)
    a('s_mov_b64 exec, s[88:89]')
    for r in range(4): a(f'ds_write_b128 v{vLoc[r]}, v[{RD+4*r}:{RD+4*r+3}]')
    a('s_mov_b64 exec, -1')
    if debug:
        a(f's_lshl_b32 s{sT}, s2, 13\ns_add_u32 s{sT}, s{sT}, {WS_QDUMP}')
        a(f'v_lshrrev_b32 v10, 4, v0\nv_and_b32 v10, 1, v10\nv_lshlrev_b32 v10, 2, v10\ns_lshl_b32 s{sT2}, s{sHQ}, 3\nv_add_u32 v12, s{sT2}, v10')
        a('v_and_b32 v5, 15, v0\ns_mov_b64 exec, s[88:89]')
        for r in range(4):
            a(f'v_add_u32 v11, {r}, v12\nv_lshlrev_b32 v11, 8, v11\nv_lshlrev_b32 v10, 4, v5\nv_add_u32 v11, v11, v10\nv_add_u32 v11, s{sT}, v11')
            a(f'global_store_dwordx4 v11, v[{RD+4*r}:{RD+4*r+3}], s[{sWs}:{sWs+1}]')
        a('s_mov_b64 exec, -1')
    a(f'{lnl}:')
    if stamps: a('s_memrealtime s[86:87]')
    if QACK:
        a('s_waitcnt vmcnt(0)')
        a(f'v_mov_b32 v6, {CNT}\nv_mov_b32 v7, 1')
        lds_inc(8, 6, 7)
    a(f'{lqwait}:')
    if stamps: a('s_memrealtime s[84:85]')
    lq = lab('qpoll'); lqd = lab('qdone'); lqs = lab('qskip')
    a(f's_cmp_eq_u32 s{sPW}, s{sHQ}\ns_cbranch_scc1 {lqs}')
    a(f's_lshl_b32 s{sT}, s2, 14')
    a(f's_add_u32 s58, s{sWs}, s{sT}\ns_addc_u32 s59, s{sWs+1}, 0')
    if WS_QX: a(f's_add_u32 s58, s58, {WS_QX}\ns_addc_u32 s59, s59, 0')
    a(f's_lshl_b32 s{sT}, s{sPW}, 11\nv_lshlrev_b32 v1, 4, v0\nv_add_u32 v1, s{sT}, v1')
    a(f'v_lshrrev_b32 v2, 4, v0\nv_and_b32 v3, 15, v0\ns_lshl_b32 s{sT}, s{sPW}, 3\nv_add_u32 v2, s{sT}, v2')
    a('v_lshlrev_b32 v4, 3, v2\nv_add_u32 v4, 8192, v4')
    for u in range(2):
        a(f'v_add_u32 v5, {4*u}, v2\nv_and_b32 v6, 15, v5\nv_xor_b32 v6, v6, v3\nv_lshlrev_b32 v6, 4, v6\nv_lshlrev_b32 v5, 8, v5\nv_add_u32 v5, v5, v6\nv_add_u32 v{32+u}, {QBUF}, v5')
    a(f'v_mov_b32 v6, {CNT}')
    if QACK:
        lds_spin(8, 2, 6, 5)
        if QPRE: a(f's_sleep {QPRE}')
    else:
        lds_spin(4, 2, 6, 5)
        if QPRE: a(f's_sleep {QPRE}')
    if QGATE is not None: lds_spin(24, 4, 6, 5)
    a(f's_mov_b32 s57, {SPIN_MAX}')
    if x_nopoll: a(f's_branch {lqd}')
    a(f'{lq}:')
    for u in range(2): a(f'global_load_dwordx4 v[{12+4*u}:{15+4*u}], v1, s[58:59] offset:{1024*u} {qld}')
    for u in range(2): a(f'global_load_dwordx2 v[{20+2*u}:{21+2*u}], v4, s[58:59] offset:{32*u} {qld}')
    a('s_waitcnt vmcnt(0)')
    for u in range(2): a(f'v_xor_b32 v{24+u}, v{12+4*u}, v{13+4*u}\nv_xor_b32 v{26+u}, v{14+4*u}, v{15+4*u}')
    for u in range(2): a(f'v_xor_b32 v{24+u}, v{24+u}, v{26+u}')
    for u in range(2): a(f'v_subrev_u32 v{26+u}, s60, v{20+2*u}\nv_lshrrev_b32 v{26+u}, 12, v{26+u}')
    for step in (8, 4, 2, 1):
        for u in range(2): a(f'v_xor_b32_dpp v{24+u}, v{24+u}, v{24+u} row_ror:{step} row_mask:0xf bank_mask:0xf')
        a('s_nop 0')
    for u in range(2): a(f'v_xor_b32 v{24+u}, v{24+u}, v{20+2*u}\nv_xor_b32 v{24+u}, v{24+u}, v{21+2*u}\nv_xor_b32 v{24+u}, {hex(TAGK)}, v{24+u}')
    a('v_or3_b32 v28, v24, v25, v26\nv_or_b32 v28, v28, v27')
    a(f'v_cmp_ne_u32 vcc, 0, v28\ns_cbranch_vccz {lqd}')
    a(f's_sub_u32 s57, s57, 1\ns_cmp_eq_u32 s57, 0\ns_cbranch_scc1 {lqd}\ns_sleep {QSLEEP}\ns_branch {lq}')
    a(f'{lqd}:')
    for u in range(2): a(f'ds_write_b128 v{32+u}, v[{12+4*u}:{15+4*u}]')
    if debug:
        a(f's_lshl_b32 s{sT}, s2, 13\ns_add_u32 s{sT}, s{sT}, {WS_QDUMP}\nv_add_u32 v1, s{sT}, v1')
        for u in range(2): a(f'global_store_dwordx4 v1, v[{12+4*u}:{15+4*u}], s[{sWs}:{sWs+1}] offset:{1024*u}')
    a(f'{lqs}:')
    a('s_waitcnt lgkmcnt(0)')
    if x_noq: a('L_noq:')
    if pprio: a('s_setprio 0')
    stamp(1)
    a('s_barrier')
    if not redst: stamp(2)
    if PLFLAG:
        lw = lab('plwait')
        a(f'v_mov_b32 v6, {CNT}')
        a(f'{lw}:\ns_sleep 2\nds_read_b32 v5, v6 offset:20\ns_waitcnt lgkmcnt(0)\nv_readfirstlane_b32 s{sT}, v5\ns_cmp_ge_u32 s{sT}, {PLFLAG}\ns_cbranch_scc0 {lw}')
    else:
        for _ in range(PLDELAY): a('s_sleep 32')
    HOLD = 56; PL = 12
    a(f's_lshl_b32 s{sT}, s{sH}, 19')
    a(f's_add_u32 s48, s{sWo}, s{sT}\ns_addc_u32 s49, s{sWo+1}, 0\ns_and_b32 s49, s49, 0xffff\ns_mov_b32 s50, 524288\ns_mov_b32 s51, 0x20000')
    a(f's_lshl_b32 s{sT2}, s{sB}, 4\ns_lshl_b32 s52, s{sPW}, 2\ns_add_u32 s{sT2}, s{sT2}, s52\ns_lshl_b32 s{sT2}, s{sT2}, 10')
    a('v_lshlrev_b32 v1, 4, v0')
    if latewarm is not None:
        l2 = lab('wdone')
        a(f's_cmp_ge_u32 s{sB}, {2*NHOLD}\ns_cbranch_scc1 {l2}')
        for i in range(4): a(f'buffer_load_dwordx4 v[{PL+4*i}:{PL+4*i+3}], v1, s[48:51], s{sT2} offen offset:{i*1024} nt')
        a(f'{l2}:')
    elif wosplit:
        l1 = lab('wdef'); l2 = lab('wdone')
        a(f's_cmp_ge_u32 s{sB}, {2*NHOLD}\ns_cbranch_scc1 {l1}')
        for i in range(4): a(f'buffer_load_dwordx4 v[{PL+4*i}:{PL+4*i+3}], v1, s[48:51], s{sT2} offen offset:{i*1024} nt')
        a(f's_branch {l2}\n{l1}:')
        for i in range(4): a(f'buffer_load_dwordx4 v[{PL+4*i}:{PL+4*i+3}], v1, s[48:51], s{sT2} offen offset:{i*1024}')
        a(f'{l2}:')
    else:
        for i in range(4):
            a(f'buffer_load_dwordx4 v[{PL+4*i}:{PL+4*i+3}], v1, s[48:51], s{sT2} offen offset:{i*1024} {woflags if warmflags is None else warmflags}')
    a('s_waitcnt vmcnt(0)')
    for s in range(NHOLD):
        for j, x in enumerate(wo_load_list(PL, s)):
            if plflags is not None: x = [y + ' ' + plflags if y.startswith('buffer_load') else y for y in x]
            a.ext(x)
            if (j + 1) % PTH == 0: a('s_waitcnt vmcnt(0)')
        a('s_waitcnt vmcnt(0)')
        for e in range(8):
            m = e >> 1; sel = SEL_LO + (e & 1)
            for p in range(4):
                a(f'v_perm_b32 v{HOLD+(s>>1)*64+8*e+4*(s&1)+p}, v{PL+4*(2*p+1)+m}, v{PL+4*(2*p)+m}, s{sel}')
    if latewarm is not None:
        a(f'v_mov_b32 v6, {CNT}')
        lw = lab('wwait')
        a(f'{lw}:\ns_sleep 8\nds_read_b32 v5, v6 offset:20\ns_waitcnt lgkmcnt(0)\nv_readfirstlane_b32 s{sT}, v5\ns_cmp_ge_u32 s{sT}, 1\ns_cbranch_scc0 {lw}')
        a('v_lshlrev_b32 v1, 4, v0')
        a(f's_mul_i32 s52, s{sB}, 10\ns_mul_i32 s53, s{sPW}, 3')
        for i in range(3):
            a(f's_add_u32 s54, s53, {i}\ns_add_u32 s{sT}, s52, s54\ns_add_u32 s{sT}, s{sT}, {32*NHOLD}\ns_lshl_b32 s{sT}, s{sT}, 10\ns_cmp_lt_u32 s54, 10\ns_cselect_b32 s{sT}, s{sT}, 0x400000')
            a(f'buffer_load_dwordx4 v[{PL+4*i}:{PL+4*i+3}], v1, s[48:51], s{sT} offen {lateflags}')
        a('s_waitcnt vmcnt(0)')
    a(f'v_and_b32 v1, 8, v0\nv_mov_b32 v2, 0x4444\nv_mov_b32 v3, 0xeeee\nv_cmp_ne_u32 vcc, 0, v1\ns_nop 1\nv_cndmask_b32 v{vIDX}, v2, v3, vcc')
    a.ext(merge_addr(hA * 16384))
    offA = hA * 16384
    a(f's_mov_b32 s{sC}, {hex(f2u(C_SCALE))}')
    if not redst: stamp(3)
    a('s_barrier')
    if tailst: stamp(8)
    merge_body(zero=12)
    a('s_waitcnt lgkmcnt(0)')
    if tailst: stamp(9)
    a('s_barrier')
    stamp(4)
    pACC = 12; pAF = [44, 48]
    if debug: a('s_waitcnt vmcnt(0)')
    a(f'ds_read_b128 v[{pAF[0]}:{pAF[0]+3}], v{vACT}')
    a(f'ds_read_b128 v[{pAF[1]}:{pAF[1]+3}], v{vACT} offset:64')
    a('s_waitcnt lgkmcnt(1)')
    for e in range(8): a(smf(pACC + 4*e, pAF[0], HOLD + 8*e))
    for k in range(2):
        for x in wo_load_list(HOLD + k*32, 14 + k): a.ext(x)
    a(f'ds_read_b128 v[{pAF[0]}:{pAF[0]+3}], v{vACT} offset:128')
    a('s_waitcnt lgkmcnt(1)')
    for e in range(8): a(smf(pACC + 4*e, pAF[1], HOLD + 64 + 8*e))
    a(f'ds_read_b128 v[{pAF[1]}:{pAF[1]+3}], v{vACT} offset:{64*7}')
    a('s_waitcnt lgkmcnt(1)')
    for e in range(8): a(smf(pACC + 4*e, pAF[0], HOLD + 128 + 8*e))
    a('s_waitcnt vmcnt(0) lgkmcnt(0)')
    a.ext(mm_pair(HOLD, HOLD + 32, [HOLD + 64, HOLD + 72], pAF[1], pACC))
    a('v_and_b32 v2, 15, v0\nv_lshrrev_b32 v3, 4, v0\nv_and_b32 v3, 1, v3\nv_lshrrev_b32 v5, 5, v0')
    a('v_lshrrev_b32 v4, 3, v2\nv_lshlrev_b32 v4, 14, v4\nv_lshlrev_b32 v6, 9, v3\nv_add_u32 v4, v4, v6\nv_lshlrev_b32 v6, 8, v5\nv_add_u32 v4, v4, v6\nv_and_b32 v6, 7, v2\nv_lshlrev_b32 v6, 4, v6\nv_add_u32 v4, v4, v6')
    a(f's_lshl_b32 s{sT}, s{sB}, 3\ns_lshl_b32 s{sT2}, s{sNW}, 1\ns_add_u32 s{sT}, s{sT}, s{sT2}\ns_lshl_b32 s{sT}, s{sT}, 14\ns_lshl_b32 s{sT2}, s{sH}, 11\ns_add_u32 s{sT}, s{sT}, s{sT2}\ns_add_u32 s{sT}, s{sT}, {WS_MB}')
    a(f's_add_u32 s58, s{sWs}, s{sT}\ns_addc_u32 s59, s{sWs+1}, 0')
    a(f's_lshl_b32 s{sT}, s{sNW}, 15\nv_lshlrev_b32 v1, 4, v0\nv_add_u32 v1, s{sT}, v1')
    RA = 120; SM = 152; GR = 184; HH = 200
    for g in range(4): a(f'v_mov_b32 v{GR+4*g+3}, s62')
    a('v_lshrrev_b32 v8, 4, v0\nv_and_b32 v8, 1, v8\nv_lshrrev_b32 v9, 3, v0\nv_and_b32 v9, 1, v9\nv_and_b32 v10, 7, v0\nv_lshrrev_b32 v7, 5, v0')
    a('v_lshlrev_b32 v11, 10, v8\nv_lshlrev_b32 v6, 7, v9\nv_add_u32 v11, v11, v6\nv_lshlrev_b32 v6, 4, v10\nv_add_u32 v11, v11, v6\nv_lshlrev_b32 v6, 11, v7\nv_add_u32 v11, v11, v6')
    for t in range(1, 4): a(f'v_add_u32 v{208+t}, {4096*t}, v11')
    a(f's_lshl_b32 s{sT}, s2, 14\ns_lshl_b32 s{sT2}, s{sNW}, 8\ns_add_u32 s{sT}, s{sT}, s{sT2}\ns_add_u32 s{sT}, s{sT}, {WS_MB}')
    a(f's_add_u32 s56, s{sWs}, s{sT}\ns_addc_u32 s57, s{sWs+1}, 0')
    a(f's_lshl_b32 s{sT}, s{sB}, 3\ns_lshl_b32 s{sT2}, s{sNW}, 1\ns_add_u32 s{sT}, s{sT}, s{sT2}\ns_lshl_b32 s{sT}, s{sT}, 10\ns_lshl_b32 s{sT2}, s{sH}, 7\ns_add_u32 s{sT}, s{sT}, s{sT2}')
    a(f'v_lshlrev_b32 v212, 10, v9\nv_lshlrev_b32 v6, 4, v10\nv_add_u32 v212, v212, v6\nv_lshlrev_b32 v6, 3, v8\nv_add_u32 v212, v212, v6\nv_add_u32 v212, s{sT}, v212')
    a('s_mov_b32 s54, 0xffff0000')
    if tailst: stamp(10)
    a('s_barrier')
    stamp(5)
    for e in range(8): a(f'ds_read_b128 v[{RA+4*e}:{RA+4*e+3}], v1 offset:{offA + e*1024}')
    for hfw, wait in ((0, 4), (1, 0)):
        a(f's_waitcnt lgkmcnt({wait})')
        for e in range(4*hfw, 4*hfw + 4):
            for r in range(4):
                a(f'v_add_f32 v{SM+8*r+e}, v{pACC+4*e+r}, v{RA+4*e+r}')
        a('s_nop 0')
        for rs in range(2):
            for e in range(4*hfw, 4*hfw + 4):
                a(f'v_permlane32_swap_b32 v{SM+8*rs+e}, v{SM+8*(rs+2)+e}')
        for rs in range(2):
            for e in range(4*hfw, 4*hfw + 4):
                a(f'v_add_f32 v{SM+8*rs+e}, v{SM+8*rs+e}, v{SM+8*(rs+2)+e}')
        p = hfw
        for rs in range(2):
            g = GR + 4*(2*rs + p)
            for x in range(2):
                a(f'v_cvt_pk_bf16_f32 v{g+x}, v{SM+8*rs+4*p+2*x}, v{SM+8*rs+4*p+2*x+1}')
    for rs in range(2):
        for p in range(2):
            g = GR + 4*(2*rs + p)
            a.ext(make_granule(g))
            a(f'global_store_dwordx4 v4, v[{g}:{g+3}], s[58:59] offset:{p*1024 + rs*128} sc1')
    if tailst: stamp(11)
    a(f's_mov_b32 s55, {SPIN_MAX}')
    def final_out(gb):
        for t in range(4):
            g = gb + 4*t
            d = 28 if t == 0 else 32
            a(f'v_lshlrev_b32 v{d}, 16, v{g}\nv_and_b32 v{d+1}, s54, v{g}\nv_lshlrev_b32 v{d+2}, 16, v{g+1}\nv_and_b32 v{d+3}, s54, v{g+1}')
            if t:
                for k in range(4): a(f'v_add_f32 v{28+k}, v{28+k}, v{32+k}')
        for k in range(4): a(f'v_mov_b32 v{32+k}, v{28+k}')
        a('s_nop 1')
        for k in range(4): a(f'v_permlane32_swap_b32 v{28+k}, v{32+k}')
        a('s_nop 0')
        for k in range(4): a(f'v_add_f32 v{28+k}, v{28+k}, v{32+k}')
        a('v_cvt_pk_bf16_f32 v28, v28, v29\nv_cvt_pk_bf16_f32 v29, v30, v31')
        a('s_mov_b32 exec_lo, -1\ns_mov_b32 exec_hi, 0')
        a(f'global_store_dwordx2 v212, v[28:29], s[{sOut}:{sOut+1}] {outfl}')
        a('s_mov_b64 exec, -1')
    if RPRE: a(f's_sleep {RPRE}')
    lp = lab('rpoll'); ld = lab('rdone')
    def rissue(base):
        for t in range(4):
            va = 11 if t == 0 else 208 + t
            a(f'global_load_dwordx4 v[{base+4*t}:{base+3+4*t}], v{va}, s[56:57] sc1')
    if RPIPE:
        S1 = 216; lb = lab('rgotb')
        rissue(12)
        if RPIPE > 0: a(f's_sleep {RPIPE}')
        rissue(S1)
        a(f'{lp}:')
        a('s_waitcnt vmcnt(4)')
        for t in range(4): a.ext(check_granule(12+4*t, 44, 45, t == 0))
        a(f'v_cmp_ne_u32 vcc, 0, v44\ns_cbranch_vccz {ld}')
        rissue(12)
        a('s_waitcnt vmcnt(4)')
        for t in range(4): a.ext(check_granule(S1+4*t, 44, 45, t == 0))
        a(f'v_cmp_ne_u32 vcc, 0, v44\ns_cbranch_vccz {lb}')
        rissue(S1)
        a(f's_sub_u32 s55, s55, 1\ns_cmp_eq_u32 s55, 0\ns_cbranch_scc0 {lp}')
        a(f's_waitcnt vmcnt(0)\ns_branch {ld}')
        a(f'{lb}:')
        final_out(S1)
        a('s_branch L_fin')
    else:
        a(f'{lp}:')
        rissue(12)
        a('s_waitcnt vmcnt(0)')
        for t in range(4): a.ext(check_granule(12+4*t, 44, 45, t == 0))
        a(f'v_cmp_ne_u32 vcc, 0, v44\ns_cbranch_vccz {ld}')
        a(f's_sub_u32 s55, s55, 1\ns_cmp_eq_u32 s55, 0\ns_cbranch_scc1 {ld}\n' + (f's_sleep {RSLEEP}\n' if RSLEEP else '') + f's_branch {lp}')
    a(f'{ld}:')
    if tailst: a(f's_sub_u32 s78, {SPIN_MAX}, s55')
    final_out(12)
    a('L_fin:')
    if lite and not stamps:
        stamp(6)
        a('s_waitcnt lgkmcnt(0)')
        a(f's_lshl_b32 s{sT}, s2, 3\ns_add_u32 s{sT}, s{sT}, s{sWave}\ns_lshl_b32 s{sT}, s{sT}, 6\ns_add_u32 s{sT}, s{sT}, {WS_STAMP}\nv_mov_b32 v3, s{sT}')
        a('s_mov_b32 exec_lo, 1\ns_mov_b32 exec_hi, 0\nv_mov_b32 v4, s64\nv_mov_b32 v5, s76')
        a(f'global_store_dwordx2 v3, v[4:5], s[{sWs}:{sWs+1}]')
    if stamps:
        stamp(6)
        a('L_stamps:')
        a('s_waitcnt lgkmcnt(0)')
        a(f's_lshl_b32 s{sT}, s2, 3\ns_add_u32 s{sT}, s{sT}, s{sWave}\ns_lshl_b32 s{sT}, s{sT}, 6\ns_add_u32 s{sT}, s{sT}, {WS_STAMP}\nv_mov_b32 v3, s{sT}')
        a('s_mov_b32 exec_lo, 1\ns_mov_b32 exec_hi, 0')
        for q in range(3):
            regs = [64+2*(4*q+i) for i in range(4)]
            a('\n'.join(f'v_mov_b32 v{4+i}, s{regs[i]}' for i in range(4)))
            a(f'global_store_dwordx4 v3, v[4:7], s[{sWs}:{sWs+1}] offset:{16*q}\ns_nop 1')
    a('L_end:\ns_endpgm')
    a.raw('.section .rodata,"a"\n.p2align 6')
    a.raw(f'.amdhsa_kernel {K}')
    a.raw('  .amdhsa_next_free_vgpr 256\n  .amdhsa_next_free_sgpr 96\n  .amdhsa_accum_offset 256')
    a.raw('  .amdhsa_group_segment_fixed_size 0\n  .amdhsa_kernarg_size 64\n  .amdhsa_user_sgpr_count 2\n  .amdhsa_user_sgpr_kernarg_segment_ptr 1\n  .amdhsa_system_sgpr_workgroup_id_x 1')
    a.raw('.end_amdhsa_kernel')
    return a.text()

if __name__ == '__main__':
    kw = json.loads(sys.argv[2]) if len(sys.argv) > 2 else {}
    open(sys.argv[1], 'w').write(gen(**kw))
```
